```python
import torch

def _softmax(x, axis=-1):
    return torch.softmax(x, dim=axis)
def _gelu(x):
    return torch.nn.functional.gelu(x, approximate="tanh")
def _silu(x):
    return torch.nn.functional.silu(x)
def _sigmoid(x):
    return torch.sigmoid(x)
def _layernorm(x, axis=-1, eps=1e-5):
    m = x.mean(dim=axis, keepdim=True)
    v = x.var(dim=axis, keepdim=True, unbiased=False)
    return (x - m) / torch.sqrt(v + eps)
def _scatter_add(tgt, idx, src, axis=0):
    return tgt.clone().index_add_(axis, idx, src)
def _segment_sum(src, seg, n):
    out = torch.zeros((n,) + src.shape[1:], dtype=src.dtype)
    return out.index_add_(0, seg, src)
def _pad(x, pw):
    flat = tuple(v for pair in reversed(pw) for v in pair)
    return torch.nn.functional.pad(x, flat)

kernel_name = 'recurrent_scan__spectral_fnet__geglu_ffn__prompt'

def setup_inputs():

    _w = (lambda a: (lambda t: t.to(torch.bfloat16) if t.is_floating_point() else t)(torch.as_tensor(a)))
    def _A_setup():
        B, S, D = 1, 2048, 512
        ns = torch.arange(S)[:, None] * torch.arange(S)[None, :]
        nd = torch.arange(D)[:, None] * torch.arange(D)[None, :]
        Ws_re = torch.cos(-2.0 * torch.pi * ns / S).to(float)
        Ws_im = torch.sin(-2.0 * torch.pi * ns / S).to(float)
        Wd_re = torch.cos(-2.0 * torch.pi * nd / D).to(float)
        Wd_im = torch.sin(-2.0 * torch.pi * nd / D).to(float)
        return {
            "x": _w((lambda *s: torch.randn(*s, dtype=torch.bfloat16) * 0.05)(B, S, D)),
            "dft_seq_re": _w(Ws_re),
            "dft_seq_im": _w(Ws_im),
            "dft_hid_re": _w(Wd_re),
            "dft_hid_im": _w(Wd_im),
        }
    _A_in = _A_setup()

    def _B_setup():
        B, S, D, F = 1, 2048, 512, 1792
        return {
            "x": _w((lambda *s: torch.randn(*s, dtype=torch.bfloat16) * 0.05)(B, S, D)),
            "w_gate": _w((lambda *s: torch.randn(*s, dtype=torch.bfloat16) * 0.05)(D, F)),
            "w_up": _w((lambda *s: torch.randn(*s, dtype=torch.bfloat16) * 0.05)(D, F)),
            "w_down": _w((lambda *s: torch.randn(*s, dtype=torch.bfloat16) * 0.05)(F, D)),
        }
    _B_in = _B_setup()

    return {
        "A_x": _A_in["x"],
        "A_dft_seq_re": _A_in["dft_seq_re"],
        "A_dft_seq_im": _A_in["dft_seq_im"],
        "A_dft_hid_re": _A_in["dft_hid_re"],
        "A_dft_hid_im": _A_in["dft_hid_im"],
        "B_x": _B_in["x"],
        "B_w_gate": _B_in["w_gate"],
        "B_w_up": _B_in["w_up"],
        "B_w_down": _B_in["w_down"],
    }

def reference(A_x, A_dft_seq_re, A_dft_seq_im, A_dft_hid_re, A_dft_hid_im, B_x, B_w_gate, B_w_up, B_w_down):
    def _A_ref(x, dft_seq_re, dft_seq_im, dft_hid_re, dft_hid_im):
        a = torch.einsum("bsd,ed->bse", x, dft_hid_re)
        b = torch.einsum("bsd,ed->bse", x, dft_hid_im)
        y = torch.einsum("ts,bse->bte", dft_seq_re, a) - torch.einsum("ts,bse->bte", dft_seq_im, b)
        return y

    def _B_ref(x, w_gate, w_up, w_down):
        return (_gelu(x @ w_gate) * (x @ w_up)) @ w_down

    x = A_x
    xn = _layernorm(x, axis=-1)
    s = _A_ref(xn, A_dft_seq_re, A_dft_seq_im, A_dft_hid_re, A_dft_hid_im)
    g = _silu(_B_ref(xn, B_w_gate, B_w_up, B_w_down))
    return x + s * g
```

```python
import sys, math, struct

STAMP = "--stamp" in sys.argv
OUT = [a for a in sys.argv[1:] if not a.startswith("--")][0]

A_OFF = 0
A_RB = 144 * 1024
WD_OFF = 0x900000
Z_OFF = 0xAC0000
WS_SIZE = 0xCC1000
STAMP_OFF = 0x1000000

L = []
def E(s=""):
    for line in s.split("\n"):
        L.append(line)
def f32(x):
    return "0x%08x" % struct.unpack("<I", struct.pack("<f", x))[0]
def v(a, n=1):
    return f"v{a}" if n == 1 else f"v[{a}:{a+n-1}]"
def s(a, n=1):
    return f"s{a}" if n == 1 else f"s[{a}:{a+n-1}]"

def kd(name, vg, sg):
    return f""".amdhsa_kernel {name}
  .amdhsa_next_free_vgpr {vg}
  .amdhsa_next_free_sgpr {sg}
  .amdhsa_accum_offset {(vg+3)//4*4}
  .amdhsa_group_segment_fixed_size 0
  .amdhsa_kernarg_size 96
  .amdhsa_user_sgpr_count 2
  .amdhsa_user_sgpr_kernarg_segment_ptr 1
  .amdhsa_system_sgpr_workgroup_id_x 1
.end_amdhsa_kernel"""

def stamp(k):
    if STAMP:
        E(f"    s_memrealtime s[{80+2*k}:{81+2*k}]")
def stamp_flush(kern, n, srd, wave_s, tmpv):
    if not STAMP: return
    E("    s_waitcnt lgkmcnt(0)")
    E(f"    s_lshl_b32 s78, s2, 3")
    E(f"    s_add_u32 s78, s78, {s(wave_s)}")
    E(f"    s_lshl_b32 s78, s78, 5")
    E(f"    s_add_u32 s78, s78, {STAMP_OFF + kern*0x10000}")
    E(f"    s_mov_b32 {s(srd+2)}, 0x2000000")
    for k in range(8):
        E(f"    v_mov_b32 {v(tmpv+k)}, s{80+2*min(k,n-1)}")
    E(f"    v_mov_b32 {v(tmpv+8)}, 0")
    E("    s_mov_b64 exec, 1")
    E(f"    buffer_store_dwordx4 {v(tmpv,4)}, {v(tmpv+8)}, {s(srd,4)}, s78 offen")
    E(f"    buffer_store_dwordx4 {v(tmpv+4,4)}, {v(tmpv+8)}, {s(srd,4)}, s78 offen offset:16")

HEADER = open("recurrent_scan__spectral_fnet__geglu_ffn__prompt.s.ref").read().split("; Override")[0]
E(HEADER.rstrip())
E("; @launch kernel=stage1_kernel grid=(256,1,1) block=(512,1,1) lds=163840")
E("; @launch kernel=stage2_kernel grid=(256,1,1) block=(512,1,1) lds=131072")
E('.amdgcn_target "amdgcn-amd-amdhsa--gfx950"')
E(".text")

WRING = 0; WSLOT = 16384; NW = 6
XRING = NW * WSLOT; XSLOT = 16384; NX = 3
MISC = XRING + NX * XSLOT
ST_OFF = MISC
CS_OFF = MISC + 4096
PRIV = MISC + 8192

sX, sG, sU, sWS, sSJ = 4, 8, 12, 16, 20
sI, sC, sW, sRS, sCH, sWoff, sXoff, sWd, sXd, sWr, sXr, sP, sRH, sCQ, sT0, sT1, sONE, sDFT = range(48, 66)
sK = 66
ACC = 0
vACC = 16
vF = [80, 96]
vXB = 112
vWB = 120
vXA = 122
vWA = 124
vXo = 126
vWo = 128
vSUM, vSQ, vCG, vCU = 130, 131, 132, 133
vSJ = 136
vSJo = 152
vL = 1
vT = 2
vE = 156

def acc(rb, p):
    return vACC + (rb * 2 + p) * 16

E(".globl stage1_kernel\n.p2align 8\n.type stage1_kernel,@function\nstage1_kernel:")
E("    s_cmp_ge_u32 s2, 256")
E("    s_cbranch_scc1 L1_end")
stamp(0)
E("    s_load_dwordx16 s[32:47], s[0:1], 0")
E("    s_load_dwordx2 s[28:29], s[0:1], 64")
E("    s_load_dwordx2 s[30:31], s[0:1], 88")
E(f"    v_lshrrev_b32 v2, 6, v0")
E(f"    v_and_b32 {v(vL)}, 63, v0")
E(f"    v_readfirstlane_b32 {s(sW)}, v2")
E(f"    s_and_b32 {s(sT0)}, s2, 1")
E(f"    s_lshl_b32 {s(sT0)}, {s(sT0)}, 3")
E(f"    s_bfe_u32 {s(sI)}, s2, 0x30003")
E(f"    s_add_u32 {s(sI)}, {s(sI)}, {s(sT0)}")
E(f"    s_bfe_u32 {s(sT0)}, s2, 0x20001")
E(f"    s_lshl_b32 {s(sT0)}, {s(sT0)}, 2")
E(f"    s_lshr_b32 {s(sC)}, s2, 6")
E(f"    s_add_u32 {s(sC)}, {s(sC)}, {s(sT0)}")
E(f"    s_lshr_b32 {s(sRH)}, {s(sW)}, 2")
E(f"    s_and_b32 {s(sCQ)}, {s(sW)}, 3")
E(f"    s_cmp_ge_u32 {s(sC)}, 14")
E(f"    s_cselect_b32 {s(sDFT)}, 1, 0")
E(f"    s_cselect_b32 {s(sRS)}, 2, 7")
E(f"    s_lshl_b32 {s(sRS)}, {s(sRS)}, 9")
E(f"    s_lshl_b32 {s(sCH)}, {s(sRS)}, 5")
E(f"    v_lshrrev_b32 v2, 3, {v(vL)}")
E(f"    s_lshl_b32 {s(sT0)}, {s(sW)}, 4")
E(f"    v_add_u32 v2, {s(sT0)}, v2")
E(f"    v_bfe_u32 v3, v2, 1, 3")
E(f"    v_and_b32 v4, 7, {v(vL)}")
E(f"    v_xor_b32 v3, v3, v4")
E(f"    v_lshlrev_b32 v3, 4, v3")
E(f"    s_cmp_eq_u32 {s(sDFT)}, 1")
E("    s_cbranch_scc1 L1_rows_dft")
E(f"    v_lshlrev_b32 v2, 4, v2")
E(f"    v_add_u32 v2, {s(sI)}, v2")
E(f"    s_mov_b32 {s(sT1)}, {128*1024}")
E("    s_branch L1_rows_done")
E("L1_rows_dft:")
E("    v_and_b32 v4, 1, v2")
E("    v_bfe_u32 v5, v2, 2, 1")
E("    v_lshl_add_u32 v4, v5, 1, v4")
E("    v_bfe_u32 v5, v2, 6, 1")
E("    v_lshl_add_u32 v4, v5, 2, v4")
E("    v_bfe_u32 v5, v2, 1, 1")
E("    v_lshl_add_u32 v4, v5, 7, v4")
E("    v_bfe_u32 v5, v2, 3, 3")
E("    v_lshl_add_u32 v4, v5, 8, v4")
E(f"    s_lshl_b32 {s(sT1)}, {s(sI)}, 3")
E(f"    v_add_u32 v2, {s(sT1)}, v4")
E(f"    s_mov_b32 {s(sT1)}, {256*1024}")
E("L1_rows_done:")
E(f"    v_lshl_add_u32 {v(vXo)}, v2, 10, v3")
E(f"    v_xor_b32 {v(vXo+1)}, 64, {v(vXo)}")
E(f"    v_add_u32 {v(vXo+1)}, {s(sT1)}, {v(vXo+1)}")
E(f"    v_lshrrev_b32 v2, 4, {v(vL)}")
E(f"    v_lshlrev_b32 v3, 2, v2")
E(f"    v_and_b32 v4, 15, {v(vL)}")
E(f"    v_xor_b32 v3, v3, v4")
E(f"    v_lshlrev_b32 v3, 4, v3")
E(f"    s_lshl_b32 {s(sT0)}, {s(sW)}, 2")
E(f"    v_add_u32 v2, {s(sT0)}, v2")
E(f"    v_mul_lo_u32 v2, v2, {s(sRS)}")
E(f"    s_lshl_b32 {s(sT0)}, {s(sC)}, 8")
E(f"    s_sub_u32 {s(sT1)}, {s(sT0)}, {14*256 - 512}")
E(f"    s_cmp_eq_u32 {s(sDFT)}, 1")
E(f"    s_cselect_b32 {s(sT0)}, {s(sT1)}, {s(sT0)}")
E(f"    v_add3_u32 {v(vWo)}, v2, v3, {s(sT0)}")
E("    s_waitcnt lgkmcnt(0)")
E(f"    s_mov_b32 {s(sX)}, s32\n    s_mov_b32 {s(sX+1)}, s33\n    s_mov_b32 {s(sX+2)}, {2048*1024}\n    s_mov_b32 {s(sX+3)}, 0x20000")
E(f"    s_cmp_eq_u32 {s(sDFT)}, 1")
E(f"    s_cselect_b32 {s(sG)}, s38, s44\n    s_cselect_b32 {s(sG+1)}, s39, s45")
E(f"    s_cselect_b32 {s(sU)}, s40, s46\n    s_cselect_b32 {s(sU+1)}, s41, s47")
E(f"    s_lshl_b32 {s(sG+2)}, {s(sRS)}, 9\n    s_mov_b32 {s(sG+3)}, 0x20000")
E(f"    s_lshl_b32 {s(sU+2)}, {s(sRS)}, 9\n    s_mov_b32 {s(sU+3)}, 0x20000")
E(f"    s_mov_b32 {s(sWS)}, s30\n    s_mov_b32 {s(sWS+1)}, s31\n    s_mov_b32 {s(sWS+2)}, {WS_SIZE}\n    s_mov_b32 {s(sWS+3)}, 0x20000")
E(f"    s_mov_b32 {s(sSJ)}, s28\n    s_mov_b32 {s(sSJ+1)}, s29\n    s_mov_b32 {s(sSJ+2)}, {1792*1024}\n    s_mov_b32 {s(sSJ+3)}, 0x20000")

def dma_x(slot_s_or_imm, soff):
    for b in range(2):
        E(f"    s_add_u32 m0, {s(sXd)}, {b*1024}")
        E(f"    s_nop 0")
        E(f"    buffer_load_dwordx4 {v(vXo+b)}, {s(sX,4)}, {soff} offen lds")
def dma_w(soff):
    E(f"    s_mov_b32 m0, {s(sWd)}")
    E(f"    s_nop 0")
    E(f"    buffer_load_dwordx4 {v(vWo)}, {s(sG,4)}, {soff} offen lds")
    E(f"    s_add_u32 m0, {s(sWd)}, 8192")
    E(f"    s_nop 0")
    E(f"    buffer_load_dwordx4 {v(vWo)}, {s(sU,4)}, {soff} offen lds")
def adv_w():
    E(f"    s_add_u32 {s(sWoff)}, {s(sWoff)}, {s(sCH)}")
    E(f"    s_min_u32 {s(sWoff)}, {s(sWoff)}, {s(sG+2)}")
    E(f"    s_add_u32 {s(sWd)}, {s(sWd)}, {WSLOT}")
    E(f"    s_cmp_ge_u32 {s(sWd)}, {NW*WSLOT}")
    E(f"    s_cselect_b32 {s(sT0)}, {NW*WSLOT}, 0")
    E(f"    s_sub_u32 {s(sWd)}, {s(sWd)}, {s(sT0)}")
def adv_x():
    E(f"    s_add_u32 {s(sXoff)}, {s(sXoff)}, 128")
    E(f"    s_cmp_ge_u32 {s(sXoff)}, 1024")
    E(f"    s_cselect_b32 {s(sXoff)}, {2048*1024}, {s(sXoff)}")
    E(f"    s_add_u32 {s(sXd)}, {s(sXd)}, {XSLOT}")
    E(f"    s_cmp_ge_u32 {s(sXd)}, {XRING+NX*XSLOT}")
    E(f"    s_cselect_b32 {s(sT0)}, {NX*XSLOT}, 0")
    E(f"    s_sub_u32 {s(sXd)}, {s(sXd)}, {s(sT0)}")

E(f"    v_and_b32 v2, 31, {v(vL)}")
E(f"    v_lshrrev_b32 v3, 5, {v(vL)}")
E(f"    v_lshlrev_b32 {v(vSJo)}, 4, {v(vL)}")
E(f"    s_cmp_eq_u32 {s(sW)}, 7")
E("    s_cbranch_scc1 L1_sj_ws")
E(f"    s_mul_i32 {s(sT0)}, s2, 7")
E(f"    s_add_u32 {s(sT0)}, {s(sT0)}, {s(sW)}")
E(f"    s_lshl_b32 s72, {s(sT0)}, 10")
E(f"    s_add_u32 s72, s72, {WD_OFF}")
E(f"    s_lshr_b32 {s(sT1)}, s2, 4")
E(f"    s_mul_i32 s73, {s(sT1)}, 112")
E(f"    s_sub_u32 {s(sT0)}, {s(sT0)}, s73")
E(f"    s_lshl_b32 {s(sT0)}, {s(sT0)}, 14")
E(f"    s_lshl_b32 {s(sT1)}, {s(sT1)}, 6")
E(f"    s_add_u32 {s(sT0)}, {s(sT0)}, {s(sT1)}")
E(f"    s_add_u32 {s(sT1)}, {s(sT0)}, 8192")
E(f"    v_lshlrev_b32 v3, 12, v3")
E(f"    v_lshl_add_u32 v2, v2, 1, v3")
for j in range(8):
    E(f"    buffer_load_ushort {v(vSJ+j)}, v2, {s(sSJ,4)}, {s(sT0 if j<4 else sT1)} offen offset:{(j&3)*1024}")
E("    s_branch L1_sj_done")
E("L1_sj_ws:")
E(f"    s_lshr_b32 {s(sT0)}, s2, 2")
E(f"    s_mul_i32 s72, {s(sT0)}, {A_RB}")
E(f"    s_and_b32 {s(sT1)}, s2, 3")
E(f"    s_lshl_b32 s73, {s(sT1)}, 12")
E(f"    s_add_u32 s72, s72, s73")
E(f"    s_add_u32 s72, s72, {A_OFF + 112*1024}")
E(f"    s_lshl_b32 s73, {s(sT1)}, 6")
E(f"    s_and_b32 {s(sT1)}, {s(sT0)}, 3")
E(f"    s_lshl_b32 {s(sT1)}, {s(sT1)}, 9")
E(f"    s_lshr_b32 {s(sT0)}, {s(sT0)}, 2")
E(f"    s_add_u32 {s(sT0)}, {s(sT0)}, {s(sT1)}")
E(f"    s_lshl_b32 {s(sT0)}, {s(sT0)}, 12")
E(f"    s_add_u32 {s(sT0)}, {s(sT0)}, s73")
E(f"    v_lshlrev_b32 v2, 16, v2")
E(f"    v_add_u32 v2, {s(sT0)}, v2")
E(f"    v_cmp_eq_u32 vcc, 1, v3")
E(f"    v_mov_b32 v4, s34\n    v_mov_b32 v5, s35\n    v_mov_b32 v6, s36\n    v_mov_b32 v7, s37")
E(f"    v_cndmask_b32 v4, v4, v6, vcc\n    v_cndmask_b32 v5, v5, v7, vcc")
E(f"    v_add_co_u32 v4, vcc, v4, v2\n    s_nop 1\n    v_addc_co_u32 v5, vcc, 0, v5, vcc")
for j in range(4):
    E(f"    global_load_dwordx4 {v(vSJ+4*j,4)}, v[4:5], off offset:{16*j}")
E("L1_sj_done:")

E(f"    s_lshl_b32 {s(sWd)}, {s(sW)}, 10")
E(f"    s_lshl_b32 {s(sXd)}, {s(sW)}, 11")
E(f"    s_add_u32 {s(sXd)}, {s(sXd)}, {XRING}")
E(f"    s_mov_b32 {s(sWoff)}, 0")
E(f"    s_mov_b32 {s(sXoff)}, 0")
for what in "XWWXWWW":
    if what == "X":
        dma_x(None, s(sXoff)); adv_x()
    else:
        dma_w(s(sWoff)); adv_w()
E(f"    s_lshr_b32 {s(sT0)}, {s(sCQ)}, 1")
E(f"    s_xor_b32 {s(sT0)}, {s(sT0)}, {s(sRH)}")
E(f"    v_lshrrev_b32 v2, 5, {v(vL)}")
E(f"    v_bfe_u32 v3, {v(vL)}, 2, 2")
E(f"    v_lshlrev_b32 v4, 11, v2")
E(f"    v_lshl_add_u32 v4, v3, 8, v4")
E(f"    v_xor_b32 v3, {s(sCQ)}, v3")
E(f"    v_lshl_add_u32 v4, v3, 6, v4")
E(f"    v_bfe_u32 v3, {v(vL)}, 4, 1")
E(f"    v_lshl_add_u32 v4, v3, 5, v4")
E(f"    v_and_b32 v3, 3, {v(vL)}")
E(f"    v_lshl_add_u32 v4, v3, 3, v4")
E(f"    s_lshl_b32 {s(sT1)}, {s(sT0)}, 12")
E(f"    v_add_u32 {v(vWB)}, {s(sT1)}, v4")
E(f"    v_xor_b32 {v(vWB+1)}, 4096, {v(vWB)}")
E(f"    v_and_b32 v3, 31, {v(vL)}")
E(f"    v_bfe_u32 v4, {v(vL)}, 1, 3")
E(f"    v_xor_b32 v4, v4, v2")
E(f"    v_lshlrev_b32 v4, 4, v4")
E(f"    v_lshl_add_u32 v4, v3, 7, v4")
E(f"    s_lshl_b32 {s(sT0)}, {s(sT0)}, 5")
E(f"    v_xor_b32 v4, {s(sT0)}, v4")
E(f"    s_and_b32 {s(sT0)}, {s(sCQ)}, 1")
E(f"    s_lshl_b32 {s(sT1)}, {s(sRH)}, 1")
E(f"    s_add_u32 {s(sT0)}, {s(sT0)}, {s(sT1)}")
E(f"    s_lshl_b32 {s(sT0)}, {s(sT0)}, 12")
E(f"    v_add_u32 v4, {s(sT0)}, v4")
for q in range(4):
    E(f"    v_xor_b32 {v(vXB+2*q)}, {q*32}, v4")
    E(f"    v_xor_b32 {v(vXB+2*q+1)}, {q*32+4096}, v4")
for r in range(64):
    E(f"    v_mov_b32 {v(vACC+r)}, 0")
for r in (vSUM, vSQ, vCG, vCU):
    E(f"    v_mov_b32 {v(r)}, 0")
E(f"    s_mov_b32 {s(sONE)}, 0x3f803f80")
E(f"    s_mov_b32 {s(sWr)}, 0")
E(f"    s_mov_b32 {s(sXr)}, {XRING}")
E(f"    s_mov_b32 {s(sP)}, 0")

def reads(F, q, sl):
    E(f"    v_add_u32 {v(vXA)}, {s(sXr)}, {v(vXB+2*q)}")
    E(f"    v_add_u32 {v(vXA+1)}, {s(sXr)}, {v(vXB+2*q+1)}")
    E(f"    v_add_u32 {v(vWA)}, {s(sWr)}, {v(vWB+sl)}")
    E(f"    ds_read_b128 {v(F,4)}, {v(vXA)}")
    E(f"    ds_read_b64_tr_b16 {v(F+8,2)}, {v(vWA)}")
    E(f"    ds_read_b64_tr_b16 {v(F+10,2)}, {v(vWA)} offset:1024")
    E(f"    ds_read_b64_tr_b16 {v(F+12,2)}, {v(vWA)} offset:8192")
    E(f"    ds_read_b64_tr_b16 {v(F+14,2)}, {v(vWA)} offset:9216")
    E(f"    ds_read_b128 {v(F+4,4)}, {v(vXA+1)}")
def mfmas(F, dft, kind):
    dots = []
    if kind == "stat":
        for r in range(4):
            dots.append(f"    v_dot2c_f32_bf16 {v(vSUM)}, {s(sONE)}, {v(F+r)}")
            dots.append(f"    v_dot2c_f32_bf16 {v(vSQ)}, {v(F+r)}, {v(F+r)}")
    else:
        for r in range(4):
            dots.append(f"    v_dot2c_f32_bf16 {v(vCG)}, {s(sONE)}, {v(F+8+r)}")
            dots.append(f"    v_dot2c_f32_bf16 {v(vCU)}, {s(sONE)}, {v(F+12+r)}")
    k = 0
    for rb in range(2):
        for p in range(2):
            X = v(F+4*rb, 4); W = v(F+8+4*p, 4); A = v(acc(rb, p), 16)
            if dft: E(f"    v_mfma_f32_32x32x16_bf16 {A}, {X}, {W}, {A}")
            else:   E(f"    v_mfma_f32_32x32x16_bf16 {A}, {W}, {X}, {A}")
            E(dots[k]); E(dots[k+1]); k += 2
def adv_wr():
    E(f"    s_add_u32 {s(sWr)}, {s(sWr)}, {WSLOT}")
    E(f"    s_cmp_ge_u32 {s(sWr)}, {NW*WSLOT}")
    E(f"    s_cselect_b32 {s(sWr)}, 0, {s(sWr)}")
def adv_xr():
    E(f"    s_add_u32 {s(sXr)}, {s(sXr)}, {XSLOT}")
    E(f"    s_cmp_ge_u32 {s(sXr)}, {XRING+NX*XSLOT}")
    E(f"    s_cselect_b32 {s(sXr)}, {XRING}, {s(sXr)}")

stamp(1)
E("    s_waitcnt vmcnt(8)")
E("    s_barrier")
stamp(2)
reads(vF[0], 0, 0)
E(f"    s_cmp_eq_u32 {s(sDFT)}, 1")
E("    s_cbranch_scc1 L1_loop_dft")
for dft in (0, 1):
    lab = "L1_loop_dft" if dft else "L1_loop_ffn"
    E(f"{lab}:")
    E("    s_barrier")
    dma_w(s(sWoff)); adv_w()
    dma_x(None, s(sXoff)); adv_x()
    reads(vF[1], 1, 1)
    E("    s_waitcnt lgkmcnt(6)")
    mfmas(vF[0], dft, "stat")
    adv_wr()
    reads(vF[0], 2, 0)
    E("    s_waitcnt lgkmcnt(6)")
    mfmas(vF[1], dft, "col")
    E("    s_waitcnt vmcnt(6)")
    E("    s_barrier")
    dma_w(s(sWoff)); adv_w()
    reads(vF[1], 3, 1)
    E("    s_waitcnt lgkmcnt(6)")
    mfmas(vF[0], dft, "stat")
    adv_wr(); adv_xr()
    reads(vF[0], 0, 0)
    E("    s_waitcnt lgkmcnt(6)")
    mfmas(vF[1], dft, "col")
    E(f"    s_add_u32 {s(sP)}, {s(sP)}, 1")
    E(f"    s_cmp_lt_u32 {s(sP)}, 8")
    E(f"    s_cbranch_scc1 {lab}")
    if not dft:
        E("    s_branch L1_epi")
E("L1_epi:")
stamp(3)
E(f"    v_and_b32 v2, 31, {v(vL)}")
E(f"    v_lshrrev_b32 v3, 5, {v(vL)}")
E(f"    s_and_b32 {s(sT0)}, {s(sCQ)}, 1")
E(f"    s_lshl_b32 {s(sT1)}, {s(sRH)}, 1")
E(f"    s_add_u32 {s(sT0)}, {s(sT0)}, {s(sT1)}")
E(f"    s_lshl_b32 s74, {s(sT0)}, 10")
E(f"    s_add_u32 s74, s74, {ST_OFF}")
E(f"    s_and_b32 {s(sT1)}, {s(sCQ)}, 2")
E(f"    s_lshl_b32 {s(sT1)}, {s(sT1)}, 2")
E(f"    s_add_u32 {s(sT1)}, {s(sT1)}, s74")
E(f"    v_lshlrev_b32 v4, 5, v2")
E(f"    v_lshl_add_u32 v5, v3, 2, v4")
E(f"    v_add_u32 v5, {s(sT1)}, v5")
E(f"    ds_write2_b32 v5, {v(vSUM)}, {v(vSQ)} offset0:0 offset1:4")
E(f"    s_lshl_b32 s75, {s(sCQ)}, 9")
E(f"    s_add_u32 s75, s75, {CS_OFF}")
E(f"    s_lshl_b32 {s(sT1)}, {s(sRH)}, 3")
E(f"    s_add_u32 {s(sT1)}, {s(sT1)}, s75")
E(f"    v_lshlrev_b32 v6, 4, v2")
E(f"    v_lshl_add_u32 v7, v3, 2, v6")
E(f"    v_add_u32 v7, {s(sT1)}, v7")
E(f"    ds_write_b32 v7, {v(vCG)}")
E(f"    ds_write_b32 v7, {v(vCU)} offset:2048")
E(f"    v_lshlrev_b32 v5, 10, v3")
E(f"    v_xor_b32 v5, s74, v5")
E(f"    v_add_u32 v5, v5, v4")
E(f"    v_lshl_add_u32 v7, v3, 11, v6")
E(f"    v_add_u32 v7, s75, v7")
E("    s_waitcnt lgkmcnt(0)")
E("    s_barrier")
E(f"    ds_read_b128 {v(vE,4)}, v5")
E(f"    ds_read_b128 {v(vE+4,4)}, v5 offset:16")
E(f"    ds_read_b128 {v(vE+8,4)}, v7")
E(f"    s_lshl_b32 {s(sT0)}, {s(sW)}, 9")
E(f"    s_add_u32 {s(sT0)}, {s(sT0)}, {PRIV}")
E(f"    v_lshlrev_b32 v8, 2, {v(vL)}")
E(f"    v_add_u32 v8, {s(sT0)}, v8")
E(f"    v_lshlrev_b32 v9, 4, v3")
E(f"    v_add_u32 v9, {s(sT0)}, v9")
E("    s_waitcnt lgkmcnt(0)")
E(f"    v_add_f32 {v(vE)}, {v(vE)}, {v(vE+1)}\n    v_add_f32 {v(vE+2)}, {v(vE+2)}, {v(vE+3)}")
E(f"    v_add_f32 {v(vE+4)}, {v(vE+4)}, {v(vE+5)}\n    v_add_f32 {v(vE+6)}, {v(vE+6)}, {v(vE+7)}")
E(f"    v_add_f32 {v(vE+8)}, {v(vE+8)}, {v(vE+9)}\n    v_add_f32 {v(vE+10)}, {v(vE+10)}, {v(vE+11)}")
E(f"    v_add_f32 v10, {v(vE)}, {v(vE+2)}")
E(f"    v_add_f32 v11, {v(vE+4)}, {v(vE+6)}")
E(f"    v_add_f32 v12, {v(vE+8)}, {v(vE+10)}")
E(f"    v_mul_f32 v10, {f32(1/512)}, v10")
E(f"    v_mul_f32 v11, {f32(1/512)}, v11")
E(f"    v_fma_f32 v11, -v10, v10, v11")
E(f"    v_max_f32 v11, 0, v11")
E(f"    v_cvt_pk_bf16_f32 v13, v10, v11")
E(f"    v_lshlrev_b32 v10, 16, v13")
E(f"    v_and_b32 v11, 0xffff0000, v13")
E(f"    v_add_f32 v11, {f32(1e-5)}, v11")
E(f"    v_cvt_pk_bf16_f32 v13, v11, v11")
E(f"    v_and_b32 v11, 0xffff0000, v13")
E(f"    v_sqrt_f32 v11, v11")
E("    s_nop 0")
E(f"    v_cvt_pk_bf16_f32 v13, v11, v11")
E(f"    v_and_b32 v11, 0xffff0000, v13")
E(f"    v_rcp_f32 v14, v11")
E(f"    s_cmp_eq_u32 {s(sDFT)}, 1")
E("    s_cbranch_scc1 L1_epi_dft")

C0 = -2.0 * math.log2(math.e) * math.sqrt(2.0/math.pi)
C1 = C0 * 0.044715
E(f"    ds_write_b32 v8, v12")
P0 = vE
E(f"    v_mov_b32 {v(P0)}, v10")
E(f"    v_mul_f32 {v(P0+1)}, v11, v11")
E(f"    v_mul_f32 {v(P0+2)}, {f32(C0)}, v14")
E(f"    v_mul_f32 v13, v14, v14")
E(f"    v_mul_f32 v13, v13, v14")
E(f"    v_mul_f32 {v(P0+3)}, {f32(C1)}, v13")
for k in range(4):
    E(f"    v_mov_b32 {v(P0+4+k)}, {v(P0+k)}")
CSR = vE + 8
E("    s_waitcnt lgkmcnt(0)")
for p in range(2):
    for q in range(4):
        E(f"    ds_read_b128 {v(CSR+16*p+4*q,4)}, v9 offset:{128*p+32*q}")
for k in range(4):
    E(f"    v_permlane32_swap_b32 {v(P0+k)}, {v(P0+4+k)}")
E(f"    s_lshl_b32 {s(sT0)}, {s(sI)}, 2")
E(f"    s_lshl_b32 {s(sT1)}, {s(sRH)}, 1")
E(f"    s_add_u32 {s(sT0)}, {s(sT0)}, {s(sT1)}")
E(f"    s_and_b32 {s(sT1)}, {s(sCQ)}, 1")
E(f"    s_add_u32 s74, {s(sT0)}, {s(sT1)}")
E(f"    s_xor_b32 s75, s74, 1")
E(f"    s_mul_i32 s74, s74, {A_RB}")
E(f"    s_mul_i32 s75, s75, {A_RB}")
E(f"    s_lshl_b32 {s(sT0)}, {s(sC)}, 13")
E(f"    s_lshl_b32 {s(sT1)}, {s(sCQ)}, 11")
E(f"    s_add_u32 {s(sT0)}, {s(sT0)}, {s(sT1)}")
E(f"    s_add_u32 s74, s74, {s(sT0)}")
E(f"    s_add_u32 s75, s75, {s(sT0)}")
E("    s_waitcnt lgkmcnt(0)")
TMP = vE + 40
for rb in range(2):
    PM = v(P0+4*rb, 2); PK = v(P0+4*rb+2, 2)
    for half in range(2):
        O = TMP + 32 + 4*((rb*2+half) & 1)
        prs = range(4*half, 4*half+4)
        G = lambda i: v(acc(rb,0)+2*i, 2)
        U = lambda i: v(acc(rb,1)+2*i, 2)
        T = lambda i: v(TMP + 2*(i&3), 2)
        for i in prs:
            E(f"    v_pk_fma_f32 {G(i)}, {v(CSR+2*i,2)}, {PM}, {G(i)} op_sel_hi:[1,0,1] neg_lo:[0,1,0] neg_hi:[0,1,0]")
        for i in prs:
            E(f"    v_pk_mul_f32 {T(i)}, {G(i)}, {G(i)}")
        for i in prs:
            E(f"    v_pk_fma_f32 {T(i)}, {T(i)}, {PK}, {PK} op_sel:[0,1,0] op_sel_hi:[1,1,0]")
        for i in prs:
            E(f"    v_pk_mul_f32 {T(i)}, {T(i)}, {G(i)}")
        for i in prs:
            E(f"    v_exp_f32 {v(TMP+2*(i&3))}, {v(TMP+2*(i&3))}")
            E(f"    v_exp_f32 {v(TMP+2*(i&3)+1)}, {v(TMP+2*(i&3)+1)}")
        for i in prs:
            E(f"    v_pk_fma_f32 {U(i)}, {v(CSR+16+2*i,2)}, {PM}, {U(i)} op_sel_hi:[1,0,1] neg_lo:[0,1,0] neg_hi:[0,1,0]")
        for i in prs:
            E(f"    v_pk_fma_f32 {T(i)}, {T(i)}, {PM}, {PM} op_sel:[0,1,1] op_sel_hi:[1,1,1]")
        for i in prs:
            E(f"    v_rcp_f32 {v(TMP+2*(i&3))}, {v(TMP+2*(i&3))}")
            E(f"    v_rcp_f32 {v(TMP+2*(i&3)+1)}, {v(TMP+2*(i&3)+1)}")
        for i in prs:
            E(f"    v_pk_mul_f32 {G(i)}, {G(i)}, {U(i)}")
        for i in prs:
            E(f"    v_pk_mul_f32 {G(i)}, {G(i)}, {T(i)}")
        for i in prs:
            E(f"    v_cvt_pk_bf16_f32 {v(O+(i&3))}, {v(acc(rb,0)+2*i)}, {v(acc(rb,0)+2*i+1)}")
        E(f"    buffer_store_dwordx4 {v(O,4)}, {v(vSJo)}, {s(sWS,4)}, s{74+rb} offen offset:{1024*half}")
E("    s_branch L1_side")

E("L1_epi_dft:")
E(f"    ds_write_b32 v8, v10")
E(f"    ds_write_b32 v8, v14 offset:256")
E(f"    v_mov_b32 v13, v12")
MR = vE; RR = vE + 32
E("    s_waitcnt lgkmcnt(0)")
for rb in range(2):
    for q in range(4):
        E(f"    ds_read_b128 {v(MR+16*rb+4*q,4)}, v9 offset:{128*rb+32*q}")
for rb in range(2):
    for q in range(4):
        E(f"    ds_read_b128 {v(RR+16*rb+4*q,4)}, v9 offset:{256+128*rb+32*q}")
E(f"    v_permlane32_swap_b32 v12, v13")
E(f"    s_mov_b32 {s(sK)}, {f32(math.cos(math.pi/8))}")
E(f"    s_mov_b32 {s(sK+1)}, {f32(math.sin(math.pi/8))}")
E(f"    s_mov_b32 {s(sK+2)}, {f32(math.sqrt(0.5))}")
E(f"    s_mov_b32 {s(sK+3)}, {f32(math.sqrt(0.5))}")
E("    s_waitcnt lgkmcnt(8)")
for rb in range(2):
    for p in range(2):
        for i in range(8):
            A = v(acc(rb,p)+2*i, 2)
            E(f"    v_pk_fma_f32 {A}, {v(MR+16*rb+2*i,2)}, v[12:13], {A} op_sel:[0,{p},0] op_sel_hi:[1,{p},1] neg_lo:[0,1,0] neg_hi:[0,1,0]")
E("    s_waitcnt lgkmcnt(0)")
for rb in range(2):
    for p in range(2):
        for i in range(8):
            A = v(acc(rb,p)+2*i, 2)
            E(f"    v_pk_mul_f32 {A}, {A}, {v(RR+16*rb+2*i,2)}")
val = {}
for rb in range(2):
    for i in range(8):
        val[i + 8*rb] = [acc(rb,0)+2*i, acc(rb,1)+2*i]
free = [vE + 2*k for k in range(16)]
def padd(d, a, b, neg=False):
    E(f"    v_pk_add_f32 {v(d,2)}, {v(a,2)}, {v(b,2)}" + (" neg_lo:[0,1] neg_hi:[0,1]" if neg else ""))
def tw(k):
    return {1:(sK,0,0,1), 3:(sK,1,0,0), 5:(sK,1,1,0), 7:(sK,0,1,1), 2:(sK+2,0,0,0), 6:(sK+2,0,1,0)}[k]
span = 8
while span >= 1:
    todo = []
    for base in range(0, 16, 2*span):
        for k in range(span):
            todo.append((base+k, base+k+span, k * (8//span)))
    for c0 in range(0, 8, 4):
        grp = todo[c0:c0+4]
        tmp = {}
        for (a, b, k) in grp:
            t = [free.pop(), free.pop()]
            tmp[a] = t
            ar, ai = val[a]; br, bi = val[b]
            if k == 4:
                padd(t[0], ai, bi, True); padd(t[1], br, ar, True)
            else:
                padd(t[0], ar, br, True); padd(t[1], ai, bi, True)
        for (a, b, k) in grp:
            ar, ai = val[a]; br, bi = val[b]
            padd(ar, ar, br); padd(ai, ai, bi)
        for (a, b, k) in grp:
            if k in (0, 4):
                free += val[b]; val[b] = tmp[a]
            else:
                sp, sc, nc, ss = tw(k); x, y = tmp[a]; br, bi = val[b]
                ng = f" neg_lo:[0,1] neg_hi:[0,1]" if nc else ""
                E(f"    v_pk_mul_f32 {v(br,2)}, {v(x,2)}, {s(sp,2)} op_sel:[0,{sc}] op_sel_hi:[1,{sc}]{ng}")
                E(f"    v_pk_mul_f32 {v(bi,2)}, {v(y,2)}, {s(sp,2)} op_sel:[0,{sc}] op_sel_hi:[1,{sc}]{ng}")
        for (a, b, k) in grp:
            if k not in (0, 4):
                sp, sc, nc, ss = tw(k); x, y = tmp[a]; br, bi = val[b]
                E(f"    v_pk_fma_f32 {v(br,2)}, {v(y,2)}, {s(sp,2)}, {v(br,2)} op_sel:[0,{ss},0] op_sel_hi:[1,{ss},1]")
                E(f"    v_pk_fma_f32 {v(bi,2)}, {v(x,2)}, {s(sp,2)}, {v(bi,2)} op_sel:[0,{ss},0] op_sel_hi:[1,{ss},1] neg_lo:[1,0,0] neg_hi:[1,0,0]")
                free += tmp[a]
    span //= 2
E(f"    v_lshlrev_b32 v4, 12, v3")
E(f"    v_lshl_add_u32 v4, v2, 4, v4")
E(f"    s_lshl_b32 {s(sT0)}, {s(sI)}, 13")
E(f"    s_sub_u32 {s(sT1)}, {s(sC)}, 14")
E(f"    s_lshl_b32 {s(sT1)}, {s(sT1)}, 11")
E(f"    s_add_u32 {s(sT0)}, {s(sT0)}, {s(sT1)}")
E(f"    s_lshl_b32 {s(sT1)}, {s(sCQ)}, 9")
E(f"    s_add_u32 {s(sT0)}, {s(sT0)}, {s(sT1)}")
E(f"    s_lshl_b32 {s(sT1)}, {s(sRH)}, 3")
E(f"    s_add_u32 {s(sT0)}, {s(sT0)}, {s(sT1)}")
E(f"    s_add_u32 {s(sT0)}, {s(sT0)}, {Z_OFF}")
E(f"    s_and_b32 {s(sT1)}, {s(sCQ)}, 1")
E(f"    s_mul_i32 {s(sT1)}, {s(sT1)}, 0x80008000")
OB = vE + 32
def brev(x): return int(f"{x:04b}"[::-1], 2)
for r in range(16):
    re, im = val[brev(r)]
    E(f"    v_cvt_pk_bf16_f32 {v(OB+2*r)}, {v(re)}, {v(re+1)}")
    E(f"    v_cvt_pk_bf16_f32 {v(OB+2*r+1)}, {v(im)}, {v(im+1)}")
for r in range(1, 16, 2):
    E(f"    v_xor_b32 {v(OB+2*r)}, {s(sT1)}, {v(OB+2*r)}")
    E(f"    v_xor_b32 {v(OB+2*r+1)}, {s(sT1)}, {v(OB+2*r+1)}")
E("    s_nop 1")
for r in range(16):
    E(f"    v_permlane32_swap_b32 {v(OB+2*r)}, {v(OB+2*r+1)}")
for r in range(16):
    E(f"    buffer_store_dwordx2 {v(OB+2*r,2)}, v4, {s(sWS,4)}, {s(sT0)} offen")
    if r < 15: E(f"    s_add_u32 {s(sT0)}, {s(sT0)}, {16*8192}")

E("L1_side:")
E(f"    s_cmp_eq_u32 {s(sW)}, 7")
E("    s_cbranch_scc1 L1_side_ws")
for j in range(4):
    E(f"    v_lshl_or_b32 {v(vSJ+8+j)}, {v(vSJ+2*j+1)}, 16, {v(vSJ+2*j)}")
E(f"    buffer_store_dwordx4 {v(vSJ+8,4)}, {v(vSJo)}, {s(sWS,4)}, s72 offen")
E("    s_branch L1_fin")
E("L1_side_ws:")
for j in range(4):
    E(f"    buffer_store_dwordx4 {v(vSJ+4*j,4)}, {v(vSJo)}, {s(sWS,4)}, s72 offen offset:{1024*j}")
E(f"    v_lshrrev_b32 v3, 5, {v(vL)}")
E(f"    s_mov_b32 {s(sT1)}, 0x80008000")
E(f"    v_mul_lo_u32 v3, v3, {s(sT1)}")
E(f"    s_add_u32 s72, s72, {16*1024}")
for j in range(16):
    E(f"    v_xor_b32 {v(vE+j)}, v3, {v(vSJ+j)}")
for j in range(4):
    E(f"    buffer_store_dwordx4 {v(vE+4*j,4)}, {v(vSJo)}, {s(sWS,4)}, s72 offen offset:{1024*j}")
E("L1_fin:")
stamp(4)
if STAMP:
    E("    s_waitcnt vmcnt(0)")
stamp(5)
stamp_flush(0, 6, sWS, sW, vE+64)
E("L1_end:")
E("    s_endpgm")

sWS2, sX2, sO2 = 4, 8, 12
sRT, sCT, sW2, sA, sB, sBS, sU0, sU1, sR = range(16, 25)
v2ACC = 16
v2LD = 80
DEPTH = 11
E(".globl stage2_kernel\n.p2align 8\n.type stage2_kernel,@function\nstage2_kernel:")
E("    s_cmp_ge_u32 s2, 256")
E("    s_cbranch_scc1 L2_end")
stamp(0)
E("    s_load_dwordx2 s[28:29], s[0:1], 0")
E("    s_load_dwordx2 s[30:31], s[0:1], 72")
E("    s_load_dwordx2 s[32:33], s[0:1], 88")
E(f"    v_lshrrev_b32 v2, 6, v0")
E(f"    v_and_b32 v1, 63, v0")
E(f"    v_readfirstlane_b32 {s(sW2)}, v2")
E(f"    s_and_b32 {s(sRT)}, s2, 7")
E(f"    s_lshl_b32 {s(sRT)}, {s(sRT)}, 2")
E(f"    s_lshr_b32 {s(sU0)}, s2, 6")
E(f"    s_add_u32 {s(sRT)}, {s(sRT)}, {s(sU0)}")
E(f"    s_bfe_u32 {s(sCT)}, s2, 0x30003")
E(f"    s_lshr_b32 {s(sR)}, {s(sRT)}, 1")
E(f"    v_lshlrev_b32 v4, 4, v1")
E(f"    v_add_u32 v5, {A_RB}, v4")
E(f"    s_mul_i32 {s(sA)}, {s(sRT)}, {2*A_RB}")
E(f"    s_lshl_b32 {s(sU0)}, {s(sW2)}, 14")
E(f"    s_add_u32 {s(sA)}, {s(sA)}, {s(sU0)}")
E(f"    s_cmp_eq_u32 {s(sW2)}, 7")
E("    s_cbranch_scc1 L2_dft")
E(f"    v_mov_b32 v6, v4")
E(f"    v_add_u32 v7, {112*1024}, v4")
E(f"    s_mul_i32 {s(sB)}, {s(sCT)}, {2*112*1024}")
E(f"    s_add_u32 {s(sB)}, {s(sB)}, {s(sU0)}")
E(f"    s_add_u32 {s(sB)}, {s(sB)}, {WD_OFF}")
E(f"    s_mov_b32 {s(sBS)}, 1024")
E("    s_branch L2_go")
E("L2_dft:")
E(f"    v_and_b32 v2, 31, v1")
E(f"    v_lshrrev_b32 v3, 5, v1")
E(f"    s_mov_b32 {s(sBS)}, 8192")
E(f"    s_lshl_b32 {s(sU0)}, {s(sCT)}, 6")
E(f"    s_cmp_ge_u32 {s(sCT)}, 4")
E("    s_cbranch_scc1 L2_direct")
E(f"    s_sub_u32 {s(sU0)}, 256, {s(sU0)}")
E(f"    v_sub_u32 v2, {s(sU0)}, v2")
E(f"    v_lshlrev_b32 v6, 4, v2")
E(f"    v_lshl_add_u32 v6, v3, 12, v6")
E(f"    v_subrev_u32 v7, 512, v6")
E(f"    s_sub_u32 {s(sU1)}, 16, {s(sR)}")
E(f"    s_and_b32 {s(sU1)}, {s(sU1)}, 15")
E("    s_branch L2_dft2")
E("L2_direct:")
E(f"    s_sub_u32 {s(sU0)}, {s(sU0)}, 256")
E(f"    v_add_u32 v2, {s(sU0)}, v2")
E(f"    v_lshlrev_b32 v6, 4, v2")
E(f"    v_lshl_add_u32 v6, v3, 12, v6")
E(f"    v_add_u32 v7, 512, v6")
E(f"    s_mov_b32 {s(sU1)}, {s(sR)}")
E(f"    s_add_u32 {s(sA)}, {s(sA)}, {16*1024}")
E("L2_dft2:")
E(f"    s_lshl_b32 {s(sB)}, {s(sU1)}, 17")
E(f"    s_add_u32 {s(sB)}, {s(sB)}, {Z_OFF}")
E("L2_go:")
E("    s_waitcnt lgkmcnt(0)")
E(f"    s_mov_b32 {s(sWS2)}, s32\n    s_mov_b32 {s(sWS2+1)}, s33\n    s_mov_b32 {s(sWS2+2)}, {WS_SIZE}\n    s_mov_b32 {s(sWS2+3)}, 0x20000")
def ld2(j):
    B = v2LD + 16*(j % DEPTH)
    E(f"    buffer_load_dwordx4 {v(B,4)}, v4, {s(sWS2,4)}, {s(sA)} offen offset:{(j&3)*1024}")
    E(f"    buffer_load_dwordx4 {v(B+8,4)}, v6, {s(sWS2,4)}, {s(sB)} offen")
    E(f"    buffer_load_dwordx4 {v(B+4,4)}, v5, {s(sWS2,4)}, {s(sA)} offen offset:{(j&3)*1024}")
    E(f"    buffer_load_dwordx4 {v(B+12,4)}, v7, {s(sWS2,4)}, {s(sB)} offen")
    E(f"    s_add_u32 {s(sB)}, {s(sB)}, {s(sBS)}")
    if (j & 3) == 3: E(f"    s_add_u32 {s(sA)}, {s(sA)}, 4096")
for j in range(DEPTH):
    ld2(j)
stamp(1)
E(f"    s_mov_b32 {s(sX2)}, s28\n    s_mov_b32 {s(sX2+1)}, s29\n    s_mov_b32 {s(sX2+2)}, {2048*1024}\n    s_mov_b32 {s(sX2+3)}, 0x20000")
E(f"    s_mov_b32 {s(sO2)}, s30\n    s_mov_b32 {s(sO2+1)}, s31\n    s_mov_b32 {s(sO2+2)}, {2048*1024}\n    s_mov_b32 {s(sO2+3)}, 0x20000")
E(f"    v_lshrrev_b32 v2, 3, v0")
E(f"    v_and_b32 v3, 7, v0")
E(f"    v_lshlrev_b32 v8, 14, v2")
E(f"    v_lshl_add_u32 v8, v3, 4, v8")
E(f"    s_and_b32 {s(sU0)}, {s(sRT)}, 1")
E(f"    s_lshl_b32 {s(sU0)}, {s(sU0)}, 10")
E(f"    s_add_u32 {s(sU0)}, {s(sU0)}, {s(sR)}")
E(f"    s_lshl_b32 {s(sU0)}, {s(sU0)}, 10")
E(f"    s_lshl_b32 {s(sU1)}, {s(sCT)}, 7")
E(f"    s_add_u32 {s(sU0)}, {s(sU0)}, {s(sU1)}")
E(f"    v_lshlrev_b32 v9, 1, v3")
E(f"    v_and_b32 v10, 7, v2")
E(f"    v_xor_b32 v9, v9, v10")
E(f"    v_lshlrev_b32 v9, 4, v9")
E(f"    v_lshl_add_u32 v9, v2, 8, v9")
E(f"    v_and_b32 v10, 31, v1")
E(f"    v_lshrrev_b32 v11, 5, v1")
E(f"    v_and_b32 v12, 7, v1")
E(f"    v_xor_b32 v11, v11, v12")
E(f"    v_lshlrev_b32 v11, 4, v11")
E(f"    v_lshl_add_u32 v10, v10, 8, v11")
E(f"    s_lshl_b32 {s(sU1)}, {s(sW2)}, 14")
E(f"    v_add_u32 v10, {s(sU1)}, v10")
def acc2(tb, cb): return v2ACC + (tb*2+cb)*16
for j in range(16):
    B = v2LD + 16*(j % DEPTH)
    issued = min(16, j + DEPTH)
    E(f"    s_waitcnt vmcnt({4*(issued - j - 1) + (1 if j >= 5 else 0)})")
    for tb in range(2):
        for cb in range(2):
            A = v(acc2(tb, cb), 16)
            E(f"    v_mfma_f32_32x32x16_bf16 {A}, {v(B+8+4*cb,4)}, {v(B+4*tb,4)}, {A if j else 0}")
    if j + DEPTH < 16:
        ld2(j + DEPTH)
    if j == 4:
        E(f"    buffer_load_dwordx4 v[12:15], v8, {s(sX2,4)}, {s(sU0)} offen")
stamp(2)
E(f"    v_xor_b32 v11, 32, v10\n    v_xor_b32 v2, 64, v10\n    v_xor_b32 v3, 96, v10")
E("    s_nop 7")
wa = [10, 11, 2, 3]
for tb in range(2):
    for cb in range(2):
        for q in range(4):
            E(f"    ds_write_b128 v{wa[q]}, {v(acc2(tb,cb)+4*q,4)} offset:{tb*8192+cb*128}")
E(f"    v_xor_b32 v10, 16, v9")
E(f"    v_add_u32 v2, 65536, v9")
E(f"    v_add_u32 v3, 65536, v10")
E("    s_waitcnt lgkmcnt(0)")
E("    s_barrier")
stamp(3)
RD = v2LD
for w in range(8):
    a0, a1 = (9, 10) if w < 4 else (2, 3)
    E(f"    ds_read_b128 {v(RD+8*w,4)}, v{a0} offset:{(w&3)*16384}")
    E(f"    ds_read_b128 {v(RD+8*w+4,4)}, v{a1} offset:{(w&3)*16384}")
def sum8(d, a):
    for k in range(4):
        E(f"    v_pk_add_f32 {v(RD+8*d+2*k,2)}, {v(RD+8*d+2*k,2)}, {v(RD+8*a+2*k,2)}")
E("    s_waitcnt lgkmcnt(12)"); sum8(0, 1)
E("    s_waitcnt lgkmcnt(8)"); sum8(2, 3)
E("    s_waitcnt lgkmcnt(4)"); sum8(4, 5); sum8(0, 2)
E("    s_waitcnt lgkmcnt(2)"); sum8(4, 6); sum8(0, 4)
T = v2ACC
E(f"    s_mov_b32 s26, {f32(-math.log2(math.e))}")
for k in range(4):
    E(f"    v_pk_mul_f32 {v(T+2*k,2)}, {v(RD+2*k,2)}, s[26:27] op_sel_hi:[1,0]")
for k in range(8):
    E(f"    v_exp_f32 {v(T+k)}, {v(T+k)}")
E(f"    v_and_b32 v2, 7, v0")
E(f"    v_or_b32 v2, {s(sCT)}, v2")
E(f"    v_cmp_ne_u32 vcc, 0, v2")
for k in range(4):
    E(f"    v_pk_add_f32 {v(T+2*k,2)}, {v(T+2*k,2)}, 1.0 op_sel_hi:[1,0]")
for k in range(8):
    E(f"    v_rcp_f32 {v(T+k)}, {v(T+k)}")
E("    s_waitcnt vmcnt(0) lgkmcnt(0)")
E(f"    v_cndmask_b32 {v(RD+56)}, 0, {v(RD+56)}, vcc")
for k in range(4):
    E(f"    v_lshlrev_b32 {v(T+8+2*k)}, 16, v{12+k}")
    E(f"    v_and_b32 {v(T+9+2*k)}, 0xffff0000, v{12+k}")
for k in range(4):
    E(f"    v_pk_mul_f32 {v(T+2*k,2)}, {v(T+2*k,2)}, {v(RD+2*k,2)}")
for k in range(4):
    E(f"    v_pk_fma_f32 {v(T+2*k,2)}, {v(T+2*k,2)}, {v(RD+56+2*k,2)}, {v(T+8+2*k,2)}")
for k in range(4):
    E(f"    v_cvt_pk_bf16_f32 v{12+k}, {v(T+2*k)}, {v(T+2*k+1)}")
E(f"    buffer_store_dwordx4 v[12:15], v8, {s(sO2,4)}, {s(sU0)} offen")
stamp(4)
if STAMP:
    E("    s_waitcnt vmcnt(0)")
stamp(5)
stamp_flush(1, 6, sWS2, sW2, v2LD+64)
E("L2_end:")
E("    s_endpgm")

E('.section .rodata,"a"')
E(".p2align 6")
E(kd("stage1_kernel", 256, 96))
E(".p2align 6")
E(kd("stage2_kernel", 256, 96))
open(OUT, "w").write("\n".join(L) + "\n")
```

```python
import sys, math, struct

ARGS = sys.argv[1:]
def flag(n): return ("--" + n) in ARGS
def opt(n, d):
    for a in ARGS:
        if a.startswith("--" + n + "="): return int(a.split("=")[1])
    return d
STAMP = flag("stamp")
OUT = [a for a in ARGS if not a.startswith("--")][0]
STAG = opt("stag", 1)
SPLITDMA = opt("splitdma", 0)
KNAME = "recurrent_scan__spectral_fnet__geglu_ffn__prompt_kernel"

A_OFF = 0
A_RB = 112 * 1024
Z_OFF = 0x700000
FL_OFF = 0x901000
WS_SIZE = 0x90A000
STAMP_OFF = 0x1000000
SPIN = 1 << 16

L = []
def E(s=""):
    for line in s.split("\n"):
        L.append(line if line.endswith(":") or line.startswith(".") or line.startswith(";") else "    " + line.strip())
def f32(x):
    return "0x%08x" % struct.unpack("<I", struct.pack("<f", x))[0]
def v(a, n=1):
    return f"v{a}" if n == 1 else f"v[{a}:{a+n-1}]"
def s(a, n=1):
    return f"s{a}" if n == 1 else f"s[{a}:{a+n-1}]"

NST = 10
def stamp(k):
    if STAMP:
        E(f"s_mem{'' if flag('cyc') else 'real'}time s[{80+2*k}:{81+2*k}]")

HEADER = open("recurrent_scan__spectral_fnet__geglu_ffn__prompt.s.ref").read().split("; Override")[0]
E(HEADER.rstrip())
E("; @launch grid=(256,1,1) block=(512,1,1) lds=163840")
E('.amdgcn_target "amdgcn-amd-amdhsa--gfx950"')
E(".text")

Q = 8192
WSLOT = 16384; NW = 6
XRING = NW * WSLOT; XSLOT = 16384; NX = 3
MISC = XRING + NX * XSLOT
ST_OFF = MISC
CS_OFF = MISC + 4096
PRIV = MISC + 8192

sX0, sX1, sG, sU, sWS = 4, 8, 12, 16, 20
sG2, sU2 = 40, 44
(sI, sC, sW, sWinc, sWlim, sWoff, sXinc, sXlim, sXoff, sWd, sXd, sWr, sXr, sP, sRH, sCQ, sT0, sT1, sMASK, sDFT,
 sRT, sCT, sR, sT2, sT3, sSP) = range(48, 74)
sK = 74
vL = 1
vACC = 16
XE, XO, X1a, Ga, Ua, X0b, X1b, Gb, Ub = [80 + 4*k for k in range(9)]
vXB = 116
vWB = 124
vW2 = 128
vXo = 129
vWo = 131
vSUM, vSQ = 132, 134
vUT = 136
vSELG, vSELU, vCSD = 140, 144, 148
vNON = 14
vE = 80
WR = 128

def acc(rb, p):
    return vACC + (rb * 2 + p) * 16
def srd(d, lo, size):
    E(f"s_mov_b32 {s(d)}, s{lo}\ns_mov_b32 {s(d+1)}, s{lo+1}\ns_mov_b32 {s(d+2)}, {size}\ns_mov_b32 {s(d+3)}, 0x20000")

E(f".globl {KNAME}\n.p2align 8\n.type {KNAME},@function\n{KNAME}:")
E("s_cmp_ge_u32 s2, 256")
E("s_cbranch_scc1 L_end")
stamp(0)
E("s_load_dwordx16 s[32:47], s[0:1], 0")
E("s_load_dwordx2 s[28:29], s[0:1], 64")
E("s_load_dwordx2 s[26:27], s[0:1], 72")
E("s_load_dwordx2 s[24:25], s[0:1], 80")
E("s_load_dwordx2 s[30:31], s[0:1], 88")
E("s_memrealtime s[78:79]")
E(f"v_lshrrev_b32 v2, 6, v0")
E(f"v_and_b32 {v(vL)}, 63, v0")
E(f"v_readfirstlane_b32 {s(sW)}, v2")
E(f"s_and_b32 {s(sT0)}, s2, 1")
E(f"s_lshl_b32 {s(sT0)}, {s(sT0)}, 3")
E(f"s_bfe_u32 {s(sCT)}, s2, 0x30003")
E(f"s_add_u32 {s(sI)}, {s(sCT)}, {s(sT0)}")
E(f"s_bfe_u32 {s(sT0)}, s2, 0x20001")
E(f"s_lshl_b32 {s(sT0)}, {s(sT0)}, 2")
E(f"s_lshr_b32 {s(sT1)}, s2, 6")
E(f"s_add_u32 {s(sC)}, {s(sT1)}, {s(sT0)}")
E(f"s_and_b32 {s(sRT)}, s2, 7")
E(f"s_lshl_b32 {s(sRT)}, {s(sRT)}, 2")
E(f"s_add_u32 {s(sRT)}, {s(sRT)}, {s(sT1)}")
E(f"s_lshr_b32 {s(sR)}, {s(sRT)}, 1")
E(f"s_lshr_b32 {s(sRH)}, {s(sW)}, 2")
E(f"s_and_b32 {s(sCQ)}, {s(sW)}, 3")
E(f"s_cmp_ge_u32 {s(sC)}, 14")
E(f"s_cselect_b32 {s(sDFT)}, 1, 0")
E(f"s_cselect_b32 {s(sT2)}, 2, 7")
E(f"s_lshl_b32 {s(sT2)}, {s(sT2)}, 9")
E(f"s_lshl_b32 {s(sWinc)}, {s(sT2)}, 5")
E(f"s_lshl_b32 {s(sWlim)}, {s(sT2)}, 9")
E(f"v_lshrrev_b32 v2, 3, v0")
E(f"v_bfe_u32 v3, v2, 1, 3")
E(f"v_and_b32 v4, 7, {v(vL)}")
E(f"v_xor_b32 v3, v3, v4")
E(f"v_lshlrev_b32 v3, 4, v3")
E(f"s_cmp_eq_u32 {s(sDFT)}, 1")
E("s_cbranch_scc1 L_rows_dft")
E(f"v_lshlrev_b32 v2, 4, v2")
E(f"v_add_u32 v2, {s(sI)}, v2")
E(f"s_mov_b32 {s(sT1)}, {1024*1024}")
E(f"s_lshl_b32 {s(sT0)}, {s(sC)}, 8")
E("s_branch L_rows_done")
E("L_rows_dft:")
E("v_and_b32 v4, 1, v2")
E("v_bfe_u32 v5, v2, 2, 1")
E("v_lshl_add_u32 v4, v5, 1, v4")
E("v_bfe_u32 v5, v2, 1, 1")
E("v_lshl_add_u32 v4, v5, 7, v4")
E("v_bfe_u32 v5, v2, 3, 3")
E("v_lshl_add_u32 v4, v5, 8, v4")
E(f"s_lshl_b32 {s(sT1)}, {s(sI)}, 3")
E(f"v_add_u32 v2, {s(sT1)}, v4")
E(f"s_mov_b32 {s(sT1)}, {4*1024}")
E(f"s_lshl_b32 {s(sT0)}, {s(sC)}, 8")
E(f"s_sub_u32 {s(sT0)}, {s(sT0)}, {14*256 - 512}")
E("L_rows_done:")
E(f"v_lshl_add_u32 {v(vXo)}, v2, 10, v3")
E(f"v_add_u32 {v(vXo+1)}, {s(sT1)}, {v(vXo)}")
E(f"v_lshrrev_b32 v2, 4, v0")
E(f"v_and_b32 v3, 3, v2")
E(f"v_lshlrev_b32 v3, 2, v3")
E(f"v_and_b32 v4, 15, {v(vL)}")
E(f"v_xor_b32 v3, v3, v4")
E(f"v_lshlrev_b32 v3, 4, v3")
E(f"v_mul_lo_u32 v2, v2, {s(sT2)}")
E(f"v_add3_u32 {v(vWo)}, v2, v3, {s(sT0)}")
E(f"s_mov_b32 {s(sXoff)}, 0")
E(f"s_mov_b32 {s(sWoff)}, 0")
E(f"s_lshl_b32 {s(sWd)}, {s(sW)}, 10")
E("s_waitcnt lgkmcnt(0)")
srd(sX0, 32, 2048*1024)
E(f"s_cmp_eq_u32 {s(sDFT)}, 1")
E(f"s_cselect_b32 {s(sG)}, s38, s44\ns_cselect_b32 {s(sG+1)}, s39, s45")
E(f"s_cselect_b32 {s(sU)}, s40, s46\ns_cselect_b32 {s(sU+1)}, s41, s47")
E(f"s_mov_b32 {s(sG+2)}, {s(sWlim)}\ns_mov_b32 {s(sG+3)}, 0x20000")
E(f"s_mov_b32 {s(sU+2)}, {s(sWlim)}\ns_mov_b32 {s(sU+3)}, 0x20000")

def EL(l):
    for x in l: E(x)
class Stream:
    def __init__(self):
        seq = []
        for n in range(16):
            if n >= 1 and (n & 1) == 1 and False: pass
        order = ["W0", "X0", "W1", "W2", "X1", "W3", "W4", "X2", "W5"]
        for P in range(3, 8): order += [f"W{2*P}", f"X{P}", f"W{2*P+1}"]
        order += ["T4", "Y2", "T5", "T0", "Y0", "T1", "T2", "Y1", "T3"]
        self.todo = [(o, b) for o in order for b in range(2)]
        self.issued = []
        self.bar = -1
    def free_after(self, o):
        k, n = o[0], int(o[1:])
        if k == "W": return n - 6
        if k == "X": return 2*(n-3) + 1
        if k == "T": return {4:10, 5:11, 0:12, 1:13, 2:14, 3:15}[n]
        if k == "Y": return {2:11, 0:13, 1:15}[n]
    def next(self):
        if not self.todo: return None
        o, b = self.todo[0]
        if self.free_after(o) > self.bar: return None
        self.todo.pop(0); self.issued.append(o)
        k, n = o[0], int(o[1:])
        pre = []
        if k == "W":
            q = 2*(n % 6) + b
            ld = f"buffer_load_dwordx4 {v(vWo)}, {s(sU if b else sG,4)}, {s(sWoff)} offen lds"
            post = [f"s_add_u32 {s(sWoff)}, {s(sWoff)}, {s(sWinc)}"] if b else []
        elif k == "X":
            q = 12 + 2*(n % 3) + b
            ld = f"buffer_load_dwordx4 {v(vXo+b)}, {s(sX0,4)}, {s(sXoff)} offen lds"
            post = [f"s_add_u32 {s(sXoff)}, {s(sXoff)}, 128"] if b else []
        else:
            g = n if k == "T" else 6 + n
            q = 2*g + b
            if b == 0: pre = [f"s_mul_i32 {s(sXoff)}, {s(sXinc)}, {g}"]
            ld = f"buffer_load_dwordx4 {v(vW2)}, {s(sU2 if b else sG2,4)}, {s(sXoff)} offen lds"
            post = []
        m0 = f"s_add_u32 m0, {s(sWd)}, {q*Q}" if q else f"s_mov_b32 m0, {s(sWd)}"
        return pre + [m0], ld, post
    def wait(self, need):
        last = max(i for i, o in enumerate(self.issued) if o in need)
        for o in need: assert self.issued.count(o) == 2, (o, self.issued)
        return len(self.issued) - 1 - last
    def copy(self):
        c = Stream(); c.todo = list(self.todo); c.issued = list(self.issued); c.bar = self.bar; return c
ST = Stream()
def dma_now(st, filler="s_nop 0"):
    d = st.next()
    if d is None: return [filler] if filler != "s_nop 0" else []
    return d[0] + [filler, d[1]] + d[2]

E("s_cmp_lg_u32 s2, 0")
E("s_cbranch_scc1 L_nononce")
E(f"s_cmp_lg_u32 {s(sW)}, 0")
E("s_cbranch_scc1 L_nononce")
E("s_or_b32 s78, s78, 1")
E("v_mov_b32 v2, s78\nv_mov_b32 v3, s79\nv_mov_b32 v4, 0")
E("s_mov_b64 exec, 1")
E("global_store_dwordx2 v4, v[2:3], s[24:25] sc1")
E("s_mov_b64 exec, -1")
E("L_nononce:")
NPRO = opt("npro", 8)
for _ in range(NPRO): EL(dma_now(ST))
srd(sWS, 30, WS_SIZE)
E(f"s_cmp_eq_u32 {s(sW)}, 7")
E("s_cbranch_scc1 L_reconf7")
E(f"v_lshrrev_b32 v2, 3, {v(vL)}")
E(f"v_bfe_u32 v3, {v(vL)}, 4, 1")
E(f"v_lshlrev_b32 v3, 2, v3")
E(f"v_and_b32 v4, 7, {v(vL)}")
E(f"v_xor_b32 v3, v3, v4")
E(f"v_lshlrev_b32 v3, 4, v3")
E(f"v_lshl_add_u32 v2, v2, 10, v3")
E(f"s_lshl_b32 {s(sT0)}, {s(sW)}, 18")
E(f"s_lshl_b32 {s(sT1)}, {s(sCT)}, 7")
E(f"s_add_u32 {s(sT0)}, {s(sT0)}, {s(sT1)}")
srd(sG2, 28, 1792*1024)
E(f"s_add_u32 {s(sU2)}, s28, {Q}\ns_addc_u32 {s(sU2+1)}, s29, 0\ns_mov_b32 {s(sU2+2)}, {1792*1024-Q}")
E(f"s_mov_b32 {s(sXinc)}, {2*Q}")
E("s_branch L_reconf_c")
E("L_reconf7:")
E(f"v_lshrrev_b32 v2, 4, {v(vL)}")
E(f"v_lshlrev_b32 v3, 2, v2")
E(f"v_and_b32 v4, 15, {v(vL)}")
E(f"v_xor_b32 v3, v3, v4")
E(f"v_lshlrev_b32 v3, 4, v3")
E(f"v_lshl_add_u32 v2, v2, 16, v3")
E(f"s_and_b32 {s(sT0)}, {s(sRT)}, 1")
E(f"s_lshl_b32 {s(sT0)}, {s(sT0)}, 10")
E(f"s_add_u32 {s(sT0)}, {s(sT0)}, {s(sR)}")
E(f"s_lshl_b32 {s(sT0)}, {s(sT0)}, 12")
srd(sG2, 34, 2048*4096)
E(f"s_mov_b32 {s(sU2)}, s36\ns_mov_b32 {s(sU2+1)}, s37\ns_mov_b32 {s(sU2+2)}, {2048*4096}")
E(f"s_mov_b32 {s(sXinc)}, 262144")
E("L_reconf_c:")
E(f"s_mov_b32 {s(sU2+3)}, 0x20000")
E(f"v_add_u32 {v(vW2)}, {s(sT0)}, v2")
E(f"s_lshr_b32 {s(sT0)}, {s(sCQ)}, 1")
E(f"s_xor_b32 {s(sT0)}, {s(sT0)}, {s(sRH)}")
E(f"v_lshrrev_b32 v2, 5, {v(vL)}")
E(f"v_bfe_u32 v3, {v(vL)}, 2, 2")
E(f"v_lshlrev_b32 v4, 11, v2")
E(f"v_lshl_add_u32 v4, v3, 8, v4")
E(f"v_xor_b32 v3, {s(sCQ)}, v3")
E(f"v_lshl_add_u32 v4, v3, 6, v4")
E(f"v_bfe_u32 v3, {v(vL)}, 4, 1")
E(f"v_lshl_add_u32 v4, v3, 5, v4")
E(f"v_and_b32 v5, 3, {v(vL)}")
E(f"v_lshl_add_u32 v4, v5, 3, v4")
E(f"s_lshl_b32 {s(sT1)}, {s(sT0)}, 12")
E(f"v_add_u32 {v(vWB)}, {s(sT1)}, v4")
E(f"v_xor_b32 {v(vWB+1)}, 4096, {v(vWB)}")
E(f"v_add_u32 {v(vWB+2)}, {3*WSLOT}, {v(vWB)}")
E(f"v_add_u32 {v(vWB+3)}, {3*WSLOT}, {v(vWB+1)}")
E(f"v_and_b32 v5, 15, {v(vL)}")
E(f"v_lshlrev_b32 v3, 2, v3")
E(f"v_sub_u32 v5, v5, v3")
E(f"v_mov_b32 v6, 0x3f803f80")
E(f"v_cmp_eq_u32 vcc, 0, v5")
E(f"v_cmp_eq_u32 s[78:79], 8, v5")
E(f"v_and_b32 v3, 31, {v(vL)}")
E(f"v_bfe_u32 v4, {v(vL)}, 1, 3")
for k in range(4):
    E(f"v_cndmask_b32 {v(vSELG+k)}, 0, v6, vcc")
    E(f"v_cndmask_b32 {v(vSELU+k)}, 0, v6, s[78:79]")
E(f"v_xor_b32 v4, v4, v2")
E(f"v_lshlrev_b32 v4, 4, v4")
E(f"v_lshl_add_u32 v4, v3, 7, v4")
E(f"s_lshl_b32 {s(sT0)}, {s(sT0)}, 5")
E(f"v_xor_b32 v4, {s(sT0)}, v4")
E(f"s_and_b32 {s(sT0)}, {s(sCQ)}, 1")
E(f"s_lshl_b32 {s(sT1)}, {s(sRH)}, 1")
E(f"s_add_u32 {s(sT0)}, {s(sT0)}, {s(sT1)}")
E(f"s_lshl_b32 {s(sT0)}, {s(sT0)}, 12")
E(f"s_add_u32 {s(sT0)}, {s(sT0)}, {XRING}")
E(f"v_add_u32 v4, {s(sT0)}, v4")
for q in range(4):
    E(f"v_xor_b32 {v(vXB+2*q)}, {q*32}, v4")
    E(f"v_xor_b32 {v(vXB+2*q+1)}, {q*32+4096}, v4")
for r in list(range(vACC, vACC+64)) + list(range(vSUM, vSUM+4)) + list(range(vCSD, vCSD+4)):
    E(f"v_mov_b32 {v(r)}, 0")
E(f"s_mov_b32 {s(sMASK)}, 0xffff0000")

def reads(F, it, sl):
    X0, X1, G, U = F
    q = 2*(it & 1) + sl
    xo = ((it >> 1) % 3) * XSLOT
    ws = it % 6
    wa = v(vWB + sl + 2*(ws // 3)); wo = (ws % 3) * WSLOT
    return [f"ds_read_b128 {v(X0,4)}, {v(vXB+2*q)} offset:{xo}",
            f"ds_read_b64_tr_b16 {v(G,2)}, {wa} offset:{wo}",
            f"ds_read_b64_tr_b16 {v(G+2,2)}, {wa} offset:{wo+1024}",
            f"ds_read_b64_tr_b16 {v(U,2)}, {wa} offset:{wo+8192}",
            f"ds_read_b64_tr_b16 {v(U+2,2)}, {wa} offset:{wo+9216}",
            f"ds_read_b128 {v(X1,4)}, {v(vXB+2*q+1)} offset:{xo}"]
def stats(X):
    o = []
    for r in range(4):
        t = vUT + 2*(r & 1)
        o += [f"v_lshlrev_b32 {v(t)}, 16, {v(X+r)}", f"v_and_b32 {v(t+1)}, {s(sMASK)}, {v(X+r)}",
              f"v_add_f32 {v(vSUM)}, {v(vSUM)}, {v(t)}", f"v_add_f32 {v(vSUM+1)}, {v(vSUM+1)}, {v(t+1)}",
              f"v_fmac_f32 {v(vSQ)}, {v(t)}, {v(t)}", f"v_fmac_f32 {v(vSQ+1)}, {v(t+1)}, {v(t+1)}"]
    return o
def mf(F, dft, k):
    X0, X1, G, U = F
    rb, p = k >> 1, k & 1
    X = v(X1 if rb else X0, 4); W = v(U if p else G, 4); A = v(acc(rb, p), 16)
    return f"v_mfma_f32_32x32x16_bf16 {A}, {X}, {W}, {A}" if dft else f"v_mfma_f32_32x32x16_bf16 {A}, {W}, {X}, {A}"
S0e = (XE, X1a, Ga, Ua); S0o = (XO, X1a, Ga, Ua); S1 = (X0b, X1b, Gb, Ub)

E(f"s_waitcnt vmcnt({ST.wait(['W0', 'X0'])})")
E("s_barrier")
stamp(2)
EL(reads(S0e, 0, 0))
E(f"s_cmp_eq_u32 {s(sDFT)}, 1")
E("s_cbranch_scc1 L_loop_dft")
LOOP_START = len(L)
ST0 = ST
for dft in (0, 1):
    E("L_loop_dft:" if dft else "L_loop_ffn:")
    ST = ST0.copy()
    for it in range(16):
        odd = it & 1
        cur = S0o if odd else S0e
        nxt = S0e if odd else S0o
        st = stats(cur[0]) if not flag("nostat") else ["s_nop 0"]*24
        rd = reads(S1, it, 1)
        E("s_waitcnt lgkmcnt(3)")
        E(mf(cur, dft, 0)); EL(rd[0:3]); EL(st[0:3])
        E("s_waitcnt lgkmcnt(4)")
        E(mf(cur, dft, 1)); EL(rd[3:6]); EL(st[3:6])
        E("s_waitcnt lgkmcnt(6)")
        E(mf(cur, dft, 2)); EL(st[6:8]); EL(dma_now(ST, st[8]))
        E(mf(cur, dft, 3)); EL(st[9:11]); EL(dma_now(ST, st[11]))
        E("s_waitcnt lgkmcnt(3)")
        E(mf(S1, dft, 0))
        if it < 15:
            rd = reads(nxt, it + 1, 0)
            need = [f"W{it+1}"] + ([f"X{(it+1)//2}"] if odd else [])
            E(f"s_waitcnt vmcnt({ST.wait(need)}) lgkmcnt(0)")
        else:
            rd = [""]*6
            E("s_waitcnt lgkmcnt(0)")
        E("s_barrier")
        ST.bar = it
        EL(rd[0:3])
        E(mf(S1, dft, 1)); EL(rd[3:6]); EL(st[12:15])
        E(mf(S1, dft, 2)); EL(st[15:18]); EL(dma_now(ST, st[18]))
        E(mf(S1, dft, 3)); EL(st[19:22]); EL(dma_now(ST, st[22]))
        if not flag("nosel"): E(f"v_mfma_f32_16x16x32_bf16 {v(vCSD,4)}, {v(vSELG,4)}, {v(Gb,4)}, {v(vCSD,4)}")
        E(st[23])
        if not flag("nosel"): E(f"v_mfma_f32_16x16x32_bf16 {v(vCSD,4)}, {v(vSELU,4)}, {v(Ub,4)}, {v(vCSD,4)}")
    while ST.todo: EL(dma_now(ST))
    if not dft: E("s_branch L_epi")

def _keep(x):
    if flag("nodma") and "buffer_load" in x: return False
    if flag("nolds") and "ds_read" in x: return False
    if flag("nomfma") and "v_mfma" in x: return False
    if flag("nobar") and "s_barrier" in x: return False
    if flag("notr") and "ds_read_b64_tr" in x: return False
    if flag("nox") and "ds_read_b128" in x: return False
    return True
L[LOOP_START:] = [x for x in L[LOOP_START:] if _keep(x)]
E("L_epi:")
stamp(3)
E(f"v_mov_b32 v4, 0")
E(f"global_load_dwordx2 {v(vNON,2)}, v4, s[24:25] sc1")
E(f"v_and_b32 v2, 31, {v(vL)}")
E(f"v_lshrrev_b32 v3, 5, {v(vL)}")
E(f"v_add_f32 {v(vSUM)}, {v(vSUM)}, {v(vSUM+1)}")
E(f"v_add_f32 {v(vSQ)}, {v(vSQ)}, {v(vSQ+1)}")
E(f"s_and_b32 {s(sT0)}, {s(sCQ)}, 1")
E(f"s_lshl_b32 {s(sT1)}, {s(sRH)}, 1")
E(f"s_add_u32 {s(sT0)}, {s(sT0)}, {s(sT1)}")
E(f"s_lshl_b32 {s(sT2)}, {s(sT0)}, 10")
E(f"s_add_u32 {s(sT2)}, {s(sT2)}, {ST_OFF}")
E(f"s_and_b32 {s(sT1)}, {s(sCQ)}, 2")
E(f"s_lshl_b32 {s(sT1)}, {s(sT1)}, 2")
E(f"s_add_u32 {s(sT1)}, {s(sT1)}, {s(sT2)}")
E(f"v_lshlrev_b32 v4, 5, v2")
E(f"v_lshl_add_u32 v5, v3, 2, v4")
E(f"v_add_u32 v5, {s(sT1)}, v5")
E(f"ds_write2_b32 v5, {v(vSUM)}, {v(vSQ)} offset0:0 offset1:4")
E(f"v_lshlrev_b32 v6, 2, v0")
E(f"v_add_u32 v6, {CS_OFF}, v6")
E(f"ds_write_b32 v6, {v(vCSD)}")
E(f"v_xor_b32 v7, 1024, v6")
E(f"v_lshlrev_b32 v5, 10, v3")
E(f"v_xor_b32 v5, {s(sT2)}, v5")
E(f"v_add_u32 v5, v5, v4")
E(f"v_mov_b32 v12, {v(vCSD)}")
E("s_waitcnt lgkmcnt(0)")
E("s_barrier")
E(f"ds_read_b128 {v(vE,4)}, v5")
E(f"ds_read_b128 {v(vE+4,4)}, v5 offset:16")
E(f"ds_read_b32 {v(vE+8)}, v7")
E(f"s_lshl_b32 {s(sT0)}, {s(sW)}, 9")
E(f"s_add_u32 {s(sT0)}, {s(sT0)}, {PRIV}")
E(f"v_lshlrev_b32 v8, 2, {v(vL)}")
E(f"v_add_u32 v8, {s(sT0)}, v8")
E(f"v_lshlrev_b32 v9, 4, v3")
E(f"v_add_u32 v9, {s(sT0)}, v9")
E("s_waitcnt lgkmcnt(0)")
E(f"v_add_f32 {v(vE)}, {v(vE)}, {v(vE+1)}\nv_add_f32 {v(vE+2)}, {v(vE+2)}, {v(vE+3)}")
E(f"v_add_f32 {v(vE+4)}, {v(vE+4)}, {v(vE+5)}\nv_add_f32 {v(vE+6)}, {v(vE+6)}, {v(vE+7)}")
E(f"v_add_f32 v10, {v(vE)}, {v(vE+2)}")
E(f"v_add_f32 v11, {v(vE+4)}, {v(vE+6)}")
E(f"v_add_f32 v12, v12, {v(vE+8)}")
E(f"v_mul_f32 v10, {f32(1/512)}, v10")
E(f"v_mul_f32 v11, {f32(1/512)}, v11")
E(f"v_fma_f32 v11, -v10, v10, v11")
E(f"v_max_f32 v11, 0, v11")
E(f"v_cvt_pk_bf16_f32 v13, v10, v11")
E(f"v_lshlrev_b32 v10, 16, v13")
E(f"v_and_b32 v11, {s(sMASK)}, v13")
E(f"v_add_f32 v11, {f32(1e-5)}, v11")
E(f"v_cvt_pk_bf16_f32 v13, v11, v11")
E(f"v_and_b32 v11, {s(sMASK)}, v13")
E(f"v_sqrt_f32 v11, v11")
E("s_nop 0")
E(f"v_cvt_pk_bf16_f32 v13, v11, v11")
E(f"v_and_b32 v11, {s(sMASK)}, v13")
E(f"v_rcp_f32 v7, v11")
E(f"v_lshlrev_b32 v6, 4, {v(vL)}")
E(f"s_cmp_eq_u32 {s(sDFT)}, 1")
E("s_cbranch_scc1 L_epi_dft")

C0 = -2.0 * math.log2(math.e) * math.sqrt(2.0/math.pi)
C1 = C0 * 0.044715
E(f"ds_write_b32 v8, v12")
P0 = vE
E(f"v_mov_b32 {v(P0)}, v10")
E(f"v_mul_f32 {v(P0+1)}, v11, v11")
E(f"v_mul_f32 {v(P0+2)}, {f32(C0)}, v7")
E(f"v_mul_f32 v13, v7, v7")
E(f"v_mul_f32 v13, v13, v7")
E(f"v_mul_f32 {v(P0+3)}, {f32(C1)}, v13")
for k in range(4):
    E(f"v_mov_b32 {v(P0+4+k)}, {v(P0+k)}")
CSR = vE + 8
E("s_waitcnt lgkmcnt(0)")
for p in range(2):
    for q in range(4):
        E(f"ds_read_b128 {v(CSR+16*p+4*q,4)}, v9 offset:{128*p+32*q}")
for k in range(4):
    E(f"v_permlane32_swap_b32 {v(P0+k)}, {v(P0+4+k)}")
E(f"s_lshl_b32 {s(sT0)}, {s(sI)}, 2")
E(f"s_lshl_b32 {s(sT1)}, {s(sRH)}, 1")
E(f"s_add_u32 {s(sT0)}, {s(sT0)}, {s(sT1)}")
E(f"s_and_b32 {s(sT1)}, {s(sCQ)}, 1")
E(f"s_add_u32 {s(sT2)}, {s(sT0)}, {s(sT1)}")
E(f"s_xor_b32 {s(sT3)}, {s(sT2)}, 1")
E(f"s_mul_i32 {s(sT2)}, {s(sT2)}, {A_RB}")
E(f"s_mul_i32 {s(sT3)}, {s(sT3)}, {A_RB}")
E(f"s_lshl_b32 {s(sT0)}, {s(sC)}, 13")
E(f"s_lshl_b32 {s(sT1)}, {s(sCQ)}, 11")
E(f"s_add_u32 {s(sT0)}, {s(sT0)}, {s(sT1)}")
E(f"s_add_u32 {s(sT2)}, {s(sT2)}, {s(sT0)}")
E(f"s_add_u32 {s(sT3)}, {s(sT3)}, {s(sT0)}")
E("s_waitcnt lgkmcnt(0)")
TMP = 136
for rb in range(2):
    PM = v(P0+4*rb, 2); PK = v(P0+4*rb+2, 2)
    for half in range(2):
        O = TMP + 8 + 4*((rb*2+half) & 1)
        prs = range(4*half, 4*half+4)
        G = lambda i: v(acc(rb,0)+2*i, 2)
        U = lambda i: v(acc(rb,1)+2*i, 2)
        T = lambda i: v(TMP + 2*(i&3), 2)
        for i in prs:
            E(f"v_pk_fma_f32 {G(i)}, {v(CSR+2*i,2)}, {PM}, {G(i)} op_sel_hi:[1,0,1] neg_lo:[0,1,0] neg_hi:[0,1,0]")
        for i in prs:
            E(f"v_pk_mul_f32 {T(i)}, {G(i)}, {G(i)}")
        for i in prs:
            E(f"v_pk_fma_f32 {T(i)}, {T(i)}, {PK}, {PK} op_sel:[0,1,0] op_sel_hi:[1,1,0]")
        for i in prs:
            E(f"v_pk_mul_f32 {T(i)}, {T(i)}, {G(i)}")
        for i in prs:
            E(f"v_exp_f32 {v(TMP+2*(i&3))}, {v(TMP+2*(i&3))}")
            E(f"v_exp_f32 {v(TMP+2*(i&3)+1)}, {v(TMP+2*(i&3)+1)}")
        for i in prs:
            E(f"v_pk_fma_f32 {U(i)}, {v(CSR+16+2*i,2)}, {PM}, {U(i)} op_sel_hi:[1,0,1] neg_lo:[0,1,0] neg_hi:[0,1,0]")
        for i in prs:
            E(f"v_pk_fma_f32 {T(i)}, {T(i)}, {PM}, {PM} op_sel:[0,1,1] op_sel_hi:[1,1,1]")
        for i in prs:
            E(f"v_rcp_f32 {v(TMP+2*(i&3))}, {v(TMP+2*(i&3))}")
            E(f"v_rcp_f32 {v(TMP+2*(i&3)+1)}, {v(TMP+2*(i&3)+1)}")
        for i in prs:
            E(f"v_pk_mul_f32 {G(i)}, {G(i)}, {U(i)}")
        for i in prs:
            E(f"v_pk_mul_f32 {G(i)}, {G(i)}, {T(i)}")
        for i in prs:
            E(f"v_cvt_pk_bf16_f32 {v(O+(i&3))}, {v(acc(rb,0)+2*i)}, {v(acc(rb,0)+2*i+1)}")
        E(f"buffer_store_dwordx4 {v(O,4)}, v6, {s(sWS,4)}, {s(sT2+rb)} offen offset:{1024*half} sc1")
stamp(1)
E("s_waitcnt vmcnt(4)")
E("s_branch L_p2")

E("L_epi_dft:")
E(f"ds_write_b32 v8, v10")
E(f"ds_write_b32 v8, v7 offset:256")
E(f"v_mov_b32 v13, v12")
MR = 80; RR = 136
E("s_waitcnt lgkmcnt(0)")
for rb in range(2):
    for q in range(4):
        E(f"ds_read_b128 {v(MR+16*rb+4*q,4)}, v9 offset:{128*rb+32*q}")
for rb in range(2):
    for q in range(4):
        E(f"ds_read_b128 {v(RR+16*rb+4*q,4)}, v9 offset:{256+128*rb+32*q}")
E(f"v_permlane32_swap_b32 v12, v13")
E(f"s_mov_b32 {s(sK)}, {f32(math.cos(math.pi/8))}")
E(f"s_mov_b32 {s(sK+1)}, {f32(math.sin(math.pi/8))}")
E(f"s_mov_b32 {s(sK+2)}, {f32(math.sqrt(0.5))}")
E(f"s_mov_b32 {s(sK+3)}, {f32(math.sqrt(0.5))}")
E("s_waitcnt lgkmcnt(8)")
for rb in range(2):
    for p in range(2):
        for i in range(8):
            A = v(acc(rb,p)+2*i, 2)
            E(f"v_pk_fma_f32 {A}, {v(MR+16*rb+2*i,2)}, v[12:13], {A} op_sel:[0,{p},0] op_sel_hi:[1,{p},1] neg_lo:[0,1,0] neg_hi:[0,1,0]")
E("s_waitcnt lgkmcnt(0)")
for rb in range(2):
    for p in range(2):
        for i in range(8):
            A = v(acc(rb,p)+2*i, 2)
            E(f"v_pk_mul_f32 {A}, {A}, {v(RR+16*rb+2*i,2)}")
val = {}
for rb in range(2):
    for i in range(8):
        val[i + 8*rb] = [acc(rb,0)+2*i, acc(rb,1)+2*i]
free = [MR + 2*k for k in range(16)]
def padd(d, a, b, neg=False):
    E(f"v_pk_add_f32 {v(d,2)}, {v(a,2)}, {v(b,2)}" + (" neg_lo:[0,1] neg_hi:[0,1]" if neg else ""))
def tw(k):
    return {1:(sK,0,0,1), 3:(sK,1,0,0), 5:(sK,1,1,0), 7:(sK,0,1,1), 2:(sK+2,0,0,0), 6:(sK+2,0,1,0)}[k]
span = 8
while span >= 1:
    todo = []
    for base in range(0, 16, 2*span):
        for k in range(span):
            todo.append((base+k, base+k+span, k * (8//span)))
    for c0 in range(0, 8, 4):
        grp = todo[c0:c0+4]
        tmp = {}
        for (a, b, k) in grp:
            t = [free.pop(), free.pop()]
            tmp[a] = t
            ar, ai = val[a]; br, bi = val[b]
            if k == 4:
                padd(t[0], ai, bi, True); padd(t[1], br, ar, True)
            else:
                padd(t[0], ar, br, True); padd(t[1], ai, bi, True)
        for (a, b, k) in grp:
            ar, ai = val[a]; br, bi = val[b]
            padd(ar, ar, br); padd(ai, ai, bi)
        for (a, b, k) in grp:
            if k in (0, 4):
                free += val[b]; val[b] = tmp[a]
            else:
                sp, sc, nc, ss = tw(k); x, y = tmp[a]; br, bi = val[b]
                ng = f" neg_lo:[0,1] neg_hi:[0,1]" if nc else ""
                E(f"v_pk_mul_f32 {v(br,2)}, {v(x,2)}, {s(sp,2)} op_sel:[0,{sc}] op_sel_hi:[1,{sc}]{ng}")
                E(f"v_pk_mul_f32 {v(bi,2)}, {v(y,2)}, {s(sp,2)} op_sel:[0,{sc}] op_sel_hi:[1,{sc}]{ng}")
        for (a, b, k) in grp:
            if k not in (0, 4):
                sp, sc, nc, ss = tw(k); x, y = tmp[a]; br, bi = val[b]
                E(f"v_pk_fma_f32 {v(br,2)}, {v(y,2)}, {s(sp,2)}, {v(br,2)} op_sel:[0,{ss},0] op_sel_hi:[1,{ss},1]")
                E(f"v_pk_fma_f32 {v(bi,2)}, {v(x,2)}, {s(sp,2)}, {v(bi,2)} op_sel:[0,{ss},0] op_sel_hi:[1,{ss},1] neg_lo:[1,0,0] neg_hi:[1,0,0]")
                free += tmp[a]
    span //= 2
E(f"v_lshlrev_b32 v4, 17, v3")
E(f"v_lshl_add_u32 v4, v2, 4, v4")
E(f"s_lshl_b32 {s(sT0)}, {s(sI)}, 13")
E(f"s_sub_u32 {s(sT1)}, {s(sC)}, 14")
E(f"s_lshl_b32 {s(sT1)}, {s(sT1)}, 11")
E(f"s_add_u32 {s(sT0)}, {s(sT0)}, {s(sT1)}")
E(f"s_lshl_b32 {s(sT1)}, {s(sCQ)}, 9")
E(f"s_add_u32 {s(sT0)}, {s(sT0)}, {s(sT1)}")
E(f"s_lshl_b32 {s(sT1)}, {s(sRH)}, 12")
E(f"s_add_u32 {s(sT0)}, {s(sT0)}, {s(sT1)}")
E(f"s_add_u32 {s(sT0)}, {s(sT0)}, {Z_OFF}")
E(f"s_and_b32 {s(sT1)}, {s(sCQ)}, 1")
E(f"s_mul_i32 {s(sT1)}, {s(sT1)}, 0x80008000")
OB = RR
def brev(x): return int(f"{x:04b}"[::-1], 2)
for r in range(16):
    re, im = val[brev(r)]
    o = OB + 4*(r >> 1) + (r & 1)
    E(f"v_cvt_pk_bf16_f32 {v(o)}, {v(re)}, {v(re+1)}")
    E(f"v_cvt_pk_bf16_f32 {v(o+2)}, {v(im)}, {v(im+1)}")
for k in range(8):
    E(f"v_xor_b32 {v(OB+4*k+1)}, {s(sT1)}, {v(OB+4*k+1)}")
    E(f"v_xor_b32 {v(OB+4*k+3)}, {s(sT1)}, {v(OB+4*k+3)}")
E("s_nop 1")
for k in range(8):
    E(f"v_permlane32_swap_b32 {v(OB+4*k)}, {v(OB+4*k+1)}")
    E(f"v_permlane32_swap_b32 {v(OB+4*k+2)}, {v(OB+4*k+3)}")
for k in range(8):
    E(f"buffer_store_dwordx4 {v(OB+4*k,4)}, v4, {s(sWS,4)}, {s(sT0)} offen sc1")
    if k < 7: E(f"s_add_u32 {s(sT0)}, {s(sT0)}, {2*16*8192}")
stamp(1)
E("s_waitcnt vmcnt(8)")

E("L_p2:")
stamp(4)
HB = 80
ND = 6
vFO = 5
E(f"v_mov_b32 v13, {v(vW2)}")
if flag("bar2"): E("s_barrier")
E(f"s_lshl_b32 {s(sT2)}, {s(sI)}, 4")
E(f"s_add_u32 {s(sT2)}, {s(sT2)}, {s(sC)}")
E(f"s_lshl_b32 {s(sT2)}, {s(sT2)}, 7")
E(f"s_add_u32 {s(sT2)}, {s(sT2)}, {FL_OFF}")

def nonce_and_flag(nyoung, tag):
    E(f"v_readfirstlane_b32 {s(sT0)}, {v(vNON)}")
    E(f"s_mov_b32 {s(sSP)}, 0")
    E(f"s_cmp_lg_u32 {s(sT0)}, 0")
    E(f"s_cbranch_scc1 L_havenon{tag}")
    E(f"L_spinnon{tag}:")
    E(f"v_mov_b32 v4, 0")
    E(f"global_load_dwordx2 {v(vNON,2)}, v4, s[24:25] sc1")
    E(f"s_add_u32 {s(sSP)}, {s(sSP)}, 1")
    E("s_waitcnt vmcnt(0)")
    E(f"v_readfirstlane_b32 {s(sT0)}, {v(vNON)}")
    E(f"s_cmp_ge_u32 {s(sSP)}, {SPIN}")
    E(f"s_cbranch_scc1 L_havenon{tag}")
    E(f"s_cmp_eq_u32 {s(sT0)}, 0")
    E(f"s_cbranch_scc1 L_spinnon{tag}")
    E(f"L_havenon{tag}:")
    E(f"v_mov_b32 v4, 0")
    E(f"s_waitcnt vmcnt({nyoung})")
    E("s_barrier")
    if tag == "f":
        E(f"s_cmp_lg_u32 {s(sW)}, 0")
        E(f"s_cbranch_scc1 L_noflag")
        E("s_mov_b64 exec, 1")
        E(f"buffer_store_dwordx2 {v(vNON,2)}, v4, {s(sWS,4)}, {s(sT2)} offen sc1")
        E("s_mov_b64 exec, -1")
        E("L_noflag:")
def poll(tag):
    E(f"s_mov_b32 {s(sSP)}, 0")
    E(f"L_poll{tag}:")
    E(f"buffer_load_dwordx2 {v(HB,2)}, v{vFO}, {s(sWS,4)}, 0 offen sc1")
    E(f"s_add_u32 {s(sSP)}, {s(sSP)}, 1")
    E("s_waitcnt vmcnt(0)")
    E(f"v_cmp_ne_u64 vcc, {v(HB,2)}, {v(vNON,2)}")
    E(f"s_cmp_ge_u32 {s(sSP)}, {SPIN}")
    E(f"s_cbranch_scc1 L_polled{tag}")
    E(f"s_cbranch_vccz L_polled{tag}")
    E(f"s_sleep {opt('sleep', 4)}")
    E(f"s_branch L_poll{tag}")
    E(f"L_polled{tag}:")
def acc2(tb, cb): return vACC + (tb*2+cb)*16
R2A = opt("r2a", 6)
def r2dma(q0, n, first):
    if q0 == 0: E(f"s_mul_i32 {s(sWoff)}, {s(sXinc)}, {first}")
    for q in range(q0, n):
        E(f"s_add_u32 m0, {s(sWd)}, {q*Q}")
        E("s_nop 0")
        E(f"buffer_load_dwordx4 v13, {s(sU2 if q&1 else sG2,4)}, {s(sWoff)} offen lds")
        if q & 1: E(f"s_add_u32 {s(sWoff)}, {s(sWoff)}, {s(sXinc)}")
def final_addrs():
    srd(sX0, 32, 2048*1024)
    srd(sX1, 26, 2048*1024)
    E(f"v_lshrrev_b32 v2, 3, v0")
    E(f"v_and_b32 v3, 7, v0")
    E(f"v_lshlrev_b32 v8, 14, v2")
    E(f"v_lshl_add_u32 v8, v3, 4, v8")
    E(f"s_and_b32 {s(sT3)}, {s(sRT)}, 1")
    E(f"s_lshl_b32 {s(sT3)}, {s(sT3)}, 10")
    E(f"s_add_u32 {s(sT3)}, {s(sT3)}, {s(sR)}")
    E(f"s_lshl_b32 {s(sT3)}, {s(sT3)}, 10")
    E(f"s_lshl_b32 {s(sT1)}, {s(sCT)}, 7")
    E(f"s_add_u32 {s(sT3)}, {s(sT3)}, {s(sT1)}")

E(f"s_cmp_eq_u32 {s(sW)}, 7")
E("s_cbranch_scc1 L_p2_dft")
E(f"v_lshrrev_b32 v2, 5, {v(vL)}")
E(f"v_bfe_u32 v3, {v(vL)}, 2, 2")
E(f"v_lshl_add_u32 v2, v2, 2, v3")
E(f"v_lshlrev_b32 v2, 7, v2")
E(f"v_bfe_u32 v3, {v(vL)}, 3, 1")
E(f"v_lshl_add_u32 v2, v3, 6, v2")
E(f"v_bfe_u32 v3, {v(vL)}, 4, 1")
E(f"v_lshl_add_u32 v2, v3, 5, v2")
E(f"v_and_b32 v3, 3, {v(vL)}")
E(f"v_lshl_add_u32 v2, v3, 3, v2")
E(f"v_add_u32 v9, {s(sWd)}, v2")
E(f"v_xor_b32 v10, 64, v9")
E(f"v_add_u32 v11, {8*Q}, v9\nv_add_u32 v12, {8*Q}, v10")
E(f"v_add_u32 v2, {16*Q}, v9\nv_add_u32 v3, {16*Q}, v10")
def wreg(j, cb):
    return (184 + 8*j if j < 9 else 128 + 8*(j-9)) + 4*cb
def trreads(j, q0):
    for cb in range(2):
        for hh in range(2):
            q = q0 + hh
            a = [[9, 10], [11, 12], [2, 3]][q // 8][cb]
            E(f"ds_read_b64_tr_b16 {v(wreg(j,cb)+2*hh,2)}, v{a} offset:{(q%8)*Q}")
for j in range(9):
    trreads(j, 2*j)
E(f"s_lshl_b32 {s(sT0)}, {s(sR)}, 11")
E(f"s_lshl_b32 {s(sT1)}, {s(sW)}, 8")
E(f"s_add_u32 {s(sT0)}, {s(sT0)}, {s(sT1)}")
E(f"s_add_u32 {s(sT0)}, {s(sT0)}, {FL_OFF}")
E(f"v_and_b32 v{vFO}, 1, {v(vL)}")
E(f"v_lshlrev_b32 v{vFO}, 7, v{vFO}")
E(f"v_add_u32 v{vFO}, {s(sT0)}, v{vFO}")
E("s_waitcnt lgkmcnt(0)")
r2dma(0, R2A, 9)
nonce_and_flag(R2A, "f")
stamp(5)
r2dma(R2A, 14, 9)
final_addrs()
E(f"v_add_u32 v7, {A_RB}, v6")
E(f"s_mul_i32 {s(sT0)}, {s(sRT)}, {2*A_RB}")
E(f"s_lshl_b32 {s(sT1)}, {s(sW)}, 14")
E(f"s_add_u32 {s(sT0)}, {s(sT0)}, {s(sT1)}")
poll("f")
stamp(6)
def hbuf(j):
    return HB + 8*j if j < ND else wreg(j - ND, 0)
def ldh(j):
    B = hbuf(j)
    E(f"buffer_load_dwordx4 {v(B,4)}, v6, {s(sWS,4)}, {s(sT0)} offen offset:{(j&3)*1024} sc1")
    E(f"buffer_load_dwordx4 {v(B+4,4)}, v7, {s(sWS,4)}, {s(sT0)} offen offset:{(j&3)*1024} sc1")
    if (j & 3) == 3: E(f"s_add_u32 {s(sT0)}, {s(sT0)}, 4096")
for j in range(ND): ldh(j)
for j in range(9, 16):
    trreads(j, 2*(j-9))
XL_DONE = False
issued = ND
bufs = {j: HB + 8*j for j in range(ND)}
for j in range(16):
    xl = 1 if XL_DONE else 0
    E(f"s_waitcnt vmcnt({2*(issued - j - 1) + xl})" + (" lgkmcnt(0)" if j == 9 else ""))
    for tb in range(2):
        for cb in range(2):
            A = v(acc2(tb, cb), 16)
            E(f"v_mfma_f32_32x32x16_bf16 {A}, {v(wreg(j,cb),4)}, {v(bufs[j]+4*tb,4)}, {A if j else 0}")
    for fr in (bufs[j], wreg(j, 0)):
        if issued < 16:
            bufs[issued] = fr
            B = fr; jj = issued
            E(f"buffer_load_dwordx4 {v(B,4)}, v6, {s(sWS,4)}, {s(sT0)} offen offset:{(jj&3)*1024} sc1")
            E(f"buffer_load_dwordx4 {v(B+4,4)}, v7, {s(sWS,4)}, {s(sT0)} offen offset:{(jj&3)*1024} sc1")
            if (jj & 3) == 3: E(f"s_add_u32 {s(sT0)}, {s(sT0)}, 4096")
            issued += 1
    if issued == 16 and not XL_DONE:
        E(f"buffer_load_dwordx4 v[12:15], v8, {s(sX0,4)}, {s(sT3)} offen")
        XL_DONE = True
E("s_branch L_red")

E("L_p2_dft:")
E(f"v_bfe_u32 v2, {v(vL)}, 2, 3")
E(f"v_lshlrev_b32 v2, 14, v2")
E(f"v_and_b32 v3, 3, {v(vL)}")
E(f"v_lshl_add_u32 v2, v3, 8, v2")
E(f"v_lshl_add_u32 v2, v3, 6, v2")
E(f"v_lshrrev_b32 v3, 5, {v(vL)}")
E(f"v_lshl_add_u32 v2, v3, 3, v2")
E(f"v_add_u32 v9, {s(sWd)}, v2")
E(f"v_xor_b32 v10, 64, v9\nv_xor_b32 v11, 128, v9\nv_xor_b32 v12, 192, v9")
def wreg7(j, tb): return (192 if tb == 0 else 128) + 4*j
def rd7(tb):
    for j in range(16):
        a = 9 + (j >> 2)
        E(f"ds_read_b64 {v(wreg7(j,tb),2)}, v{a} offset:{(j&3)*16}")
        E(f"ds_read_b64 {v(wreg7(j,tb)+2,2)}, v{a} offset:{(j&3)*16+Q}")
def sign7(tb):
    for j in range(16):
        E(f"v_xor_b32 {v(wreg7(j,tb)+2)}, {s(sK)}, {v(wreg7(j,tb)+2)}")
        E(f"v_xor_b32 {v(wreg7(j,tb)+3)}, {s(sK)}, {v(wreg7(j,tb)+3)}")
rd7(0)
E(f"v_bfe_u32 v{vFO}, {v(vL)}, 1, 4")
E(f"v_lshlrev_b32 v{vFO}, 11, v{vFO}")
E(f"v_and_b32 v4, 1, {v(vL)}")
E(f"v_lshl_add_u32 v{vFO}, v4, 7, v{vFO}")
E(f"v_add_u32 v{vFO}, {FL_OFF + 14*128}, v{vFO}")
E("s_waitcnt lgkmcnt(0)")
r2dma(0, R2A, 8)
nonce_and_flag(R2A, "d")
stamp(5)
r2dma(R2A, 16, 8)
final_addrs()
E(f"v_and_b32 v2, 31, {v(vL)}")
E(f"v_lshrrev_b32 v3, 5, {v(vL)}")
E(f"s_lshl_b32 {s(sT0)}, {s(sCT)}, 6")
E(f"s_cmp_ge_u32 {s(sCT)}, 4")
E("s_cbranch_scc1 L_direct")
E(f"s_sub_u32 {s(sT0)}, 256, {s(sT0)}")
E(f"v_sub_u32 v2, {s(sT0)}, v2")
E(f"v_lshlrev_b32 v6, 4, v2")
E(f"v_lshl_add_u32 v6, v3, 12, v6")
E(f"v_subrev_u32 v7, 512, v6")
E(f"s_sub_u32 {s(sT1)}, 16, {s(sR)}")
E(f"s_and_b32 {s(sT1)}, {s(sT1)}, 15")
E(f"s_mov_b32 {s(sK)}, 0")
E("s_branch L_dft2")
E("L_direct:")
E(f"s_sub_u32 {s(sT0)}, {s(sT0)}, 256")
E(f"v_add_u32 v2, {s(sT0)}, v2")
E(f"v_lshlrev_b32 v6, 4, v2")
E(f"v_lshl_add_u32 v6, v3, 12, v6")
E(f"v_add_u32 v7, 512, v6")
E(f"s_mov_b32 {s(sT1)}, {s(sR)}")
E(f"s_mov_b32 {s(sK)}, 0x80008000")
E("L_dft2:")
E(f"s_lshl_b32 {s(sT0)}, {s(sT1)}, 17")
E(f"s_add_u32 {s(sT0)}, {s(sT0)}, {Z_OFF}")
sign7(0)
poll("d")
stamp(6)
def ldz(B):
    E(f"buffer_load_dwordx4 {v(B,4)}, v6, {s(sWS,4)}, {s(sT0)} offen sc1")
    E(f"buffer_load_dwordx4 {v(B+4,4)}, v7, {s(sWS,4)}, {s(sT0)} offen sc1")
    E(f"s_add_u32 {s(sT0)}, {s(sT0)}, 8192")
for j in range(ND): ldz(HB + 8*j)
rd7(1)
E("s_waitcnt lgkmcnt(0)")
sign7(1)
issued = ND
for j in range(16):
    xl = 1 if j > 16 - ND - 1 else 0
    B = HB + 8*(j % ND)
    E(f"s_waitcnt vmcnt({2*(issued - j - 1) + xl})")
    for tb in range(2):
        for cb in range(2):
            A = v(acc2(tb, cb), 16)
            E(f"v_mfma_f32_32x32x16_bf16 {A}, {v(B+4*cb,4)}, {v(wreg7(j,tb),4)}, {A if j else 0}")
    if issued < 16:
        ldz(B); issued += 1
        if issued == 16:
            E(f"buffer_load_dwordx4 v[12:15], v8, {s(sX0,4)}, {s(sT3)} offen")

E("L_red:")
stamp(7)
E(f"v_bfe_u32 v2, {v(vL)}, 2, 3")
E(f"v_lshlrev_b32 v2, 13, v2")
E(f"v_and_b32 v3, 3, {v(vL)}")
E(f"v_lshl_add_u32 v2, v3, 8, v2")
E(f"v_lshrrev_b32 v3, 5, {v(vL)}")
E(f"v_and_b32 v4, 7, {v(vL)}")
E(f"v_xor_b32 v3, v3, v4")
E(f"v_lshl_add_u32 v2, v3, 4, v2")
E(f"v_add_u32 {v(HB)}, {s(sWd)}, v2")
for q in range(1, 4): E(f"v_xor_b32 {v(HB+q)}, {32*q}, {v(HB)}")
for q in range(4): E(f"v_add_u32 {v(HB+4+q)}, {8*Q}, {v(HB+q)}")
for tb in range(2):
    for cb in range(2):
        for q in range(4):
            E(f"ds_write_b128 {v(HB+4*tb+q)}, {v(acc2(tb,cb)+4*q,4)} offset:{cb*128}")
E(f"v_lshrrev_b32 v2, 3, v0")
E(f"v_and_b32 v3, 7, v0")
E(f"v_lshlrev_b32 v9, 1, v3")
E(f"v_and_b32 v10, 7, v2")
E(f"v_xor_b32 v9, v9, v10")
E(f"v_lshlrev_b32 v9, 4, v9")
E(f"v_and_b32 v10, 3, v2")
E(f"v_lshl_add_u32 v9, v10, 8, v9")
E(f"v_lshrrev_b32 v10, 2, v2")
E(f"v_lshl_add_u32 v9, v10, 13, v9")
E(f"v_xor_b32 v10, 16, v9")
E(f"v_or_b32 v3, {s(sCT)}, v3")
E(f"v_cmp_ne_u32 vcc, 0, v3")
E(f"s_mov_b32 {s(sK)}, {f32(-math.log2(math.e))}")
E("s_waitcnt lgkmcnt(0)")
E("s_barrier")
stamp(8)
RD = 128
for w in range(8):
    E(f"ds_read_b128 {v(RD+8*w,4)}, v9 offset:{w*1024}")
    E(f"ds_read_b128 {v(RD+8*w+4,4)}, v10 offset:{w*1024}")
def sum8(d, a):
    for k in range(4):
        E(f"v_pk_add_f32 {v(RD+8*d+2*k,2)}, {v(RD+8*d+2*k,2)}, {v(RD+8*a+2*k,2)}")
E("s_waitcnt lgkmcnt(12)"); sum8(0, 1)
E("s_waitcnt lgkmcnt(8)"); sum8(2, 3)
E("s_waitcnt lgkmcnt(4)"); sum8(4, 5); sum8(0, 2)
E("s_waitcnt lgkmcnt(2)"); sum8(4, 6); sum8(0, 4)
T = vACC
for k in range(4):
    E(f"v_pk_mul_f32 {v(T+2*k,2)}, {v(RD+2*k,2)}, {s(sK,2)} op_sel_hi:[1,0]")
for k in range(8):
    E(f"v_exp_f32 {v(T+k)}, {v(T+k)}")
E("s_nop 0")
for k in range(4):
    E(f"v_pk_add_f32 {v(T+2*k,2)}, {v(T+2*k,2)}, 1.0 op_sel_hi:[1,0]")
for k in range(8):
    E(f"v_rcp_f32 {v(T+k)}, {v(T+k)}")
E("s_waitcnt vmcnt(0) lgkmcnt(0)")
E(f"v_cndmask_b32 {v(RD+56)}, 0, {v(RD+56)}, vcc")
for k in range(4):
    E(f"v_lshlrev_b32 {v(T+8+2*k)}, 16, v{12+k}")
    E(f"v_and_b32 {v(T+9+2*k)}, {s(sMASK)}, v{12+k}")
for k in range(4):
    E(f"v_pk_mul_f32 {v(T+2*k,2)}, {v(T+2*k,2)}, {v(RD+2*k,2)}")
for k in range(4):
    E(f"v_pk_fma_f32 {v(T+2*k,2)}, {v(T+2*k,2)}, {v(RD+56+2*k,2)}, {v(T+8+2*k,2)}")
for k in range(4):
    E(f"v_cvt_pk_bf16_f32 v{12+k}, {v(T+2*k)}, {v(T+2*k+1)}")
E(f"buffer_store_dwordx4 v[12:15], v8, {s(sX1,4)}, {s(sT3)} offen")
if STAMP:
    E("s_waitcnt vmcnt(0)")
    stamp(9)
    E("s_waitcnt lgkmcnt(0)")
    E(f"s_lshl_b32 s78, s2, 3")
    E(f"s_add_u32 s78, s78, {s(sW)}")
    E(f"s_lshl_b32 s78, s78, 6")
    E(f"s_add_u32 s78, s78, {STAMP_OFF}")
    E(f"s_mov_b32 {s(sWS+2)}, 0x2000000")
    for k in range(12):
        E(f"v_mov_b32 {v(200+k)}, s{80+2*min(k,NST-1)}")
    E(f"v_mov_b32 v212, 0")
    E("s_mov_b64 exec, 1")
    for k in range(3):
        E(f"buffer_store_dwordx4 {v(200+4*k,4)}, v212, {s(sWS,4)}, s78 offen offset:{16*k}")
E("L_end:")
E("s_endpgm")

E('.section .rodata,"a"')
E(".p2align 6")
E(f""".amdhsa_kernel {KNAME}
.amdhsa_next_free_vgpr 256
.amdhsa_next_free_sgpr 102
.amdhsa_accum_offset 256
.amdhsa_group_segment_fixed_size 0
.amdhsa_kernarg_size 96
.amdhsa_user_sgpr_count 2
.amdhsa_user_sgpr_kernarg_segment_ptr 1
.amdhsa_system_sgpr_workgroup_id_x 1
.end_amdhsa_kernel""")
open(OUT, "w").write("\n".join(L) + "\n")
```

```python
import sys, math, struct

ARGS = sys.argv[1:]
def flag(n): return ("--" + n) in ARGS
def opt(n, d):
    for a in ARGS:
        if a.startswith("--" + n + "="): return int(a.split("=")[1])
    return d
STAMP = flag("stamp")
OUT = [a for a in ARGS if not a.startswith("--")][0]
KNAME = "recurrent_scan__spectral_fnet__geglu_ffn__prompt_kernel"

A_RB = 112 * 1024
Z_OFF = 0x700000
FL_OFF = 0x901000
OVF = 0xA00000
WS_SIZE = 0x1400000
STAMP_OFF = 0x1800000
SPIN = 1 << 16

L = []
def E(s=""):
    for line in s.split("\n"):
        if not line.strip(): continue
        L.append(line if line.endswith(":") or line.startswith(".") or line.startswith(";") else "    " + line.strip())
def EL(l):
    for x in l: E(x)
def f32(x):
    return "0x%08x" % struct.unpack("<I", struct.pack("<f", x))[0]
def v(a, n=1):
    return f"v{a}" if n == 1 else f"v[{a}:{a+n-1}]"
def s(a, n=1):
    return f"s{a}" if n == 1 else f"s[{a}:{a+n-1}]"
NST = 10
def stamp(k, loop=False):
    if flag("itstamp"):
        if k == 2 and not loop: k = 1
        elif k == 0: pass
        elif not loop: return
    elif loop: return
    if STAMP:
        E(f"s_mem{'' if flag('cyc') else 'real'}time s[{80+2*k}:{81+2*k}]")
_lab = [0]
def newlab(p):
    _lab[0] += 1
    return f"L_{p}{_lab[0]}"

HEADER = open("recurrent_scan__spectral_fnet__geglu_ffn__prompt.s.ref").read().split("; Override")[0]
E(HEADER.rstrip())
E("; @launch grid=(256,1,1) block=(512,1,1) lds=163840")
E('.amdgcn_target "amdgcn-amd-amdhsa--gfx950"')
E(".text")

Q = 8192
WSLOT = 16384; NW = 6
XRING = NW * WSLOT; XSLOT = 16384; NX = 3
MISC = XRING + NX * XSLOT
ST_OFF = MISC
CS_OFF = MISC + 4096
PRIV = MISC + 8192
PP = [4, 8, 5, 0, 6, 1, 2, 7, 3]
PFREE = [10, 11, 11, 12, 13, 13, 14, 15, 15]

sX0, sX1, sG, sU, sWS = 4, 8, 12, 16, 20
sG2, sU2 = 40, 44
(sI, sC, sW, sWinc, sWlim, sWoff, sInc2, sAdj2, sXoff, sWd, sOff2, sCB, sRS, sP, sRH, sCQ, sT0, sT1, sMASK, sDFT,
 sRT, sCT, sR, sT2, sT3, sSP) = range(48, 74)
sK = 74
vL = 1
vA2 = 8
vNON = 14
vACC = 16
XE, XO, X1a, Ga, Ua, X0b, X1b, Gb, Ub = [80 + 4*k for k in range(9)]
vXB = 116; vWB = 124
vW2 = 7
vXo = 128; vWo = 132
vSUM, vSQ = 136, 138
vUT = 140
vSELG, vSELU, vCSD = 144, 148, 152
vSTW, vCSW, vSTR, vCSR_, vPW, vPR = range(156, 162)
vTA = 162
vZERO = 167

def skip3(vo, vt, delta):
    if (not flag("skip")): return
    E(f"v_bfe_u32 {v(vt)}, {v(vo)}, 7, 3")
    E(f"v_cmp_eq_u32 vcc, 3, {v(vt)}")
    E(f"v_add_u32 {v(vt)}, {delta}, {v(vo)}")
    E("s_nop 0")
    E(f"v_cndmask_b32 {v(vo)}, {v(vo)}, {v(vt)}, vcc")
def hdelta(sd, sslice):
    E(f"s_cmp_ge_u32 {s(sslice)}, 3")
    E(f"s_addc_u32 {s(sd)}, {s(sslice)}, 0")
    E(f"s_lshl_b32 {s(sd)}, {s(sd)}, 7")
    E(f"s_add_u32 {s(sd)}, {s(sd)}, {OVF - 384}")
def zskip(vo, vt, vt2):
    if (not flag("skip")): return
    E(f"v_bfe_u32 {v(vt2)}, {v(vo)}, 10, 2")
    E(f"v_lshlrev_b32 {v(vt2)}, 7, {v(vt2)}")
    E(f"v_add_u32 {v(vt2)}, {OVF + 128}, {v(vt2)}")
    skip3(vo, vt, v(vt2))
def acc(rb, p):
    return vACC + (rb * 2 + p) * 16
def srd(d, lo, size):
    E(f"s_mov_b32 {s(d)}, s{lo}\ns_mov_b32 {s(d+1)}, s{lo+1}\ns_mov_b32 {s(d+2)}, {size}\ns_mov_b32 {s(d+3)}, 0x20000")

E(f".globl {KNAME}\n.p2align 8\n.type {KNAME},@function\n{KNAME}:")
E("s_cmp_ge_u32 s2, 256")
E("s_cbranch_scc1 L_end")
stamp(0)
E("s_load_dwordx16 s[32:47], s[0:1], 0")
E("s_load_dwordx2 s[28:29], s[0:1], 64")
E("s_load_dwordx2 s[26:27], s[0:1], 72")
E("s_load_dwordx2 s[24:25], s[0:1], 80")
E("s_load_dwordx2 s[30:31], s[0:1], 88")
E("s_memrealtime s[78:79]")
E(f"v_lshrrev_b32 v2, 6, v0")
E(f"v_and_b32 {v(vL)}, 63, v0")
E(f"v_readfirstlane_b32 {s(sW)}, v2")
E("s_getpc_b64 s[4:5]")
E("L_pc:")
E(f"s_cmp_lg_u32 {s(sW)}, 7")
E("s_cbranch_scc1 L_nct")
E("s_and_b32 s6, s2, 0xf8")
E("v_and_b32 v2, 7, v0")
E("v_add_u32 v2, s6, v2")
E("v_lshlrev_b32 v2, 7, v2")
E("v_min_u32 v2, L_end-L_pc, v2")
E(f"global_load_dword {v(vTA+4)}, v2, s[4:5]")
E("L_nct:")
E(f"s_and_b32 {s(sT0)}, s2, 3")
E(f"s_lshl_b32 {s(sT0)}, {s(sT0)}, 2")
E(f"s_bfe_u32 {s(sI)}, s2, 0x20003")
E(f"s_add_u32 {s(sI)}, {s(sI)}, {s(sT0)}")
E(f"s_bfe_u32 {s(sT0)}, s2, 0x10002")
E(f"s_lshr_b32 {s(sT1)}, s2, 5")
E(f"s_mul_i32 {s(sC)}, {s(sT0)}, 7")
E(f"s_add_u32 {s(sC)}, {s(sC)}, {s(sT1)}")
E(f"s_sub_u32 {s(sC)}, {s(sC)}, 1")
E(f"s_add_u32 {s(sT0)}, {s(sT0)}, 14")
E(f"s_cmp_eq_u32 {s(sT1)}, 0")
E(f"s_cselect_b32 {s(sC)}, {s(sT0)}, {s(sC)}")
E(f"s_cselect_b32 {s(sDFT)}, 1, 0")
E(f"s_cselect_b32 {s(sRS)}, 2, 7")
E(f"s_lshl_b32 {s(sRS)}, {s(sRS)}, 9")
E(f"s_lshl_b32 {s(sWinc)}, {s(sRS)}, 5")
E(f"s_lshl_b32 {s(sWlim)}, {s(sRS)}, 9")
E(f"s_lshr_b32 {s(sRH)}, {s(sW)}, 2")
E(f"s_and_b32 {s(sCQ)}, {s(sW)}, 3")
E(f"v_lshrrev_b32 v2, 3, v0")
E(f"v_bfe_u32 v3, v2, 1, 3")
E(f"v_and_b32 v4, 7, {v(vL)}")
E(f"v_xor_b32 v3, v3, v4")
E(f"v_lshlrev_b32 v3, 4, v3")
E(f"s_lshl_b32 {s(sCB)}, {s(sC)}, 8")
E(f"s_cmp_eq_u32 {s(sDFT)}, 1")
E("s_cbranch_scc1 L_rows_dft")
E(f"v_lshlrev_b32 v2, 4, v2")
E(f"v_add_u32 v2, {s(sI)}, v2")
E(f"s_mov_b32 {s(sT0)}, {512*1024}")
E(f"s_mov_b32 {s(sT1)}, {1024*1024}")
E("s_branch L_rows_done")
E("L_rows_dft:")
E("v_and_b32 v4, 1, v2")
E("v_bfe_u32 v5, v2, 2, 1")
E("v_lshl_add_u32 v4, v5, 1, v4")
E("v_bfe_u32 v5, v2, 1, 1")
E("v_lshl_add_u32 v4, v5, 7, v4")
E("v_bfe_u32 v5, v2, 3, 2")
E("v_lshl_add_u32 v4, v5, 8, v4")
E(f"s_lshl_b32 {s(sT1)}, {s(sI)}, 3")
E(f"v_add_u32 v2, {s(sT1)}, v4")
E(f"s_mov_b32 {s(sT0)}, {1024*1024}")
E(f"s_mov_b32 {s(sT1)}, {4*1024}")
E(f"s_sub_u32 {s(sCB)}, {s(sCB)}, {14*256 - 512}")
E("L_rows_done:")
E(f"v_lshl_add_u32 {v(vXo)}, v2, 10, v3")
E(f"v_add_u32 {v(vXo+1)}, {s(sT0)}, {v(vXo)}")
E(f"v_add_u32 {v(vXo+2)}, {s(sT1)}, {v(vXo)}")
E(f"v_add_u32 {v(vXo+3)}, {s(sT1)}, {v(vXo+1)}")
E(f"v_lshrrev_b32 v2, 4, v0")
E(f"v_and_b32 v3, 3, v2")
E(f"v_lshlrev_b32 v3, 2, v3")
E(f"v_and_b32 v4, 15, {v(vL)}")
E(f"v_xor_b32 v3, v3, v4")
E(f"v_lshlrev_b32 v3, 4, v3")
E(f"v_mul_lo_u32 v2, v2, {s(sRS)}")
E(f"v_add3_u32 {v(vWo)}, v2, v3, {s(sCB)}")
E(f"s_lshl_b32 {s(sT0)}, {s(sRS)}, 4")
E(f"v_add_u32 {v(vWo+1)}, {s(sT0)}, {v(vWo)}")
E(f"s_mov_b32 {s(sXoff)}, 0")
E(f"s_mov_b32 {s(sWoff)}, 0")
E(f"s_lshl_b32 {s(sWd)}, {s(sW)}, 10")
E("s_waitcnt lgkmcnt(0)")
srd(sX0, 32, 2048*1024)
E(f"s_cmp_eq_u32 {s(sDFT)}, 1")
E(f"s_cselect_b32 {s(sG)}, s38, s44\ns_cselect_b32 {s(sG+1)}, s39, s45")
E(f"s_cselect_b32 {s(sU)}, s40, s46\ns_cselect_b32 {s(sU+1)}, s41, s47")
E(f"s_mov_b32 {s(sG+2)}, {s(sWlim)}\ns_mov_b32 {s(sG+3)}, 0x20000")
E(f"s_mov_b32 {s(sU+2)}, {s(sWlim)}\ns_mov_b32 {s(sU+3)}, 0x20000")

class Stream:
    def __init__(self):
        order = ["W0", "X0", "W1", "W2", "X1", "W3", "W4", "X2", "W5"]
        for P in range(3, 8): order += [f"W{2*P}", f"X{P}", f"W{2*P+1}"]
        self.todo = [(o, b) for o in order for b in range(4)]
        self.todo += [(f"T{k}", b) for k in range(9) for b in range(2)]
        self.issued = []
        self.bar = -1
    def free_after(self, o):
        k, n = o[0], int(o[1:])
        if k == "W": return n - 6
        if k == "X": return 2*(n-3) + 1
        return PFREE[n]
    def peek(self):
        if not self.todo: return None
        o, b = self.todo[0]
        return None if self.free_after(o) > self.bar else o[0]
    def next(self):
        o, b = self.todo.pop(0); self.issued.append(o)
        k, n = o[0], int(o[1:])
        post = []
        if k == "W":
            dst = (2*(n % 6) + (b & 1))*Q + (b >> 1)*4096
            ld = f"buffer_load_dwordx4 {v(vWo+(b>>1))}, {s(sU if b&1 else sG,4)}, {s(sWoff)} offen lds"
            if b == 3: post = [f"s_add_u32 {s(sWoff)}, {s(sWoff)}, {s(sWinc)}"]
        elif k == "X":
            dst = XRING + (n % 3)*XSLOT + b*4096
            ld = f"buffer_load_dwordx4 {v(vXo+b)}, {s(sX0,4)}, {s(sXoff)} offen lds"
            if b == 3: post = [f"s_add_u32 {s(sXoff)}, {s(sXoff)}, 128"]
        else:
            dst = (2*PP[n % 9] + b)*Q
            ld = f"buffer_load_dwordx4 {v(vW2)}, {s(sU2 if b else sG2,4)}, {s(sOff2)} offen lds"
            if b: post = [f"s_add_u32 {s(sOff2)}, {s(sOff2)}, {s(sInc2)}"] + ([f"s_sub_u32 {s(sOff2)}, {s(sOff2)}, {s(sAdj2)}"] if n == 7 else [])
        m0 = f"s_add_u32 m0, {s(sWd)}, {dst}" if dst else f"s_mov_b32 m0, {s(sWd)}"
        return m0, ld, post
    def wait(self, need):
        last = max(i for i, o in enumerate(self.issued) if o in need)
        for o in need: assert self.issued.count(o) == (2 if o[0] == "T" else 4), (o, self.issued)
        return len(self.issued) - 1 - last
    def copy(self):
        c = Stream(); c.todo = list(self.todo); c.issued = list(self.issued); c.bar = self.bar; return c
ST = Stream()
def dma_slot(st, nmax=2):
    k = st.peek()
    if k is None: return []
    if k == "T":
        m0, ld, post = st.next()
        return [m0, "s_nop 0", ld] + post
    lab = newlab("sk")
    o = [f"s_cbranch_vccnz {lab}"]
    for _ in range(nmax):
        if st.peek() in ("W", "X"):
            m0, ld, post = st.next()
            o += [m0, "s_nop 0", ld] + post
    return o + [f"{lab}:"]

E(f"s_cmp_ge_u32 {s(sW)}, 4")
E("s_cbranch_scc1 L_helper")
NPRO = opt("npro", 16)
for _ in range(NPRO):
    m0, ld, post = ST.next()
    EL([m0, "s_nop 0", ld] + post)
E("s_branch L_setup")
E("L_helper:")
E("s_cmp_lg_u32 s2, 0")
E("s_cbranch_scc1 L_nononce")
E(f"s_cmp_lg_u32 {s(sW)}, 4")
E("s_cbranch_scc1 L_nononce")
E("s_or_b32 s78, s78, 1")
E("v_mov_b32 v2, s78\nv_mov_b32 v3, s79\nv_mov_b32 v4, 0")
E("s_mov_b64 exec, 1")
E("global_store_dwordx2 v4, v[2:3], s[24:25] sc1")
E("s_mov_b64 exec, -1")
E("L_nononce:")
if not flag("nota"):
    if opt("tadelay", 0): E(f"s_sleep {opt('tadelay', 0)}")
    E(f"v_lshrrev_b32 v2, 1, {v(vL)}")
    E(f"s_lshl_b32 {s(sT0)}, {s(sI)}, 5")
    E(f"v_add_u32 v2, {s(sT0)}, v2")
    E(f"v_mul_lo_u32 v2, v2, {s(sRS)}")
    E(f"v_and_b32 v3, 1, {v(vL)}")
    E(f"v_lshl_add_u32 v2, v3, 7, v2")
    E(f"s_cmp_eq_u32 {s(sW)}, 4")
    E("s_cbranch_scc0 L_ta1")
    E(f"buffer_load_dword {v(vTA+4)}, v2, {s(sG,4)}, {s(sCB)} offen")
    E("L_ta1:")
    E(f"s_cmp_eq_u32 {s(sW)}, 5")
    E("s_cbranch_scc0 L_ta2")
    E(f"buffer_load_dword {v(vTA+4)}, v2, {s(sU,4)}, {s(sCB)} offen")
    E("L_ta2:")
    E(f"s_cmp_eq_u32 {s(sW)}, 6")
    E("s_cbranch_scc0 L_ta3")
    E(f"v_lshlrev_b32 v2, 7, {v(vL)}")
    E(f"s_lshl_b32 {s(sT0)}, s2, 13")
    E(f"buffer_load_dword {v(vTA+4)}, v2, {s(sX0,4)}, {s(sT0)} offen")
    E("L_ta3:")
E("L_setup:")
E(f"s_bfe_u32 {s(sCT)}, s2, 0x30003")
if flag("ctrot"):
    E(f"s_add_u32 {s(sCT)}, {s(sCT)}, s2")
    E(f"s_and_b32 {s(sCT)}, {s(sCT)}, 7")
E(f"s_and_b32 {s(sRT)}, s2, 7")
E(f"s_lshl_b32 {s(sRT)}, {s(sRT)}, 2")
E(f"s_lshr_b32 {s(sT1)}, s2, 6")
E(f"s_add_u32 {s(sRT)}, {s(sRT)}, {s(sT1)}")
E(f"s_lshr_b32 {s(sR)}, {s(sRT)}, 1")
srd(sWS, 30, WS_SIZE)
E(f"s_lshr_b32 {s(sT0)}, {s(sCQ)}, 1")
E(f"s_xor_b32 {s(sT0)}, {s(sT0)}, {s(sRH)}")
E(f"v_lshrrev_b32 v2, 5, {v(vL)}")
E(f"v_bfe_u32 v3, {v(vL)}, 2, 2")
E(f"v_lshlrev_b32 v4, 11, v2")
E(f"v_lshl_add_u32 v4, v3, 8, v4")
E(f"v_xor_b32 v3, {s(sCQ)}, v3")
E(f"v_lshl_add_u32 v4, v3, 6, v4")
E(f"v_bfe_u32 v3, {v(vL)}, 4, 1")
E(f"v_lshl_add_u32 v4, v3, 5, v4")
E(f"v_and_b32 v5, 3, {v(vL)}")
E(f"v_lshl_add_u32 v4, v5, 3, v4")
E(f"s_lshl_b32 {s(sT1)}, {s(sT0)}, 12")
E(f"v_add_u32 {v(vWB)}, {s(sT1)}, v4")
E(f"v_xor_b32 {v(vWB+1)}, 4096, {v(vWB)}")
E(f"v_add_u32 {v(vWB+2)}, {3*WSLOT}, {v(vWB)}")
E(f"v_add_u32 {v(vWB+3)}, {3*WSLOT}, {v(vWB+1)}")
E(f"v_and_b32 v5, 15, {v(vL)}")
E(f"v_lshlrev_b32 v3, 2, v3")
E(f"v_sub_u32 v5, v5, v3")
E(f"v_mov_b32 v6, 0x3f803f80")
E(f"v_cmp_eq_u32 vcc, 0, v5")
E(f"v_cmp_eq_u32 s[78:79], 8, v5")
E(f"v_and_b32 v3, 31, {v(vL)}")
E(f"v_bfe_u32 v4, {v(vL)}, 1, 3")
for k in range(4):
    E(f"v_cndmask_b32 {v(vSELG+k)}, 0, v6, vcc")
    E(f"v_cndmask_b32 {v(vSELU+k)}, 0, v6, s[78:79]")
E(f"v_xor_b32 v4, v4, v2")
E(f"v_lshlrev_b32 v4, 4, v4")
E(f"v_lshl_add_u32 v4, v3, 7, v4")
E(f"s_lshl_b32 {s(sT0)}, {s(sT0)}, 5")
E(f"v_xor_b32 v4, {s(sT0)}, v4")
E(f"s_and_b32 {s(sT0)}, {s(sCQ)}, 1")
E(f"s_lshl_b32 {s(sT1)}, {s(sRH)}, 1")
E(f"s_add_u32 {s(sT2)}, {s(sT0)}, {s(sT1)}")
E(f"s_lshl_b32 {s(sT0)}, {s(sT2)}, 12")
E(f"s_add_u32 {s(sT0)}, {s(sT0)}, {XRING}")
E(f"v_add_u32 v4, {s(sT0)}, v4")
for q in range(4):
    E(f"v_xor_b32 {v(vXB+2*q)}, {q*32}, v4")
    E(f"v_xor_b32 {v(vXB+2*q+1)}, {q*32+4096}, v4")
for r in list(range(vACC, vACC+64)) + list(range(vSUM, vSUM+4)) + list(range(vCSD, vCSD+4)) + [vZERO]:
    E(f"v_mov_b32 {v(r)}, 0")
E(f"s_mov_b32 {s(sMASK)}, 0xffff0000")
E(f"s_lshl_b32 {s(sT2)}, {s(sT2)}, 10")
E(f"s_add_u32 {s(sT2)}, {s(sT2)}, {ST_OFF}")
E(f"s_and_b32 {s(sT1)}, {s(sCQ)}, 2")
E(f"s_lshl_b32 {s(sT1)}, {s(sT1)}, 2")
E(f"s_add_u32 {s(sT1)}, {s(sT1)}, {s(sT2)}")
E(f"v_lshlrev_b32 v4, 5, v3")
E(f"v_lshl_add_u32 v5, v2, 2, v4")
E(f"v_add_u32 {v(vSTW)}, {s(sT1)}, v5")
E(f"v_lshlrev_b32 v5, 10, v2")
E(f"v_xor_b32 v5, {s(sT2)}, v5")
E(f"v_add_u32 {v(vSTR)}, v5, v4")
E(f"v_lshlrev_b32 v5, 2, v0")
E(f"v_add_u32 {v(vCSW)}, {CS_OFF}, v5")
E(f"v_xor_b32 {v(vCSR_)}, 1024, {v(vCSW)}")
E(f"s_lshl_b32 {s(sT0)}, {s(sW)}, 9")
E(f"s_add_u32 {s(sT0)}, {s(sT0)}, {PRIV}")
E(f"v_lshlrev_b32 v5, 2, {v(vL)}")
E(f"v_add_u32 {v(vPW)}, {s(sT0)}, v5")
E(f"v_lshlrev_b32 v5, 4, v2")
E(f"v_add_u32 {v(vPR)}, {s(sT0)}, v5")
E(f"s_mov_b32 {s(sOff2)}, 0")
E(f"v_lshrrev_b32 v5, 3, {v(vL)}")
E(f"v_and_b32 v6, 7, {v(vL)}")
E(f"s_cmp_eq_u32 {s(sW)}, 7")
E("s_cbranch_scc1 L_reconf7")
E(f"v_bfe_u32 v4, {v(vL)}, 4, 1")
E(f"v_lshlrev_b32 v4, 2, v4")
E(f"v_xor_b32 v4, v4, v6")
E(f"v_lshlrev_b32 v4, 4, v4")
E(f"v_lshl_add_u32 v4, v5, 10, v4")
E(f"s_lshl_b32 {s(sT0)}, {s(sW)}, 18")
E(f"s_lshl_b32 {s(sT1)}, {s(sCT)}, 7")
E(f"s_add_u32 {s(sT0)}, {s(sT0)}, {s(sT1)}")
srd(sG2, 28, 1792*1024)
E(f"s_add_u32 {s(sU2)}, s28, {Q}\ns_addc_u32 {s(sU2+1)}, s29, 0\ns_mov_b32 {s(sU2+2)}, {1792*1024-Q}")
E(f"s_mov_b32 {s(sInc2)}, {2*Q}")
E(f"s_mov_b32 {s(sAdj2)}, 0")
E(f"v_bfe_u32 v5, {v(vL)}, 2, 2")
E(f"v_lshl_add_u32 v5, v2, 2, v5")
E(f"v_lshlrev_b32 v5, 7, v5")
E(f"v_bfe_u32 v6, {v(vL)}, 3, 1")
E(f"v_lshl_add_u32 v5, v6, 6, v5")
E(f"v_bfe_u32 v6, {v(vL)}, 4, 1")
E(f"v_lshl_add_u32 v5, v6, 5, v5")
E(f"v_and_b32 v6, 3, {v(vL)}")
E(f"v_lshl_add_u32 v5, v6, 3, v5")
E(f"v_add_u32 {v(vA2)}, {s(sWd)}, v5")
E(f"v_xor_b32 {v(vA2+1)}, 64, {v(vA2)}")
for g in (1, 2):
    E(f"v_add_u32 {v(vA2+2*g)}, {8*Q*g}, {v(vA2)}\nv_add_u32 {v(vA2+2*g+1)}, {8*Q*g}, {v(vA2+1)}")
E("s_branch L_reconf_c")
E("L_reconf7:")
E(f"v_bfe_u32 v4, {v(vL)}, 4, 2")
E(f"v_lshlrev_b32 v4, 1, v4")
E(f"v_xor_b32 v4, v4, v6")
E(f"v_lshlrev_b32 v4, 4, v4")
E(f"v_lshl_add_u32 v4, v5, 16, v4")
E(f"s_and_b32 {s(sT0)}, {s(sRT)}, 1")
E(f"s_lshl_b32 {s(sT0)}, {s(sT0)}, 10")
E(f"s_add_u32 {s(sT0)}, {s(sT0)}, {s(sR)}")
E(f"s_lshl_b32 {s(sT0)}, {s(sT0)}, 12")
srd(sG2, 34, 2048*4096)
E(f"s_mov_b32 {s(sU2)}, s36\ns_mov_b32 {s(sU2+1)}, s37\ns_mov_b32 {s(sU2+2)}, {2048*4096}")
E(f"s_mov_b32 {s(sInc2)}, {8*65536}")
E(f"s_mov_b32 {s(sAdj2)}, {64*65536 - 128}")
E(f"v_and_b32 v5, 7, v3")
E(f"v_lshlrev_b32 v5, 7, v5")
E(f"v_bfe_u32 v6, v3, 1, 2")
E(f"v_lshl_add_u32 v5, v6, 5, v5")
E(f"v_lshl_add_u32 v5, v2, 3, v5")
E(f"v_add_u32 {v(vA2)}, {s(sWd)}, v5")
E(f"v_lshrrev_b32 v5, 3, v3")
E(f"v_lshlrev_b32 {v(vA2+1)}, 2, v5")
if flag("w7oob"):
    E(f"s_mov_b32 {s(sG2+2)}, 0\ns_mov_b32 {s(sU2+2)}, 0\ns_mov_b32 {s(sInc2)}, 0\ns_mov_b32 {s(sAdj2)}, 0")
E("L_reconf_c:")
if flag("alloob"):
    E(f"s_mov_b32 {s(sG2+2)}, 0\ns_mov_b32 {s(sU2+2)}, 0\ns_mov_b32 {s(sInc2)}, 0\ns_mov_b32 {s(sAdj2)}, 0")
E(f"s_mov_b32 {s(sU2+3)}, 0x20000")
E(f"v_add_u32 {v(vW2)}, {s(sT0)}, v4")
E(f"v_min_u32 v4, 55, {v(vL)}")
E(f"s_lshr_b32 {s(sT0)}, s2, 3")
E(f"s_mul_i32 {s(sT0)}, {s(sT0)}, 56")
E(f"v_add_u32 v4, {s(sT0)}, v4")
E(f"v_lshlrev_b32 v4, 10, v4")
E(f"v_add_u32 {v(vTA+2)}, 384, v4")
E(f"s_cmp_lg_u32 {s(sW)}, 4")
E("s_cbranch_scc1 L_touch_ws")
E(f"v_min_u32 v4, 55, {v(vL)}")
E(f"s_mul_i32 {s(sT0)}, s2, 56")
E(f"v_add_u32 v4, {s(sT0)}, v4")
E(f"v_lshlrev_b32 v4, 7, v4")
E(f"v_mov_b32 {v(vTA)}, s28\nv_mov_b32 {v(vTA+1)}, s29")
E("s_branch L_touch_c")
E("L_touch_ws:")
E(f"s_cmp_eq_u32 {s(sW)}, 5")
E(f"s_cselect_b32 {s(sT1)}, 63, 0")
E(f"v_and_b32 v5, {s(sT1)}, {v(vL)}")
E(f"v_bfe_u32 v4, v5, 1, 3")
E(f"s_lshl_b32 {s(sT0)}, s2, 3")
E(f"v_add_u32 v4, {s(sT0)}, v4")
E(f"v_lshlrev_b32 v4, 12, v4")
E(f"v_and_b32 v6, 1, v5")
E(f"v_lshl_add_u32 v4, v6, 7, v4")
E(f"v_and_b32 v6, 16, v5")
E(f"v_cmp_eq_u32 vcc, 0, v6")
E(f"v_mov_b32 {v(vTA)}, s36\nv_mov_b32 {v(vTA+1)}, s37\nv_mov_b32 v5, s34\nv_mov_b32 v6, s35")
E(f"v_cndmask_b32 {v(vTA)}, {v(vTA)}, v5, vcc\nv_cndmask_b32 {v(vTA+1)}, {v(vTA+1)}, v6, vcc")
E("L_touch_c:")
E(f"v_add_co_u32 {v(vTA)}, vcc, {v(vTA)}, v4\ns_nop 1\nv_addc_co_u32 {v(vTA+1)}, vcc, 0, {v(vTA+1)}, vcc")
E(f"s_mov_b32 vcc_lo, {s(sRH)}")
E(f"s_mov_b32 vcc_hi, 0")

def reads(F, it, sl):
    X0, X1, G, U = F
    q = 2*(it & 1) + sl
    xo = ((it >> 1) % 3) * XSLOT
    ws = it % 6
    wa = v(vWB + sl + 2*(ws // 3)); wo = (ws % 3) * WSLOT
    return [f"ds_read_b128 {v(X0,4)}, {v(vXB+2*q)} offset:{xo}",
            f"ds_read_b64_tr_b16 {v(G,2)}, {wa} offset:{wo}",
            f"ds_read_b64_tr_b16 {v(G+2,2)}, {wa} offset:{wo+1024}",
            f"ds_read_b64_tr_b16 {v(U,2)}, {wa} offset:{wo+8192}",
            f"ds_read_b64_tr_b16 {v(U+2,2)}, {wa} offset:{wo+9216}",
            f"ds_read_b128 {v(X1,4)}, {v(vXB+2*q+1)} offset:{xo}"]
def stats(X):
    o = []
    for r in range(4):
        t = vUT + 2*(r & 1)
        o += [f"v_lshlrev_b32 {v(t)}, 16, {v(X+r)}", f"v_and_b32 {v(t+1)}, {s(sMASK)}, {v(X+r)}",
              f"v_add_f32 {v(vSUM)}, {v(vSUM)}, {v(t)}", f"v_add_f32 {v(vSUM+1)}, {v(vSUM+1)}, {v(t+1)}",
              f"v_fmac_f32 {v(vSQ)}, {v(t)}, {v(t)}", f"v_fmac_f32 {v(vSQ+1)}, {v(t+1)}, {v(t+1)}"]
    return o
def mf(F, dft, k):
    X0, X1, G, U = F
    rb, p = k >> 1, k & 1
    X = v(X1 if rb else X0, 4); W = v(U if p else G, 4); A = v(acc(rb, p), 16)
    return f"v_mfma_f32_32x32x16_bf16 {A}, {X}, {W}, {A}" if dft else f"v_mfma_f32_32x32x16_bf16 {A}, {W}, {X}, {A}"
S0e = (XE, X1a, Ga, Ua); S0o = (XO, X1a, Ga, Ua); S1 = (X0b, X1b, Gb, Ub)
selG = f"v_mfma_f32_16x16x32_bf16 {v(vCSD,4)}, {v(vSELG,4)}, {v(Gb,4)}, {v(vCSD,4)}"
selU = f"v_mfma_f32_16x16x32_bf16 {v(vCSD,4)}, {v(vSELU,4)}, {v(Ub,4)}, {v(vCSD,4)}"
vX = 80

if opt("touch", 2) == -1:
    E(f"s_cbranch_vccz L_nt0")
    E(f"global_load_dword {v(vTA+4)}, {v(vTA,2)}, off")
    E(f"L_nt0:")
E(f"s_waitcnt vmcnt({ST.wait(['W0', 'X0'])})")
E("s_barrier")
stamp(2)
EL(reads(S0e, 0, 0))
E(f"s_cmp_eq_u32 {s(sDFT)}, 1")
E("s_cbranch_scc1 L_loop_dft")
LOOP_START = len(L)
ST0 = ST
for dft in (0, 1):
    E("L_loop_dft:" if dft else "L_loop_ffn:")
    ST = ST0.copy()
    for it in range(16):
        odd = it & 1
        last = it == 15
        cur = S0o if odd else S0e
        nxt = S0e if odd else S0o
        st = stats(cur[0]) if not flag("nostat") else [""]*24
        sa = [st[0:6], st[6:12], st[12:18], st[18:24]] if last else [st[0:3], st[3:6], st[6:9], st[9:12]]
        rd = reads(S1, it, 1)
        E("s_waitcnt lgkmcnt(3)")
        E(mf(cur, dft, 0)); EL(rd[0:3]); EL(sa[0])
        E("s_waitcnt lgkmcnt(4)")
        E(mf(cur, dft, 1)); EL(rd[3:6]); EL(sa[1])
        E("s_waitcnt lgkmcnt(6)")
        E(mf(cur, dft, 2)); EL(sa[2]); EL(dma_slot(ST))
        E(mf(cur, dft, 3)); EL(sa[3]); EL(dma_slot(ST))
        if not last:
            E("s_waitcnt lgkmcnt(3)")
            E(mf(S1, dft, 0))
            rd = reads(nxt, it + 1, 0)
            need = [f"W{it+1}"] + ([f"X{(it+1)//2}"] if odd else [])
            E(f"s_waitcnt vmcnt({ST.wait(need)}) lgkmcnt(0)")
            E("s_barrier")
            if it & 1: stamp(2 + it // 2, True)
            ST.bar = it
            EL(rd[0:3])
            E(mf(S1, dft, 1)); EL(rd[3:6]); EL(st[12:15])
            if it == 9:
                E(f"global_load_dwordx2 {v(vNON,2)}, {v(vZERO)}, s[24:25] sc1"); ST.issued.append("N")
            if it == opt("touch", 2):
                lab = newlab("nt")
                E(f"s_cbranch_vccz {lab}")
                E(f"global_load_dword {v(vTA+4)}, {v(vTA,2)}, off")
                E(f"{lab}:")
            if it == opt("touch3", 8):
                lab = newlab("nt")
                E(f"s_cmp_lg_u32 {s(sW)}, 6")
                E(f"s_cbranch_scc1 {lab}")
                E(f"global_load_dword {v(vTA+4)}, {v(vTA+2)}, s[28:29]")
                E(f"{lab}:")
            E(mf(S1, dft, 2)); EL(st[15:19]); EL(dma_slot(ST))
            E(mf(S1, dft, 3)); EL(st[19:23]); EL(dma_slot(ST))
            if not dft and not flag("nosel"): E(selG)
            E(st[23])
            if not dft and not flag("nosel"): E(selU)
        else:
            E(f"v_add_f32 {v(vSUM)}, {v(vSUM)}, {v(vSUM+1)}")
            E(f"v_add_f32 {v(vSQ)}, {v(vSQ)}, {v(vSQ+1)}")
            E("s_waitcnt lgkmcnt(1)")
            if not dft: E(selG); E(selU)
            E(f"ds_write2_b32 {v(vSTW)}, {v(vSUM)}, {v(vSQ)} offset0:0 offset1:4")
            E(mf(S1, dft, 0))
            if not dft:
                E("s_nop 5")
                E(f"ds_write_b32 {v(vCSW)}, {v(vCSD)}")
            E(mf(S1, dft, 1))
            E("s_waitcnt lgkmcnt(0)")
            E("s_barrier")
            stamp(2 + it // 2, True)
            ST.bar = it
            E(f"ds_read_b128 {v(vX,4)}, {v(vSTR)}")
            E(f"ds_read_b128 {v(vX+4,4)}, {v(vSTR)} offset:16")
            if not dft: E(f"ds_read_b32 {v(vX+8)}, {v(vCSR_)}")
            E(mf(S1, dft, 2)); EL(dma_slot(ST)); EL(dma_slot(ST))
            E(mf(S1, dft, 3)); EL(dma_slot(ST)); EL(dma_slot(ST))
    assert not ST.todo
    if not dft: E("s_branch L_epi")
def _keep(x):
    if flag("nodma") and "buffer_load" in x: return False
    if flag("nolds") and "ds_read" in x: return False
    if flag("nomfma") and "v_mfma" in x: return False
    return True
L[LOOP_START:] = [x for x in L[LOOP_START:] if _keep(x)]

E("L_epi:")
stamp(3)
vM, vSD, vCS, vRS, vTt = 120, 121, 122, 123, 124
E("s_waitcnt lgkmcnt(0)")
E(f"v_add_f32 {v(vX)}, {v(vX)}, {v(vX+1)}\nv_add_f32 {v(vX+2)}, {v(vX+2)}, {v(vX+3)}")
E(f"v_add_f32 {v(vX+4)}, {v(vX+4)}, {v(vX+5)}\nv_add_f32 {v(vX+6)}, {v(vX+6)}, {v(vX+7)}")
E(f"v_add_f32 {v(vCS)}, {v(vCSD)}, {v(vX+8)}")
E(f"v_add_f32 {v(vM)}, {v(vX)}, {v(vX+2)}")
E(f"v_add_f32 {v(vSD)}, {v(vX+4)}, {v(vX+6)}")
E(f"ds_write_b32 {v(vPW)}, {v(vCS)}")
E(f"v_mul_f32 {v(vM)}, {f32(1/512)}, {v(vM)}")
E(f"v_mul_f32 {v(vSD)}, {f32(1/512)}, {v(vSD)}")
E(f"v_fma_f32 {v(vSD)}, -{v(vM)}, {v(vM)}, {v(vSD)}")
E(f"v_max_f32 {v(vSD)}, 0, {v(vSD)}")
E(f"v_cvt_pk_bf16_f32 {v(vTt)}, {v(vM)}, {v(vSD)}")
E(f"v_lshlrev_b32 {v(vM)}, 16, {v(vTt)}")
E(f"v_and_b32 {v(vSD)}, {s(sMASK)}, {v(vTt)}")
E(f"v_add_f32 {v(vSD)}, {f32(1e-5)}, {v(vSD)}")
E(f"v_cvt_pk_bf16_f32 {v(vTt)}, {v(vSD)}, {v(vSD)}")
E(f"v_and_b32 {v(vSD)}, {s(sMASK)}, {v(vTt)}")
E(f"v_sqrt_f32 {v(vSD)}, {v(vSD)}")
E(f"v_lshlrev_b32 v6, 4, {v(vL)}")
E(f"v_cvt_pk_bf16_f32 {v(vTt)}, {v(vSD)}, {v(vSD)}")
E(f"v_and_b32 {v(vSD)}, {s(sMASK)}, {v(vTt)}")
E(f"v_rcp_f32 {v(vRS)}, {v(vSD)}")
E(f"s_nop 0")
E(f"ds_write_b32 {v(vPW)}, {v(vRS)} offset:256")

def wreg(j, cb):
    return (184 + 8*j if j < 9 else 128 + 8*(j-9)) + 4*cb
def trreads(j):
    for cb in range(2):
        for hh in range(2):
            q = 2*PP[j % 9] + hh
            E(f"ds_read_b64_tr_b16 {v(wreg(j,cb)+2*hh,2)}, {v(vA2 + 2*(q//8) + cb)} offset:{(q%8)*Q}")
def wreg7(j, tb): return (192 if j < 8 else 128) + 8*(j & 7) + 4*tb
def rd7(grp):
    lut = sum(PP[(4*grp + g) % 9] << (4*g) for g in range(4))
    E(f"v_mov_b32 v2, {lut}")
    E(f"v_bfe_u32 v2, v2, {v(vA2+1)}, 4")
    E(f"v_lshl_add_u32 v2, v2, 14, {v(vA2)}")
    E(f"v_xor_b32 v3, 32, v2\nv_xor_b32 v4, 64, v2\nv_xor_b32 v5, 96, v2")
    kh, tb = grp >> 1, grp & 1
    for jj in range(8):
        j = 8*kh + jj
        E(f"ds_read_b64 {v(wreg7(j,tb),2)}, v{2 + (jj >> 1)} offset:{(jj&1)*16}")
        E(f"ds_read_b64 {v(wreg7(j,tb)+2,2)}, v{2 + (jj >> 1)} offset:{(jj&1)*16+Q}")
def sign7(grp):
    kh, tb = grp >> 1, grp & 1
    for jj in range(8):
        for u in (2, 3):
            r = wreg7(8*kh + jj, tb) + u
            E(f"v_xor_b32 {v(r)}, {s(sP)}, {v(r)}")
def r2dma(k0, k1):
    for k in range(k0, k1):
        ST.todo = [(f"T{k}", 0), (f"T{k}", 1)]
        for b in range(2):
            m0, ld, post = ST.next()
            EL([m0, "s_nop 0", ld] + post)
NE = opt("ne", 7)
E(f"s_cmp_eq_u32 {s(sW)}, 7")
E("s_cbranch_scc1 L_e7")
E(f"s_waitcnt vmcnt({ST.wait([f'T{k}' for k in range(NE)])})")
for j in range(NE): trreads(j)
E("s_waitcnt lgkmcnt(0)")
r2dma(9, 9 + NE)
E("s_branch L_e8")
E("L_e7:")
E(f"s_waitcnt vmcnt(10)")
rd7(0)
E("s_waitcnt lgkmcnt(0)")
r2dma(9, 13)
E("L_e8:")
E(f"s_cmp_eq_u32 {s(sDFT)}, 1")
E("s_cbranch_scc1 L_epi_dft")

C0 = -2.0 * math.log2(math.e) * math.sqrt(2.0/math.pi)
C1 = C0 * 0.044715
P0 = 80
CSR = 88
for p in range(2):
    for q in range(4):
        E(f"ds_read_b128 {v(CSR+16*p+4*q,4)}, {v(vPR)} offset:{128*p+32*q}")
E(f"v_mov_b32 {v(P0)}, {v(vM)}")
E(f"v_mul_f32 {v(P0+1)}, {v(vSD)}, {v(vSD)}")
E(f"v_mul_f32 {v(P0+2)}, {f32(C0)}, {v(vRS)}")
E(f"v_mul_f32 {v(vTt)}, {v(vRS)}, {v(vRS)}")
E(f"v_mul_f32 {v(vTt)}, {v(vTt)}, {v(vRS)}")
E(f"v_mul_f32 {v(P0+3)}, {f32(C1)}, {v(vTt)}")
for k in range(4):
    E(f"v_mov_b32 {v(P0+4+k)}, {v(P0+k)}")
E(f"s_lshl_b32 {s(sT0)}, {s(sI)}, 2")
E(f"s_lshl_b32 {s(sT1)}, {s(sRH)}, 1")
for k in range(4):
    E(f"v_permlane32_swap_b32 {v(P0+k)}, {v(P0+4+k)}")
E(f"s_add_u32 {s(sT0)}, {s(sT0)}, {s(sT1)}")
E(f"s_and_b32 {s(sT1)}, {s(sCQ)}, 1")
E(f"s_add_u32 {s(sT2)}, {s(sT0)}, {s(sT1)}")
E(f"s_xor_b32 {s(sT3)}, {s(sT2)}, 1")
E(f"s_mul_i32 {s(sT2)}, {s(sT2)}, {A_RB}")
E(f"s_mul_i32 {s(sT3)}, {s(sT3)}, {A_RB}")
E(f"s_lshl_b32 {s(sT0)}, {s(sC)}, 13")
E(f"s_lshl_b32 {s(sT1)}, {s(sCQ)}, 11")
E(f"s_add_u32 {s(sT0)}, {s(sT0)}, {s(sT1)}")
E(f"s_add_u32 {s(sT2)}, {s(sT2)}, {s(sT0)}")
E(f"s_add_u32 {s(sT3)}, {s(sT3)}, {s(sT0)}")
E(f"s_lshr_b32 {s(sT0)}, {s(sC)}, 1")
hdelta(sT0, sT0)
skip3(6, 2, s(sT0))
E("s_waitcnt lgkmcnt(0)")
TMP = 136
for rb in range(2):
    PM = v(P0+4*rb, 2); PK = v(P0+4*rb+2, 2)
    for half in range(2):
        O = TMP + 8 + 4*((rb*2+half) & 1)
        prs = range(4*half, 4*half+4)
        G = lambda i: v(acc(rb,0)+2*i, 2)
        U = lambda i: v(acc(rb,1)+2*i, 2)
        T = lambda i: v(TMP + 2*(i&3), 2)
        for i in prs:
            E(f"v_pk_fma_f32 {G(i)}, {v(CSR+2*i,2)}, {PM}, {G(i)} op_sel_hi:[1,0,1] neg_lo:[0,1,0] neg_hi:[0,1,0]")
        for i in prs:
            E(f"v_pk_mul_f32 {T(i)}, {G(i)}, {G(i)}")
        for i in prs:
            E(f"v_pk_fma_f32 {T(i)}, {T(i)}, {PK}, {PK} op_sel:[0,1,0] op_sel_hi:[1,1,0]")
        for i in prs:
            E(f"v_pk_mul_f32 {T(i)}, {T(i)}, {G(i)}")
        for i in prs:
            E(f"v_exp_f32 {v(TMP+2*(i&3))}, {v(TMP+2*(i&3))}")
            E(f"v_exp_f32 {v(TMP+2*(i&3)+1)}, {v(TMP+2*(i&3)+1)}")
        for i in prs:
            E(f"v_pk_fma_f32 {U(i)}, {v(CSR+16+2*i,2)}, {PM}, {U(i)} op_sel_hi:[1,0,1] neg_lo:[0,1,0] neg_hi:[0,1,0]")
        for i in prs:
            E(f"v_pk_fma_f32 {T(i)}, {T(i)}, {PM}, {PM} op_sel:[0,1,1] op_sel_hi:[1,1,1]")
        for i in prs:
            E(f"v_rcp_f32 {v(TMP+2*(i&3))}, {v(TMP+2*(i&3))}")
            E(f"v_rcp_f32 {v(TMP+2*(i&3)+1)}, {v(TMP+2*(i&3)+1)}")
        for i in prs:
            E(f"v_pk_mul_f32 {G(i)}, {G(i)}, {U(i)}")
        for i in prs:
            E(f"v_pk_mul_f32 {G(i)}, {G(i)}, {T(i)}")
        for i in prs:
            E(f"v_cvt_pk_bf16_f32 {v(O+(i&3))}, {v(acc(rb,0)+2*i)}, {v(acc(rb,0)+2*i+1)}")
        E(f"buffer_store_dwordx4 {v(O,4)}, v6, {s(sWS,4)}, {s(sT2+rb)} offen offset:{1024*half} sc1")
stamp(1)
E("s_waitcnt vmcnt(4)")
E("s_branch L_p2")

E("L_epi_dft:")
RR = 136; FR = 80
E(f"v_mov_b32 v5, {v(vPR)}")
for q in range(4):
    for rb in range(2):
        E(f"ds_read_b128 {v(RR+16*rb+4*q,4)}, v5 offset:{256+128*rb+32*q}")
E(f"s_mov_b32 {s(sK)}, {f32(math.cos(math.pi/8))}")
E(f"s_mov_b32 {s(sK+1)}, {f32(math.sin(math.pi/8))}")
E(f"s_mov_b32 {s(sK+2)}, {f32(math.sqrt(0.5))}")
E(f"s_mov_b32 {s(sK+3)}, {f32(math.sqrt(0.5))}")
E(f"v_and_b32 v2, 31, {v(vL)}")
E(f"v_lshrrev_b32 v3, 5, {v(vL)}")
E(f"v_lshlrev_b32 v4, 20, v3")
E(f"v_lshl_add_u32 v4, v2, 4, v4")
E(f"s_sub_u32 {s(sT0)}, {s(sC)}, 14")
E(f"s_lshl_b32 {s(sT0)}, {s(sT0)}, 11")
E(f"s_lshl_b32 {s(sT1)}, {s(sCQ)}, 9")
E(f"s_add_u32 {s(sT0)}, {s(sT0)}, {s(sT1)}")
E(f"v_add_u32 v4, {s(sT0)}, v4")
zskip(4, 2, 3)
E(f"s_lshl_b32 {s(sT0)}, {s(sI)}, 13")
E(f"s_lshl_b32 {s(sT1)}, {s(sRH)}, 12")
E(f"s_add_u32 {s(sT0)}, {s(sT0)}, {s(sT1)}")
E(f"s_add_u32 {s(sT0)}, {s(sT0)}, {Z_OFF}")
E(f"s_and_b32 {s(sT1)}, {s(sCQ)}, 1")
E(f"s_mul_i32 {s(sT1)}, {s(sT1)}, 0x80008000")
val = {}
for rb in range(2):
    for i in range(8):
        val[i + 8*rb] = [acc(rb,0)+2*i, acc(rb,1)+2*i]
free = [FR + 2*k for k in range(16)]
def padd(d, a, b, neg=False):
    E(f"v_pk_add_f32 {v(d,2)}, {v(a,2)}, {v(b,2)}" + (" neg_lo:[0,1] neg_hi:[0,1]" if neg else ""))
def tw(k):
    return {1:(sK,0,0,1), 3:(sK,1,0,0), 5:(sK,1,1,0), 7:(sK,0,1,1), 2:(sK+2,0,0,0), 6:(sK+2,0,1,0)}[k]
def twiddle(grp, tmp):
    global free
    for (a, b, k) in grp:
        if k in (0, 4):
            free += val[b]; val[b] = tmp[a]
        else:
            sp, sc, nc, ss = tw(k); x, y = tmp[a]; br, bi = val[b]
            ng = f" neg_lo:[0,1] neg_hi:[0,1]" if nc else ""
            E(f"v_pk_mul_f32 {v(br,2)}, {v(x,2)}, {s(sp,2)} op_sel:[0,{sc}] op_sel_hi:[1,{sc}]{ng}")
            E(f"v_pk_mul_f32 {v(bi,2)}, {v(y,2)}, {s(sp,2)} op_sel:[0,{sc}] op_sel_hi:[1,{sc}]{ng}")
    for (a, b, k) in grp:
        if k not in (0, 4):
            sp, sc, nc, ss = tw(k); x, y = tmp[a]; br, bi = val[b]
            E(f"v_pk_fma_f32 {v(br,2)}, {v(y,2)}, {s(sp,2)}, {v(br,2)} op_sel:[0,{ss},0] op_sel_hi:[1,{ss},1]")
            E(f"v_pk_fma_f32 {v(bi,2)}, {v(x,2)}, {s(sp,2)}, {v(bi,2)} op_sel:[0,{ss},0] op_sel_hi:[1,{ss},1] neg_lo:[1,0,0] neg_hi:[1,0,0]")
            free += tmp[a]
def butterflies(grp):
    tmp = {}
    for (a, b, k) in grp:
        t = [free.pop(), free.pop()]
        tmp[a] = t
        ar, ai = val[a]; br, bi = val[b]
        if k == 4:
            padd(t[0], ai, bi, True); padd(t[1], br, ar, True)
        else:
            padd(t[0], ar, br, True); padd(t[1], ai, bi, True)
    for (a, b, k) in grp:
        ar, ai = val[a]; br, bi = val[b]
        padd(ar, ar, br); padd(ai, ai, bi)
    twiddle(grp, tmp)
for c0 in (0, 4):
    grp = [(k, k + 8, k) for k in range(c0, c0 + 4)]
    E(f"s_waitcnt lgkmcnt({4 - c0})")
    tmp = {}
    for (a, b, k) in grp:
        for p in range(2):
            E(f"v_pk_mul_f32 {v(val[a][p],2)}, {v(val[a][p],2)}, {v(RR+2*k,2)}")
    for (a, b, k) in grp:
        t = [free.pop(), free.pop()]; tmp[a] = t
        ar, ai = val[a]; br, bi = val[b]; R = v(RR+16+2*k, 2)
        if k == 4:
            E(f"v_pk_fma_f32 {v(t[0],2)}, {v(bi,2)}, {R}, {v(ai,2)} neg_lo:[1,0,0] neg_hi:[1,0,0]")
            E(f"v_pk_fma_f32 {v(t[1],2)}, {v(br,2)}, {R}, {v(ar,2)} neg_lo:[0,0,1] neg_hi:[0,0,1]")
        else:
            E(f"v_pk_fma_f32 {v(t[0],2)}, {v(br,2)}, {R}, {v(ar,2)} neg_lo:[1,0,0] neg_hi:[1,0,0]")
            E(f"v_pk_fma_f32 {v(t[1],2)}, {v(bi,2)}, {R}, {v(ai,2)} neg_lo:[1,0,0] neg_hi:[1,0,0]")
    for (a, b, k) in grp:
        ar, ai = val[a]; br, bi = val[b]; R = v(RR+16+2*k, 2)
        E(f"v_pk_fma_f32 {v(ar,2)}, {v(br,2)}, {R}, {v(ar,2)}")
        E(f"v_pk_fma_f32 {v(ai,2)}, {v(bi,2)}, {R}, {v(ai,2)}")
    twiddle(grp, tmp)
OB = RR
def brev(x): return int(f"{x:04b}"[::-1], 2)
for hb in (0, 8):
    butterflies([(hb + k, hb + k + 4, 2*k) for k in range(4)])
    butterflies([(hb + 4*g + k, hb + 4*g + k + 2, 4*k) for g in range(2) for k in range(2)])
    for qb in (0, 4):
        butterflies([(hb + qb + 2*g, hb + qb + 2*g + 1, 0) for g in range(2)])
        outs = []
        for g in range(2):
            p = hb + qb + 2*g; r = brev(p)
            o = OB + 4*(p >> 1)
            outs.append((r, o))
            for u in range(2):
                re, im = val[p + u]
                E(f"v_cvt_pk_bf16_f32 {v(o+u)}, {v(re)}, {v(re+1)}")
                E(f"v_cvt_pk_bf16_f32 {v(o+2+u)}, {v(im)}, {v(im+1)}")
        if hb:
            for r, o in outs:
                for u in range(4): E(f"v_xor_b32 {v(o+u)}, {s(sT1)}, {v(o+u)}")
        for r, o in outs:
            E(f"s_add_u32 {s(sT2 + (o >> 2 & 1))}, {s(sT0)}, {r*16*8192}")
        for r, o in outs:
            E(f"v_permlane32_swap_b32 {v(o)}, {v(o+1)}")
            E(f"v_permlane32_swap_b32 {v(o+2)}, {v(o+3)}")
        for r, o in outs:
            E(f"buffer_store_dwordx4 {v(o,4)}, v4, {s(sWS,4)}, {s(sT2 + (o >> 2 & 1))} offen sc1")
stamp(1)
E("s_waitcnt vmcnt(8)")

E("L_p2:")
stamp(4)
HB = 80
ND = 6
E(f"s_mul_i32 {s(sT2)}, {s(sI)}, 14")
E(f"s_add_u32 {s(sT2)}, {s(sT2)}, {s(sC)}")
E(f"s_add_u32 {s(sT2)}, {s(sT2)}, 32")
E(f"s_lshl_b32 {s(sT0)}, {s(sC)}, 4")
E(f"s_add_u32 {s(sT0)}, {s(sT0)}, {s(sI)}")
E(f"s_sub_u32 {s(sT0)}, {s(sT0)}, {14*16}")
E(f"s_cmp_eq_u32 {s(sDFT)}, 1")
E(f"s_cselect_b32 {s(sT2)}, {s(sT0)}, {s(sT2)}")
E(f"s_lshl_b32 {s(sT2)}, {s(sT2)}, 7")
E(f"s_add_u32 {s(sT2)}, {s(sT2)}, {FL_OFF}")
srd(sX1, 26, 2048*1024)
E(f"s_and_b32 {s(sT3)}, {s(sRT)}, 1")
E(f"s_lshl_b32 {s(sT3)}, {s(sT3)}, 10")
E(f"s_add_u32 {s(sT3)}, {s(sT3)}, {s(sR)}")
E(f"s_lshl_b32 {s(sT3)}, {s(sT3)}, 10")
E(f"s_lshl_b32 {s(sT1)}, {s(sCT)}, 7")
E(f"s_add_u32 {s(sT3)}, {s(sT3)}, {s(sT1)}")

def nonce_and_flag(nyoung, tag):
    E(f"v_readfirstlane_b32 {s(sT0)}, {v(vNON)}")
    E(f"s_mov_b32 {s(sSP)}, 0")
    E(f"v_mov_b32 {v(HB)}, 0")
    E(f"s_cmp_lg_u32 {s(sT0)}, 0")
    E(f"s_cbranch_scc1 L_havenon{tag}")
    E(f"L_spinnon{tag}:")
    E(f"global_load_dwordx2 {v(vNON,2)}, {v(HB)}, s[24:25] sc1")
    E(f"s_add_u32 {s(sSP)}, {s(sSP)}, 1")
    E("s_waitcnt vmcnt(0)")
    E(f"v_readfirstlane_b32 {s(sT0)}, {v(vNON)}")
    E(f"s_cmp_ge_u32 {s(sSP)}, {SPIN}")
    E(f"s_cbranch_scc1 L_havenon{tag}")
    E(f"s_cmp_eq_u32 {s(sT0)}, 0")
    E(f"s_cbranch_scc1 L_spinnon{tag}")
    E(f"L_havenon{tag}:")
    E(f"s_waitcnt vmcnt({nyoung})")
    E("s_barrier")
    if tag == "f":
        E(f"s_cmp_lg_u32 {s(sW)}, 0")
        E(f"s_cbranch_scc1 L_noflag")
        E("s_mov_b64 exec, 1")
        E(f"buffer_store_dwordx2 {v(vNON,2)}, {v(HB)}, {s(sWS,4)}, {s(sT2)} offen sc1")
        E("s_mov_b64 exec, -1")
        E("L_noflag:")
def poll(tag, vFO):
    E(f"s_mov_b32 {s(sSP)}, 0")
    E(f"L_poll{tag}:")
    E(f"buffer_load_dwordx2 {v(HB+2,2)}, {v(vFO)}, {s(sWS,4)}, 0 offen sc1")
    E(f"s_add_u32 {s(sSP)}, {s(sSP)}, 1")
    E("s_waitcnt vmcnt(0)")
    E(f"v_cmp_ne_u64 vcc, {v(HB+2,2)}, {v(vNON,2)}")
    E(f"s_cmp_ge_u32 {s(sSP)}, {SPIN}")
    E(f"s_cbranch_scc1 L_polled{tag}")
    E(f"s_cbranch_vccz L_polled{tag}")
    E(f"s_sleep {opt('sleep', 2)}")
    E(f"s_branch L_poll{tag}")
    E(f"L_polled{tag}:")
def acc2(tb, cb): return vACC + (tb*2+cb)*16
vOUT = 7
def out_addr():
    E(f"v_lshrrev_b32 v2, 3, v0")
    E(f"v_and_b32 v3, 7, v0")
    E(f"v_lshlrev_b32 {v(vOUT)}, 14, v2")
    E(f"v_lshl_add_u32 {v(vOUT)}, v3, 4, {v(vOUT)}")
def stream2(ld, mfma, wfree, waits):
    bufs = {j: HB + 8*j for j in range(ND)}
    issued = ND; xl = 0
    for j in range(16):
        E(f"s_waitcnt vmcnt({2*(issued - j - 1) + xl})")
        EL(waits.get(j, []))
        for tb in range(2):
            for cb in range(2):
                E(mfma(j, tb, cb, bufs[j]))
        for fr in (bufs[j], wfree(j)):
            if issued < 16:
                bufs[issued] = fr
                ld(issued, fr); issued += 1
        if issued == 16 and not xl:
            E(f"buffer_load_dwordx4 v[12:15], {v(vOUT)}, {s(sX0,4)}, {s(sT3)} offen")
            xl = 1

E(f"s_cmp_eq_u32 {s(sW)}, 7")
E("s_cbranch_scc1 L_p2_dft")
for j in range(NE, 9): trreads(j)
if NE < 7:
    E("s_waitcnt lgkmcnt(0)")
    r2dma(9 + NE, 16)
for j in range(9, 9 + NE): trreads(j)
E(f"s_mul_i32 {s(sT0)}, {s(sR)}, {14*128}")
E(f"s_lshl_b32 {s(sT1)}, {s(sW)}, 8")
E(f"s_add_u32 {s(sT0)}, {s(sT0)}, {s(sT1)}")
E(f"s_add_u32 {s(sT0)}, {s(sT0)}, {FL_OFF + 32*128}")
E(f"v_and_b32 v4, 1, {v(vL)}")
E(f"v_lshlrev_b32 v4, 7, v4")
E(f"v_add_u32 v4, {s(sT0)}, v4")
E(f"v_lshlrev_b32 v6, 4, {v(vL)}")
hdelta(sT0, sW)
skip3(6, 2, s(sT0))
E(f"v_add_u32 v5, {A_RB}, v6")
out_addr()
nonce_and_flag(2*(7 - NE), "f")
stamp(5)
E(f"s_mul_i32 {s(sT0)}, {s(sRT)}, {2*A_RB}")
E(f"s_lshl_b32 {s(sT1)}, {s(sW)}, 14")
E(f"s_add_u32 {s(sT0)}, {s(sT0)}, {s(sT1)}")
poll("f", 4)
stamp(6)
def ldh(j, B):
    E(f"buffer_load_dwordx4 {v(B,4)}, v6, {s(sWS,4)}, {s(sT0)} offen offset:{(j&3)*1024} sc1")
    E(f"buffer_load_dwordx4 {v(B+4,4)}, v5, {s(sWS,4)}, {s(sT0)} offen offset:{(j&3)*1024} sc1")
    if (j & 3) == 3: E(f"s_add_u32 {s(sT0)}, {s(sT0)}, 4096")
for j in range(ND): ldh(j, HB + 8*j)
for j in range(9 + NE, 16): trreads(j)
def mf_f(j, tb, cb, B):
    A = v(acc2(tb, cb), 16)
    return f"v_mfma_f32_32x32x16_bf16 {A}, {v(wreg(j,cb),4)}, {v(B+4*tb,4)}, {A if j else 0}"
stream2(ldh, mf_f, lambda j: wreg(j, 0), {0: ["s_waitcnt lgkmcnt(0)"]})
E("s_branch L_red")

E("L_p2_dft:")
rd7(1)
E(f"s_cmp_ge_u32 {s(sCT)}, 4")
E(f"s_cselect_b32 {s(sP)}, 0x80008000, 0")
sign7(0)
E("s_waitcnt lgkmcnt(0)")
r2dma(13, 16)
rd7(2)
sign7(1)
nonce_and_flag(6, "d")
stamp(5)
out_addr()
E(f"v_and_b32 v11, 31, {v(vL)}")
E(f"v_lshlrev_b32 v11, 7, v11")
E(f"v_add_u32 v11, {FL_OFF}, v11")
E(f"v_and_b32 v2, 31, {v(vL)}")
E(f"v_lshrrev_b32 v3, 5, {v(vL)}")
E(f"s_lshl_b32 {s(sT0)}, {s(sCT)}, 6")
E(f"s_cmp_ge_u32 {s(sCT)}, 4")
E("s_cbranch_scc1 L_direct")
E(f"s_sub_u32 {s(sT0)}, 256, {s(sT0)}")
E(f"v_sub_u32 v2, {s(sT0)}, v2")
E(f"v_lshlrev_b32 v6, 4, v2")
E(f"v_lshl_add_u32 v6, v3, 12, v6")
E(f"v_subrev_u32 v10, 512, v6")
E(f"s_sub_u32 {s(sT1)}, 16, {s(sR)}")
E(f"s_and_b32 {s(sT1)}, {s(sT1)}, 15")
E("s_branch L_dft2")
E("L_direct:")
E(f"s_sub_u32 {s(sT0)}, {s(sT0)}, 256")
E(f"v_add_u32 v2, {s(sT0)}, v2")
E(f"v_lshlrev_b32 v6, 4, v2")
E(f"v_lshl_add_u32 v6, v3, 12, v6")
E(f"v_add_u32 v10, 512, v6")
E(f"s_mov_b32 {s(sT1)}, {s(sR)}")
E("L_dft2:")
zskip(6, 2, 3)
zskip(10, 2, 3)
E(f"s_lshl_b32 {s(sT0)}, {s(sT1)}, 17")
E(f"s_add_u32 {s(sT0)}, {s(sT0)}, {Z_OFF}")
E("s_waitcnt vmcnt(0) lgkmcnt(0)")
rd7(3)
sign7(2)
E("s_waitcnt lgkmcnt(0)")
sign7(3)
poll("d", 11)
stamp(6)
def ldz(j, B):
    E(f"buffer_load_dwordx4 {v(B,4)}, v6, {s(sWS,4)}, {s(sT0)} offen sc1")
    E(f"buffer_load_dwordx4 {v(B+4,4)}, v10, {s(sWS,4)}, {s(sT0)} offen sc1")
    E(f"s_add_u32 {s(sT0)}, {s(sT0)}, 8192")
for j in range(ND): ldz(j, HB + 8*j)
def mf_d(j, tb, cb, B):
    A = v(acc2(tb, cb), 16)
    return f"v_mfma_f32_32x32x16_bf16 {A}, {v(B+4*cb,4)}, {v(wreg7(j,tb),4)}, {A if j else 0}"
stream2(ldz, mf_d, lambda j: wreg7(j, 0), {})

E("L_red:")
stamp(7)
E(f"v_bfe_u32 v2, {v(vL)}, 2, 3")
E(f"v_lshlrev_b32 v2, 13, v2")
E(f"v_and_b32 v3, 3, {v(vL)}")
E(f"v_lshl_add_u32 v2, v3, 8, v2")
E(f"v_lshrrev_b32 v3, 5, {v(vL)}")
E(f"v_and_b32 v4, 7, {v(vL)}")
E(f"v_xor_b32 v3, v3, v4")
E(f"v_lshl_add_u32 v2, v3, 4, v2")
E(f"v_add_u32 {v(HB)}, {s(sWd)}, v2")
for q in range(1, 4): E(f"v_xor_b32 {v(HB+q)}, {32*q}, {v(HB)}")
for q in range(4): E(f"v_add_u32 {v(HB+4+q)}, {8*Q}, {v(HB+q)}")
for tb in range(2):
    for cb in range(2):
        for q in range(4):
            E(f"ds_write_b128 {v(HB+4*tb+q)}, {v(acc2(tb,cb)+4*q,4)} offset:{cb*128}")
E(f"v_lshrrev_b32 v2, 3, v0")
E(f"v_and_b32 v3, 7, v0")
E(f"v_lshlrev_b32 v9, 1, v3")
E(f"v_and_b32 v10, 7, v2")
E(f"v_xor_b32 v9, v9, v10")
E(f"v_lshlrev_b32 v9, 4, v9")
E(f"v_and_b32 v10, 3, v2")
E(f"v_lshl_add_u32 v9, v10, 8, v9")
E(f"v_lshrrev_b32 v10, 2, v2")
E(f"v_lshl_add_u32 v9, v10, 13, v9")
E(f"v_xor_b32 v10, 16, v9")
E(f"v_or_b32 v3, {s(sCT)}, v3")
E(f"v_cmp_ne_u32 vcc, 0, v3")
E(f"s_mov_b32 {s(sK)}, {f32(-math.log2(math.e))}")
E("s_waitcnt lgkmcnt(0)")
E("s_barrier")
stamp(8)
RD = 128
for w in range(8):
    E(f"ds_read_b128 {v(RD+8*w,4)}, v9 offset:{w*1024}")
    E(f"ds_read_b128 {v(RD+8*w+4,4)}, v10 offset:{w*1024}")
def sum8(d, a):
    for k in range(4):
        E(f"v_pk_add_f32 {v(RD+8*d+2*k,2)}, {v(RD+8*d+2*k,2)}, {v(RD+8*a+2*k,2)}")
E("s_waitcnt lgkmcnt(12)"); sum8(0, 1)
E("s_waitcnt lgkmcnt(8)"); sum8(2, 3)
E("s_waitcnt lgkmcnt(4)"); sum8(4, 5); sum8(0, 2)
E("s_waitcnt lgkmcnt(2)"); sum8(4, 6); sum8(0, 4)
T = vACC
for k in range(4):
    E(f"v_pk_mul_f32 {v(T+2*k,2)}, {v(RD+2*k,2)}, {s(sK,2)} op_sel_hi:[1,0]")
for k in range(8):
    E(f"v_exp_f32 {v(T+k)}, {v(T+k)}")
E("s_nop 0")
for k in range(4):
    E(f"v_pk_add_f32 {v(T+2*k,2)}, {v(T+2*k,2)}, 1.0 op_sel_hi:[1,0]")
for k in range(8):
    E(f"v_rcp_f32 {v(T+k)}, {v(T+k)}")
E("s_waitcnt vmcnt(0) lgkmcnt(0)")
E(f"v_cndmask_b32 {v(RD+56)}, 0, {v(RD+56)}, vcc")
for k in range(4):
    E(f"v_lshlrev_b32 {v(T+8+2*k)}, 16, v{12+k}")
    E(f"v_and_b32 {v(T+9+2*k)}, {s(sMASK)}, v{12+k}")
for k in range(4):
    E(f"v_pk_mul_f32 {v(T+2*k,2)}, {v(T+2*k,2)}, {v(RD+2*k,2)}")
for k in range(4):
    E(f"v_pk_fma_f32 {v(T+2*k,2)}, {v(T+2*k,2)}, {v(RD+56+2*k,2)}, {v(T+8+2*k,2)}")
for k in range(4):
    E(f"v_cvt_pk_bf16_f32 v{12+k}, {v(T+2*k)}, {v(T+2*k+1)}")
E(f"buffer_store_dwordx4 v[12:15], {v(vOUT)}, {s(sX1,4)}, {s(sT3)} offen" + (" sc1" if flag("outsc1") else "") + (" nt" if flag("outnt") else ""))
if STAMP:
    E("s_waitcnt vmcnt(0)")
    stamp(9)
    E("s_waitcnt lgkmcnt(0)")
    E(f"s_lshl_b32 s78, s2, 3")
    E(f"s_add_u32 s78, s78, {s(sW)}")
    E(f"s_lshl_b32 s78, s78, 6")
    E(f"s_add_u32 s78, s78, {STAMP_OFF}")
    E(f"s_mov_b32 {s(sWS+2)}, 0x2000000")
    for k in range(12):
        E(f"v_mov_b32 {v(200+k)}, s{80+2*min(k,NST-1)}")
    E(f"v_mov_b32 v212, 0")
    E("s_mov_b64 exec, 1")
    for k in range(3):
        E(f"buffer_store_dwordx4 {v(200+4*k,4)}, v212, {s(sWS,4)}, s78 offen offset:{16*k}")
E("L_end:")
E("s_endpgm")

E('.section .rodata,"a"')
E(".p2align 6")
E(f""".amdhsa_kernel {KNAME}
.amdhsa_next_free_vgpr 256
.amdhsa_next_free_sgpr 102
.amdhsa_accum_offset 256
.amdhsa_group_segment_fixed_size 0
.amdhsa_kernarg_size 96
.amdhsa_user_sgpr_count 2
.amdhsa_user_sgpr_kernarg_segment_ptr 1
.amdhsa_system_sgpr_workgroup_id_x 1
.end_amdhsa_kernel""")
open(OUT, "w").write("\n".join(L) + "\n")
```

```python
import sys, math, struct

ARGS = sys.argv[1:]
def flag(n): return ("--" + n) in ARGS
def opt(n, d):
    for a in ARGS:
        if a.startswith("--" + n + "="): return int(a.split("=")[1])
    return d
STAMP = flag("stamp")
OUT = [a for a in ARGS if not a.startswith("--")][0]
KNAME = "recurrent_scan__spectral_fnet__geglu_ffn__prompt_kernel"

A_RB = 112 * 1024
Z_OFF = 0x700000
FL_OFF = 0x901000
OVF = 0xA00000
WS_SIZE = 0x1400000
STAMP_OFF = 0x1800000
SPIN = 1 << 16

L = []
def E(s=""):
    for line in s.split("\n"):
        if not line.strip(): continue
        L.append(line if line.endswith(":") or line.startswith(".") or line.startswith(";") else "    " + line.strip())
def EL(l):
    for x in l: E(x)
def f32(x):
    return "0x%08x" % struct.unpack("<I", struct.pack("<f", x))[0]
def v(a, n=1):
    return f"v{a}" if n == 1 else f"v[{a}:{a+n-1}]"
def s(a, n=1):
    return f"s{a}" if n == 1 else f"s[{a}:{a+n-1}]"
NST = 10
def stamp(k, loop=False):
    if flag("itstamp"):
        if k == 2 and not loop: k = 1
        elif k == 0: pass
        elif not loop: return
    elif loop: return
    if STAMP:
        E(f"s_mem{'' if flag('cyc') else 'real'}time s[{80+2*k}:{81+2*k}]")
_lab = [0]
def newlab(p):
    _lab[0] += 1
    return f"L_{p}{_lab[0]}"

HEADER = open("recurrent_scan__spectral_fnet__geglu_ffn__prompt.s.ref").read().split("; Override")[0]
E(HEADER.rstrip())
E("; @launch grid=(256,1,1) block=(512,1,1) lds=163840")
E('.amdgcn_target "amdgcn-amd-amdhsa--gfx950"')
E(".text")

Q = 8192
WSLOT = 16384; NW = 6
XRING = NW * WSLOT; XSLOT = 16384; NX = 3
MISC = XRING + NX * XSLOT
ST_OFF = MISC
CS_OFF = MISC + 4096
PRIV = MISC + 8192
PP = [4, 8, 5, 0, 6, 1, 2, 7, 3]
PFREE = [10, 11, 11, 12, 13, 13, 14, 15, 15]

sX0, sX1, sG, sU, sWS = 4, 8, 12, 16, 20
sG2, sU2 = 40, 44
(sI, sC, sW, sWinc, sWlim, sWoff, sInc2, sAdj2, sXoff, sWd, sOff2, sCB, sRS, sP, sRH, sCQ, sT0, sT1, sMASK, sDFT,
 sRT, sCT, sR, sT2, sT3, sSP) = range(48, 74)
sK = 74
vL = 1
vA2 = 8
vNON = 14
vACC = 16
XE, XO, X1a, Ga, Ua, X0b, X1b, Gb, Ub = [80 + 4*k for k in range(9)]
vXB = 116; vWB = 124
vW2 = 7
vXo = 128; vWo = 132
vSUM, vSQ = 136, 138
vUT = 140
vSELG, vSELU, vCSD = 144, 148, 152
vSTW, vCSW, vSTR, vCSR_, vPW, vPR = range(156, 162)
vTA = 162
vZERO = 167

def skip3(vo, vt, delta):
    if (not flag("skip")): return
    E(f"v_bfe_u32 {v(vt)}, {v(vo)}, 7, 3")
    E(f"v_cmp_eq_u32 vcc, 3, {v(vt)}")
    E(f"v_add_u32 {v(vt)}, {delta}, {v(vo)}")
    E("s_nop 0")
    E(f"v_cndmask_b32 {v(vo)}, {v(vo)}, {v(vt)}, vcc")
def hdelta(sd, sslice):
    E(f"s_cmp_ge_u32 {s(sslice)}, 3")
    E(f"s_addc_u32 {s(sd)}, {s(sslice)}, 0")
    E(f"s_lshl_b32 {s(sd)}, {s(sd)}, 7")
    E(f"s_add_u32 {s(sd)}, {s(sd)}, {OVF - 384}")
def zskip(vo, vt, vt2):
    if (not flag("skip")): return
    E(f"v_bfe_u32 {v(vt2)}, {v(vo)}, 10, 2")
    E(f"v_lshlrev_b32 {v(vt2)}, 7, {v(vt2)}")
    E(f"v_add_u32 {v(vt2)}, {OVF + 128}, {v(vt2)}")
    skip3(vo, vt, v(vt2))
def acc(rb, p):
    return vACC + (rb * 2 + p) * 16
def srd(d, lo, size):
    E(f"s_mov_b32 {s(d)}, s{lo}\ns_mov_b32 {s(d+1)}, s{lo+1}\ns_mov_b32 {s(d+2)}, {size}\ns_mov_b32 {s(d+3)}, 0x20000")

E(f".globl {KNAME}\n.p2align 8\n.type {KNAME},@function\n{KNAME}:")
E("s_cmp_ge_u32 s2, 256")
E("s_cbranch_scc1 L_end")
stamp(0)
E("s_load_dwordx16 s[32:47], s[0:1], 0")
E("s_load_dwordx2 s[28:29], s[0:1], 64")
E("s_load_dwordx2 s[26:27], s[0:1], 72")
E("s_load_dwordx2 s[24:25], s[0:1], 80")
E("s_load_dwordx2 s[30:31], s[0:1], 88")
E("s_memrealtime s[78:79]")
E(f"v_lshrrev_b32 v2, 6, v0")
E(f"v_and_b32 {v(vL)}, 63, v0")
E(f"v_readfirstlane_b32 {s(sW)}, v2")
E("s_getpc_b64 s[4:5]")
E("L_pc:")
E(f"s_cmp_lg_u32 {s(sW)}, 7")
E("s_cbranch_scc1 L_nct")
E("s_and_b32 s6, s2, 0xf8")
E("v_and_b32 v2, 7, v0")
E("v_add_u32 v2, s6, v2")
E("v_lshlrev_b32 v2, 7, v2")
E("v_min_u32 v2, L_end-L_pc, v2")
E(f"global_load_dword {v(vTA+4)}, v2, s[4:5]")
E("L_nct:")
E(f"s_and_b32 {s(sT0)}, s2, 3")
E(f"s_lshl_b32 {s(sT0)}, {s(sT0)}, 2")
E(f"s_bfe_u32 {s(sI)}, s2, 0x20003")
E(f"s_add_u32 {s(sI)}, {s(sI)}, {s(sT0)}")
E(f"s_bfe_u32 {s(sT0)}, s2, 0x10002")
E(f"s_lshr_b32 {s(sT1)}, s2, 5")
E(f"s_mul_i32 {s(sC)}, {s(sT0)}, 7")
E(f"s_add_u32 {s(sC)}, {s(sC)}, {s(sT1)}")
E(f"s_sub_u32 {s(sC)}, {s(sC)}, 1")
E(f"s_add_u32 {s(sT0)}, {s(sT0)}, 14")
E(f"s_cmp_eq_u32 {s(sT1)}, 0")
E(f"s_cselect_b32 {s(sC)}, {s(sT0)}, {s(sC)}")
E(f"s_cselect_b32 {s(sDFT)}, 1, 0")
E(f"s_cselect_b32 {s(sRS)}, 2, 7")
E(f"s_lshl_b32 {s(sRS)}, {s(sRS)}, 9")
E(f"s_lshl_b32 {s(sWinc)}, {s(sRS)}, 5")
E(f"s_lshl_b32 {s(sWlim)}, {s(sRS)}, 9")
E(f"s_lshr_b32 {s(sRH)}, {s(sW)}, 2")
E(f"s_and_b32 {s(sCQ)}, {s(sW)}, 3")
E(f"v_lshrrev_b32 v2, 3, v0")
E(f"v_bfe_u32 v3, v2, 1, 3")
E(f"v_and_b32 v4, 7, {v(vL)}")
E(f"v_xor_b32 v3, v3, v4")
E(f"v_lshlrev_b32 v3, 4, v3")
E(f"s_lshl_b32 {s(sCB)}, {s(sC)}, 8")
E(f"s_cmp_eq_u32 {s(sDFT)}, 1")
E("s_cbranch_scc1 L_rows_dft")
E(f"v_lshlrev_b32 v2, 4, v2")
E(f"v_add_u32 v2, {s(sI)}, v2")
E(f"s_mov_b32 {s(sT0)}, {512*1024}")
E(f"s_mov_b32 {s(sT1)}, {1024*1024}")
E("s_branch L_rows_done")
E("L_rows_dft:")
E("v_and_b32 v4, 1, v2")
E("v_bfe_u32 v5, v2, 2, 1")
E("v_lshl_add_u32 v4, v5, 1, v4")
E("v_bfe_u32 v5, v2, 1, 1")
E("v_lshl_add_u32 v4, v5, 7, v4")
E("v_bfe_u32 v5, v2, 3, 2")
E("v_lshl_add_u32 v4, v5, 8, v4")
E(f"s_lshl_b32 {s(sT1)}, {s(sI)}, 3")
E(f"v_add_u32 v2, {s(sT1)}, v4")
E(f"s_mov_b32 {s(sT0)}, {1024*1024}")
E(f"s_mov_b32 {s(sT1)}, {4*1024}")
E(f"s_sub_u32 {s(sCB)}, {s(sCB)}, {14*256 - 512}")
E("L_rows_done:")
E(f"v_lshl_add_u32 {v(vXo)}, v2, 10, v3")
E(f"v_add_u32 {v(vXo+1)}, {s(sT0)}, {v(vXo)}")
E(f"v_add_u32 {v(vXo+2)}, {s(sT1)}, {v(vXo)}")
E(f"v_add_u32 {v(vXo+3)}, {s(sT1)}, {v(vXo+1)}")
E(f"v_lshrrev_b32 v2, 4, v0")
E(f"v_and_b32 v3, 3, v2")
E(f"v_lshlrev_b32 v3, 2, v3")
E(f"v_and_b32 v4, 15, {v(vL)}")
E(f"v_xor_b32 v3, v3, v4")
E(f"v_lshlrev_b32 v3, 4, v3")
E(f"v_mul_lo_u32 v2, v2, {s(sRS)}")
E(f"v_add3_u32 {v(vWo)}, v2, v3, {s(sCB)}")
E(f"s_lshl_b32 {s(sT0)}, {s(sRS)}, 4")
E(f"v_add_u32 {v(vWo+1)}, {s(sT0)}, {v(vWo)}")
E(f"s_mov_b32 {s(sXoff)}, 0")
E(f"s_mov_b32 {s(sWoff)}, 0")
E(f"s_lshl_b32 {s(sWd)}, {s(sW)}, 10")
E("s_waitcnt lgkmcnt(0)")
srd(sX0, 32, 2048*1024)
E(f"s_cmp_eq_u32 {s(sDFT)}, 1")
E(f"s_cselect_b32 {s(sG)}, s38, s44\ns_cselect_b32 {s(sG+1)}, s39, s45")
E(f"s_cselect_b32 {s(sU)}, s40, s46\ns_cselect_b32 {s(sU+1)}, s41, s47")
E(f"s_mov_b32 {s(sG+2)}, {s(sWlim)}\ns_mov_b32 {s(sG+3)}, 0x20000")
E(f"s_mov_b32 {s(sU+2)}, {s(sWlim)}\ns_mov_b32 {s(sU+3)}, 0x20000")

class Stream:
    def __init__(self):
        order = ["W0", "X0", "W1", "W2", "X1", "W3", "W4", "X2", "W5"]
        for P in range(3, 8): order += [f"W{2*P}", f"X{P}", f"W{2*P+1}"]
        self.todo = [(o, b) for o in order for b in range(4)]
        self.todo += [(f"T{k}", b) for k in range(9) for b in range(2)]
        self.issued = []
        self.bar = -1
    def free_after(self, o):
        k, n = o[0], int(o[1:])
        if k == "W": return n - 6
        if k == "X": return 2*(n-3) + 1
        return PFREE[n]
    def peek(self):
        if not self.todo: return None
        o, b = self.todo[0]
        return None if self.free_after(o) > self.bar else o[0]
    def next(self):
        o, b = self.todo.pop(0); self.issued.append(o)
        k, n = o[0], int(o[1:])
        post = []
        if k == "W":
            dst = (2*(n % 6) + (b & 1))*Q + (b >> 1)*4096
            ld = f"buffer_load_dwordx4 {v(vWo+(b>>1))}, {s(sU if b&1 else sG,4)}, {s(sWoff)} offen lds"
            if b == 3: post = [f"s_add_u32 {s(sWoff)}, {s(sWoff)}, {s(sWinc)}"]
        elif k == "X":
            dst = XRING + (n % 3)*XSLOT + b*4096
            ld = f"buffer_load_dwordx4 {v(vXo+b)}, {s(sX0,4)}, {s(sXoff)} offen lds"
            if b == 3: post = [f"s_add_u32 {s(sXoff)}, {s(sXoff)}, 128"]
        else:
            dst = (2*PP[n % 9] + b)*Q
            ld = f"buffer_load_dwordx4 {v(vW2)}, {s(sU2 if b else sG2,4)}, {s(sOff2)} offen lds"
            if b: post = [f"s_add_u32 {s(sOff2)}, {s(sOff2)}, {s(sInc2)}"] + ([f"s_sub_u32 {s(sOff2)}, {s(sOff2)}, {s(sAdj2)}"] if n == 7 else [])
        m0 = f"s_add_u32 m0, {s(sWd)}, {dst}" if dst else f"s_mov_b32 m0, {s(sWd)}"
        return m0, ld, post
    def wait(self, need):
        last = max(i for i, o in enumerate(self.issued) if o in need)
        for o in need: assert self.issued.count(o) == (2 if o[0] == "T" else 4), (o, self.issued)
        return len(self.issued) - 1 - last
    def copy(self):
        c = Stream(); c.todo = list(self.todo); c.issued = list(self.issued); c.bar = self.bar; return c
ST = Stream()
def dma_slot(st, nmax=2):
    k = st.peek()
    if k is None: return []
    if k == "T":
        m0, ld, post = st.next()
        return [m0, "s_nop 0", ld] + post
    lab = newlab("sk")
    o = [f"s_cbranch_vccnz {lab}"]
    for _ in range(nmax):
        if st.peek() in ("W", "X"):
            m0, ld, post = st.next()
            o += [m0, "s_nop 0", ld] + post
    return o + [f"{lab}:"]

E(f"s_cmp_ge_u32 {s(sW)}, 4")
E("s_cbranch_scc1 L_helper")
NPRO = opt("npro", 16)
for _ in range(NPRO):
    m0, ld, post = ST.next()
    EL([m0, "s_nop 0", ld] + post)
E("s_branch L_setup")
E("L_helper:")
E("s_cmp_lg_u32 s2, 0")
E("s_cbranch_scc1 L_nononce")
E(f"s_cmp_lg_u32 {s(sW)}, 4")
E("s_cbranch_scc1 L_nononce")
E("s_or_b32 s78, s78, 1")
E("v_mov_b32 v2, s78\nv_mov_b32 v3, s79\nv_mov_b32 v4, 0")
E("s_mov_b64 exec, 1")
E("global_store_dwordx2 v4, v[2:3], s[24:25] sc1")
E("s_mov_b64 exec, -1")
E("L_nononce:")
if not flag("nota"):
    if opt("tadelay", 0): E(f"s_sleep {opt('tadelay', 0)}")
    E(f"v_lshrrev_b32 v2, 1, {v(vL)}")
    E(f"s_lshl_b32 {s(sT0)}, {s(sI)}, 5")
    E(f"v_add_u32 v2, {s(sT0)}, v2")
    E(f"v_mul_lo_u32 v2, v2, {s(sRS)}")
    E(f"v_and_b32 v3, 1, {v(vL)}")
    E(f"v_lshl_add_u32 v2, v3, 7, v2")
    E(f"s_cmp_eq_u32 {s(sW)}, 4")
    E("s_cbranch_scc0 L_ta1")
    E(f"buffer_load_dword {v(vTA+4)}, v2, {s(sG,4)}, {s(sCB)} offen")
    E("L_ta1:")
    E(f"s_cmp_eq_u32 {s(sW)}, 5")
    E("s_cbranch_scc0 L_ta2")
    E(f"buffer_load_dword {v(vTA+4)}, v2, {s(sU,4)}, {s(sCB)} offen")
    E("L_ta2:")
    E(f"s_cmp_eq_u32 {s(sW)}, 6")
    E("s_cbranch_scc0 L_ta3")
    E(f"v_lshlrev_b32 v2, 7, {v(vL)}")
    E(f"s_lshl_b32 {s(sT0)}, s2, 13")
    E(f"buffer_load_dword {v(vTA+4)}, v2, {s(sX0,4)}, {s(sT0)} offen")
    E("L_ta3:")
E("L_setup:")
E(f"s_bfe_u32 {s(sCT)}, s2, 0x30003")
if flag("ctrot"):
    E(f"s_add_u32 {s(sCT)}, {s(sCT)}, s2")
    E(f"s_and_b32 {s(sCT)}, {s(sCT)}, 7")
E(f"s_and_b32 {s(sRT)}, s2, 7")
E(f"s_lshl_b32 {s(sRT)}, {s(sRT)}, 2")
E(f"s_lshr_b32 {s(sT1)}, s2, 6")
E(f"s_add_u32 {s(sRT)}, {s(sRT)}, {s(sT1)}")
E(f"s_lshr_b32 {s(sR)}, {s(sRT)}, 1")
srd(sWS, 30, WS_SIZE)
E(f"s_lshr_b32 {s(sT0)}, {s(sCQ)}, 1")
E(f"s_xor_b32 {s(sT0)}, {s(sT0)}, {s(sRH)}")
E(f"v_lshrrev_b32 v2, 5, {v(vL)}")
E(f"v_bfe_u32 v3, {v(vL)}, 2, 2")
E(f"v_lshlrev_b32 v4, 11, v2")
E(f"v_lshl_add_u32 v4, v3, 8, v4")
E(f"v_xor_b32 v3, {s(sCQ)}, v3")
E(f"v_lshl_add_u32 v4, v3, 6, v4")
E(f"v_bfe_u32 v3, {v(vL)}, 4, 1")
E(f"v_lshl_add_u32 v4, v3, 5, v4")
E(f"v_and_b32 v5, 3, {v(vL)}")
E(f"v_lshl_add_u32 v4, v5, 3, v4")
E(f"s_lshl_b32 {s(sT1)}, {s(sT0)}, 12")
E(f"v_add_u32 {v(vWB)}, {s(sT1)}, v4")
E(f"v_xor_b32 {v(vWB+1)}, 4096, {v(vWB)}")
E(f"v_add_u32 {v(vWB+2)}, {3*WSLOT}, {v(vWB)}")
E(f"v_add_u32 {v(vWB+3)}, {3*WSLOT}, {v(vWB+1)}")
E(f"v_and_b32 v5, 15, {v(vL)}")
E(f"v_lshlrev_b32 v3, 2, v3")
E(f"v_sub_u32 v5, v5, v3")
E(f"v_mov_b32 v6, 0x3f803f80")
E(f"v_cmp_eq_u32 vcc, 0, v5")
E(f"v_cmp_eq_u32 s[78:79], 8, v5")
E(f"v_and_b32 v3, 31, {v(vL)}")
E(f"v_bfe_u32 v4, {v(vL)}, 1, 3")
for k in range(4):
    E(f"v_cndmask_b32 {v(vSELG+k)}, 0, v6, vcc")
    E(f"v_cndmask_b32 {v(vSELU+k)}, 0, v6, s[78:79]")
E(f"v_xor_b32 v4, v4, v2")
E(f"v_lshlrev_b32 v4, 4, v4")
E(f"v_lshl_add_u32 v4, v3, 7, v4")
E(f"s_lshl_b32 {s(sT0)}, {s(sT0)}, 5")
E(f"v_xor_b32 v4, {s(sT0)}, v4")
E(f"s_and_b32 {s(sT0)}, {s(sCQ)}, 1")
E(f"s_lshl_b32 {s(sT1)}, {s(sRH)}, 1")
E(f"s_add_u32 {s(sT2)}, {s(sT0)}, {s(sT1)}")
E(f"s_lshl_b32 {s(sT0)}, {s(sT2)}, 12")
E(f"s_add_u32 {s(sT0)}, {s(sT0)}, {XRING}")
E(f"v_add_u32 v4, {s(sT0)}, v4")
for q in range(4):
    E(f"v_xor_b32 {v(vXB+2*q)}, {q*32}, v4")
    E(f"v_xor_b32 {v(vXB+2*q+1)}, {q*32+4096}, v4")
for r in list(range(vACC, vACC+64)) + list(range(vSUM, vSUM+4)) + list(range(vCSD, vCSD+4)) + [vZERO]:
    E(f"v_mov_b32 {v(r)}, 0")
E(f"s_mov_b32 {s(sMASK)}, 0xffff0000")
E(f"s_lshl_b32 {s(sT2)}, {s(sT2)}, 10")
E(f"s_add_u32 {s(sT2)}, {s(sT2)}, {ST_OFF}")
E(f"s_and_b32 {s(sT1)}, {s(sCQ)}, 2")
E(f"s_lshl_b32 {s(sT1)}, {s(sT1)}, 2")
E(f"s_add_u32 {s(sT1)}, {s(sT1)}, {s(sT2)}")
E(f"v_lshlrev_b32 v4, 5, v3")
E(f"v_lshl_add_u32 v5, v2, 2, v4")
E(f"v_add_u32 {v(vSTW)}, {s(sT1)}, v5")
E(f"v_lshlrev_b32 v5, 10, v2")
E(f"v_xor_b32 v5, {s(sT2)}, v5")
E(f"v_add_u32 {v(vSTR)}, v5, v4")
E(f"v_lshlrev_b32 v5, 2, v0")
E(f"v_add_u32 {v(vCSW)}, {CS_OFF}, v5")
E(f"v_xor_b32 {v(vCSR_)}, 1024, {v(vCSW)}")
E(f"s_lshl_b32 {s(sT0)}, {s(sW)}, 9")
E(f"s_add_u32 {s(sT0)}, {s(sT0)}, {PRIV}")
E(f"v_lshlrev_b32 v5, 2, {v(vL)}")
E(f"v_add_u32 {v(vPW)}, {s(sT0)}, v5")
E(f"v_lshlrev_b32 v5, 4, v2")
E(f"v_add_u32 {v(vPR)}, {s(sT0)}, v5")
E(f"s_mov_b32 {s(sOff2)}, 0")
E(f"v_lshrrev_b32 v5, 3, {v(vL)}")
E(f"v_and_b32 v6, 7, {v(vL)}")
E(f"s_cmp_eq_u32 {s(sW)}, 7")
E("s_cbranch_scc1 L_reconf7")
E(f"v_bfe_u32 v4, {v(vL)}, 4, 1")
E(f"v_lshlrev_b32 v4, 2, v4")
E(f"v_xor_b32 v4, v4, v6")
E(f"v_lshlrev_b32 v4, 4, v4")
E(f"v_lshl_add_u32 v4, v5, 10, v4")
E(f"s_lshl_b32 {s(sT0)}, {s(sW)}, 18")
E(f"s_lshl_b32 {s(sT1)}, {s(sCT)}, 7")
E(f"s_add_u32 {s(sT0)}, {s(sT0)}, {s(sT1)}")
srd(sG2, 28, 1792*1024)
E(f"s_add_u32 {s(sU2)}, s28, {Q}\ns_addc_u32 {s(sU2+1)}, s29, 0\ns_mov_b32 {s(sU2+2)}, {1792*1024-Q}")
E(f"s_mov_b32 {s(sInc2)}, {2*Q}")
E(f"s_mov_b32 {s(sAdj2)}, 0")
E(f"v_bfe_u32 v5, {v(vL)}, 2, 2")
E(f"v_lshl_add_u32 v5, v2, 2, v5")
E(f"v_lshlrev_b32 v5, 7, v5")
E(f"v_bfe_u32 v6, {v(vL)}, 3, 1")
E(f"v_lshl_add_u32 v5, v6, 6, v5")
E(f"v_bfe_u32 v6, {v(vL)}, 4, 1")
E(f"v_lshl_add_u32 v5, v6, 5, v5")
E(f"v_and_b32 v6, 3, {v(vL)}")
E(f"v_lshl_add_u32 v5, v6, 3, v5")
E(f"v_add_u32 {v(vA2)}, {s(sWd)}, v5")
E(f"v_xor_b32 {v(vA2+1)}, 64, {v(vA2)}")
for g in (1, 2):
    E(f"v_add_u32 {v(vA2+2*g)}, {8*Q*g}, {v(vA2)}\nv_add_u32 {v(vA2+2*g+1)}, {8*Q*g}, {v(vA2+1)}")
E("s_branch L_reconf_c")
E("L_reconf7:")
E(f"v_bfe_u32 v4, {v(vL)}, 4, 2")
E(f"v_lshlrev_b32 v4, 1, v4")
E(f"v_xor_b32 v4, v4, v6")
E(f"v_lshlrev_b32 v4, 4, v4")
E(f"v_lshl_add_u32 v4, v5, 16, v4")
E(f"s_and_b32 {s(sT0)}, {s(sRT)}, 1")
E(f"s_lshl_b32 {s(sT0)}, {s(sT0)}, 10")
E(f"s_add_u32 {s(sT0)}, {s(sT0)}, {s(sR)}")
E(f"s_lshl_b32 {s(sT0)}, {s(sT0)}, 12")
srd(sG2, 34, 2048*4096)
E(f"s_mov_b32 {s(sU2)}, s36\ns_mov_b32 {s(sU2+1)}, s37\ns_mov_b32 {s(sU2+2)}, {2048*4096}")
E(f"s_mov_b32 {s(sInc2)}, {8*65536}")
E(f"s_mov_b32 {s(sAdj2)}, {64*65536 - 128}")
E(f"v_and_b32 v5, 7, v3")
E(f"v_lshlrev_b32 v5, 7, v5")
E(f"v_bfe_u32 v6, v3, 1, 2")
E(f"v_lshl_add_u32 v5, v6, 5, v5")
E(f"v_lshl_add_u32 v5, v2, 3, v5")
E(f"v_add_u32 {v(vA2)}, {s(sWd)}, v5")
E(f"v_lshrrev_b32 v5, 3, v3")
E(f"v_lshlrev_b32 {v(vA2+1)}, 2, v5")
if flag("w7oob"):
    E(f"s_mov_b32 {s(sG2+2)}, 0\ns_mov_b32 {s(sU2+2)}, 0\ns_mov_b32 {s(sInc2)}, 0\ns_mov_b32 {s(sAdj2)}, 0")
E("L_reconf_c:")
if flag("alloob"):
    E(f"s_mov_b32 {s(sG2+2)}, 0\ns_mov_b32 {s(sU2+2)}, 0\ns_mov_b32 {s(sInc2)}, 0\ns_mov_b32 {s(sAdj2)}, 0")
E(f"s_mov_b32 {s(sU2+3)}, 0x20000")
E(f"v_add_u32 {v(vW2)}, {s(sT0)}, v4")
E(f"v_min_u32 v4, 55, {v(vL)}")
E(f"s_lshr_b32 {s(sT0)}, s2, 3")
E(f"s_mul_i32 {s(sT0)}, {s(sT0)}, 56")
E(f"v_add_u32 v4, {s(sT0)}, v4")
E(f"v_lshlrev_b32 v4, 10, v4")
E(f"v_add_u32 {v(vTA+2)}, 384, v4")
E(f"s_cmp_lg_u32 {s(sW)}, 4")
E("s_cbranch_scc1 L_touch_ws")
E(f"v_min_u32 v4, 55, {v(vL)}")
E(f"s_mul_i32 {s(sT0)}, s2, 56")
E(f"v_add_u32 v4, {s(sT0)}, v4")
E(f"v_lshlrev_b32 v4, 7, v4")
E(f"v_mov_b32 {v(vTA)}, s28\nv_mov_b32 {v(vTA+1)}, s29")
E("s_branch L_touch_c")
E("L_touch_ws:")
E(f"s_cmp_eq_u32 {s(sW)}, 5")
E(f"s_cselect_b32 {s(sT1)}, 63, 0")
E(f"v_and_b32 v5, {s(sT1)}, {v(vL)}")
E(f"v_bfe_u32 v4, v5, 1, 3")
E(f"s_lshl_b32 {s(sT0)}, s2, 3")
E(f"v_add_u32 v4, {s(sT0)}, v4")
E(f"v_lshlrev_b32 v4, 12, v4")
E(f"v_and_b32 v6, 1, v5")
E(f"v_lshl_add_u32 v4, v6, 7, v4")
E(f"v_and_b32 v6, 16, v5")
E(f"v_cmp_eq_u32 vcc, 0, v6")
E(f"v_mov_b32 {v(vTA)}, s36\nv_mov_b32 {v(vTA+1)}, s37\nv_mov_b32 v5, s34\nv_mov_b32 v6, s35")
E(f"v_cndmask_b32 {v(vTA)}, {v(vTA)}, v5, vcc\nv_cndmask_b32 {v(vTA+1)}, {v(vTA+1)}, v6, vcc")
E("L_touch_c:")
E(f"v_add_co_u32 {v(vTA)}, vcc, {v(vTA)}, v4\ns_nop 1\nv_addc_co_u32 {v(vTA+1)}, vcc, 0, {v(vTA+1)}, vcc")
E(f"s_mov_b32 vcc_lo, {s(sRH)}")
E(f"s_mov_b32 vcc_hi, 0")

def reads(F, it, sl):
    X0, X1, G, U = F
    q = 2*(it & 1) + sl
    xo = ((it >> 1) % 3) * XSLOT
    ws = it % 6
    wa = v(vWB + sl + 2*(ws // 3)); wo = (ws % 3) * WSLOT
    return [f"ds_read_b128 {v(X0,4)}, {v(vXB+2*q)} offset:{xo}",
            f"ds_read_b64_tr_b16 {v(G,2)}, {wa} offset:{wo}",
            f"ds_read_b64_tr_b16 {v(G+2,2)}, {wa} offset:{wo+1024}",
            f"ds_read_b64_tr_b16 {v(U,2)}, {wa} offset:{wo+8192}",
            f"ds_read_b64_tr_b16 {v(U+2,2)}, {wa} offset:{wo+9216}",
            f"ds_read_b128 {v(X1,4)}, {v(vXB+2*q+1)} offset:{xo}"]
def stats(X):
    o = []
    for r in range(4):
        t = vUT + 2*(r & 1)
        o += [f"v_lshlrev_b32 {v(t)}, 16, {v(X+r)}", f"v_and_b32 {v(t+1)}, {s(sMASK)}, {v(X+r)}",
              f"v_add_f32 {v(vSUM)}, {v(vSUM)}, {v(t)}", f"v_add_f32 {v(vSUM+1)}, {v(vSUM+1)}, {v(t+1)}",
              f"v_fmac_f32 {v(vSQ)}, {v(t)}, {v(t)}", f"v_fmac_f32 {v(vSQ+1)}, {v(t+1)}, {v(t+1)}"]
    return o
def mf(F, dft, k):
    X0, X1, G, U = F
    rb, p = k >> 1, k & 1
    X = v(X1 if rb else X0, 4); W = v(U if p else G, 4); A = v(acc(rb, p), 16)
    return f"v_mfma_f32_32x32x16_bf16 {A}, {X}, {W}, {A}" if dft else f"v_mfma_f32_32x32x16_bf16 {A}, {W}, {X}, {A}"
S0e = (XE, X1a, Ga, Ua); S0o = (XO, X1a, Ga, Ua); S1 = (X0b, X1b, Gb, Ub)
selG = f"v_mfma_f32_16x16x32_bf16 {v(vCSD,4)}, {v(vSELG,4)}, {v(Gb,4)}, {v(vCSD,4)}"
selU = f"v_mfma_f32_16x16x32_bf16 {v(vCSD,4)}, {v(vSELU,4)}, {v(Ub,4)}, {v(vCSD,4)}"
vX = 80

if opt("touch", 2) == -1:
    E(f"s_cbranch_vccz L_nt0")
    E(f"global_load_dword {v(vTA+4)}, {v(vTA,2)}, off")
    E(f"L_nt0:")
E(f"s_waitcnt vmcnt({ST.wait(['W0', 'X0'])})")
E("s_barrier")
stamp(2)
EL(reads(S0e, 0, 0))
E(f"s_cmp_eq_u32 {s(sDFT)}, 1")
E("s_cbranch_scc1 L_loop_dft")
LOOP_START = len(L)
ST0 = ST
for dft in (0, 1):
    E("L_loop_dft:" if dft else "L_loop_ffn:")
    ST = ST0.copy()
    for it in range(16):
        odd = it & 1
        last = it == 15
        cur = S0o if odd else S0e
        nxt = S0e if odd else S0o
        st = stats(cur[0]) if not flag("nostat") else [""]*24
        sa = [st[0:6], st[6:12], st[12:18], st[18:24]] if last else [st[0:3], st[3:6], st[6:9], st[9:12]]
        rd = reads(S1, it, 1)
        E("s_waitcnt lgkmcnt(3)")
        E(mf(cur, dft, 0)); EL(rd[0:3]); EL(sa[0])
        E("s_waitcnt lgkmcnt(4)")
        E(mf(cur, dft, 1)); EL(rd[3:6]); EL(sa[1])
        E("s_waitcnt lgkmcnt(6)")
        E(mf(cur, dft, 2)); EL(sa[2]); EL(dma_slot(ST))
        E(mf(cur, dft, 3)); EL(sa[3]); EL(dma_slot(ST))
        if not last:
            E("s_waitcnt lgkmcnt(3)")
            E(mf(S1, dft, 0))
            rd = reads(nxt, it + 1, 0)
            need = [f"W{it+1}"] + ([f"X{(it+1)//2}"] if odd else [])
            E(f"s_waitcnt vmcnt({ST.wait(need)}) lgkmcnt(0)")
            E("s_barrier")
            if it & 1: stamp(2 + it // 2, True)
            ST.bar = it
            EL(rd[0:3])
            E(mf(S1, dft, 1)); EL(rd[3:6]); EL(st[12:15])
            if it == 9:
                E(f"global_load_dwordx2 {v(vNON,2)}, {v(vZERO)}, s[24:25] sc1"); ST.issued.append("N")
            if it == opt("touch", 2):
                lab = newlab("nt")
                E(f"s_cbranch_vccz {lab}")
                E(f"global_load_dword {v(vTA+4)}, {v(vTA,2)}, off")
                E(f"{lab}:")
            if it == opt("touch3", 8):
                lab = newlab("nt")
                E(f"s_cmp_lg_u32 {s(sW)}, 6")
                E(f"s_cbranch_scc1 {lab}")
                E(f"global_load_dword {v(vTA+4)}, {v(vTA+2)}, s[28:29]")
                E(f"{lab}:")
            E(mf(S1, dft, 2)); EL(st[15:19]); EL(dma_slot(ST))
            E(mf(S1, dft, 3)); EL(st[19:23]); EL(dma_slot(ST))
            if not dft and not flag("nosel"): E(selG)
            E(st[23])
            if not dft and not flag("nosel"): E(selU)
        else:
            E(f"v_add_f32 {v(vSUM)}, {v(vSUM)}, {v(vSUM+1)}")
            E(f"v_add_f32 {v(vSQ)}, {v(vSQ)}, {v(vSQ+1)}")
            E("s_waitcnt lgkmcnt(1)")
            if not dft: E(selG); E(selU)
            E(f"ds_write2_b32 {v(vSTW)}, {v(vSUM)}, {v(vSQ)} offset0:0 offset1:4")
            E(mf(S1, dft, 0))
            if not dft:
                E("s_nop 5")
                E(f"ds_write_b32 {v(vCSW)}, {v(vCSD)}")
            E(mf(S1, dft, 1))
            E("s_waitcnt lgkmcnt(0)")
            E("s_barrier")
            stamp(2 + it // 2, True)
            ST.bar = it
            E(f"ds_read_b128 {v(vX,4)}, {v(vSTR)}")
            E(f"ds_read_b128 {v(vX+4,4)}, {v(vSTR)} offset:16")
            if not dft: E(f"ds_read_b32 {v(vX+8)}, {v(vCSR_)}")
            E(mf(S1, dft, 2)); EL(dma_slot(ST)); EL(dma_slot(ST))
            E(mf(S1, dft, 3)); EL(dma_slot(ST)); EL(dma_slot(ST))
    assert not ST.todo
    if not dft: E("s_branch L_epi")
def _keep(x):
    if flag("nodma") and "buffer_load" in x: return False
    if flag("nolds") and "ds_read" in x: return False
    if flag("nomfma") and "v_mfma" in x: return False
    return True
L[LOOP_START:] = [x for x in L[LOOP_START:] if _keep(x)]

E("L_epi:")
stamp(3)
vM, vSD, vCS, vRS, vTt = 120, 121, 122, 123, 124
E("s_waitcnt lgkmcnt(0)")
E(f"v_add_f32 {v(vX)}, {v(vX)}, {v(vX+1)}\nv_add_f32 {v(vX+2)}, {v(vX+2)}, {v(vX+3)}")
E(f"v_add_f32 {v(vX+4)}, {v(vX+4)}, {v(vX+5)}\nv_add_f32 {v(vX+6)}, {v(vX+6)}, {v(vX+7)}")
E(f"v_add_f32 {v(vCS)}, {v(vCSD)}, {v(vX+8)}")
E(f"v_add_f32 {v(vM)}, {v(vX)}, {v(vX+2)}")
E(f"v_add_f32 {v(vSD)}, {v(vX+4)}, {v(vX+6)}")
E(f"ds_write_b32 {v(vPW)}, {v(vCS)}")
E(f"v_mul_f32 {v(vM)}, {f32(1/512)}, {v(vM)}")
E(f"v_mul_f32 {v(vSD)}, {f32(1/512)}, {v(vSD)}")
E(f"v_fma_f32 {v(vSD)}, -{v(vM)}, {v(vM)}, {v(vSD)}")
E(f"v_max_f32 {v(vSD)}, 0, {v(vSD)}")
E(f"v_cvt_pk_bf16_f32 {v(vTt)}, {v(vM)}, {v(vSD)}")
E(f"v_lshlrev_b32 {v(vM)}, 16, {v(vTt)}")
E(f"v_and_b32 {v(vSD)}, {s(sMASK)}, {v(vTt)}")
E(f"v_add_f32 {v(vSD)}, {f32(1e-5)}, {v(vSD)}")
E(f"v_cvt_pk_bf16_f32 {v(vTt)}, {v(vSD)}, {v(vSD)}")
E(f"v_and_b32 {v(vSD)}, {s(sMASK)}, {v(vTt)}")
E(f"v_sqrt_f32 {v(vSD)}, {v(vSD)}")
E(f"v_lshlrev_b32 v6, 4, {v(vL)}")
E(f"v_cvt_pk_bf16_f32 {v(vTt)}, {v(vSD)}, {v(vSD)}")
E(f"v_and_b32 {v(vSD)}, {s(sMASK)}, {v(vTt)}")
E(f"v_rcp_f32 {v(vRS)}, {v(vSD)}")
E(f"s_nop 0")
E(f"ds_write_b32 {v(vPW)}, {v(vRS)} offset:256")

def wreg(j, cb):
    return (184 + 8*j if j < 9 else 128 + 8*(j-9)) + 4*cb
def trreads(j):
    for cb in range(2):
        for hh in range(2):
            q = 2*PP[j % 9] + hh
            E(f"ds_read_b64_tr_b16 {v(wreg(j,cb)+2*hh,2)}, {v(vA2 + 2*(q//8) + cb)} offset:{(q%8)*Q}")
def wreg7(j, tb): return (192 if j < 8 else 128) + 8*(j & 7) + 4*tb
def rd7(grp):
    lut = sum(PP[(4*grp + g) % 9] << (4*g) for g in range(4))
    E(f"v_mov_b32 v2, {lut}")
    E(f"v_bfe_u32 v2, v2, {v(vA2+1)}, 4")
    E(f"v_lshl_add_u32 v2, v2, 14, {v(vA2)}")
    E(f"v_xor_b32 v3, 32, v2\nv_xor_b32 v4, 64, v2\nv_xor_b32 v5, 96, v2")
    kh, tb = grp >> 1, grp & 1
    for jj in range(8):
        j = 8*kh + jj
        E(f"ds_read_b64 {v(wreg7(j,tb),2)}, v{2 + (jj >> 1)} offset:{(jj&1)*16}")
        E(f"ds_read_b64 {v(wreg7(j,tb)+2,2)}, v{2 + (jj >> 1)} offset:{(jj&1)*16+Q}")
def sign7(grp):
    kh, tb = grp >> 1, grp & 1
    for jj in range(8):
        for u in (2, 3):
            r = wreg7(8*kh + jj, tb) + u
            E(f"v_xor_b32 {v(r)}, {s(sP)}, {v(r)}")
def r2dma(k0, k1):
    for k in range(k0, k1):
        ST.todo = [(f"T{k}", 0), (f"T{k}", 1)]
        for b in range(2):
            m0, ld, post = ST.next()
            EL([m0, "s_nop 0", ld] + post)
NE = opt("ne", 7)
E(f"s_cmp_eq_u32 {s(sW)}, 7")
E("s_cbranch_scc1 L_e7")
E(f"s_waitcnt vmcnt({ST.wait([f'T{k}' for k in range(NE)])})")
for j in range(NE): trreads(j)
E("s_waitcnt lgkmcnt(0)")
r2dma(9, 9 + NE)
E("s_branch L_e8")
E("L_e7:")
E(f"s_waitcnt vmcnt(10)")
rd7(0)
E("s_waitcnt lgkmcnt(0)")
r2dma(9, 13)
E("L_e8:")
E(f"s_cmp_eq_u32 {s(sDFT)}, 1")
E("s_cbranch_scc1 L_epi_dft")

C0 = -2.0 * math.log2(math.e) * math.sqrt(2.0/math.pi)
C1 = C0 * 0.044715
P0 = 80
CSR = 88
for p in range(2):
    for q in range(4):
        E(f"ds_read_b128 {v(CSR+16*p+4*q,4)}, {v(vPR)} offset:{128*p+32*q}")
E(f"v_mov_b32 {v(P0)}, {v(vM)}")
E(f"v_mul_f32 {v(P0+1)}, {v(vSD)}, {v(vSD)}")
E(f"v_mul_f32 {v(P0+2)}, {f32(C0)}, {v(vRS)}")
E(f"v_mul_f32 {v(vTt)}, {v(vRS)}, {v(vRS)}")
E(f"v_mul_f32 {v(vTt)}, {v(vTt)}, {v(vRS)}")
E(f"v_mul_f32 {v(P0+3)}, {f32(C1)}, {v(vTt)}")
for k in range(4):
    E(f"v_mov_b32 {v(P0+4+k)}, {v(P0+k)}")
E(f"s_lshl_b32 {s(sT0)}, {s(sI)}, 2")
E(f"s_lshl_b32 {s(sT1)}, {s(sRH)}, 1")
for k in range(4):
    E(f"v_permlane32_swap_b32 {v(P0+k)}, {v(P0+4+k)}")
E(f"s_add_u32 {s(sT0)}, {s(sT0)}, {s(sT1)}")
E(f"s_and_b32 {s(sT1)}, {s(sCQ)}, 1")
E(f"s_add_u32 {s(sT2)}, {s(sT0)}, {s(sT1)}")
E(f"s_xor_b32 {s(sT3)}, {s(sT2)}, 1")
E(f"s_mul_i32 {s(sT2)}, {s(sT2)}, {A_RB}")
E(f"s_mul_i32 {s(sT3)}, {s(sT3)}, {A_RB}")
E(f"s_lshl_b32 {s(sT0)}, {s(sC)}, 13")
E(f"s_lshl_b32 {s(sT1)}, {s(sCQ)}, 11")
E(f"s_add_u32 {s(sT0)}, {s(sT0)}, {s(sT1)}")
E(f"s_add_u32 {s(sT2)}, {s(sT2)}, {s(sT0)}")
E(f"s_add_u32 {s(sT3)}, {s(sT3)}, {s(sT0)}")
E(f"s_lshr_b32 {s(sT0)}, {s(sC)}, 1")
hdelta(sT0, sT0)
skip3(6, 2, s(sT0))
E("s_waitcnt lgkmcnt(0)")
TMP = 136
for rb in range(2):
    PM = v(P0+4*rb, 2); PK = v(P0+4*rb+2, 2)
    for half in range(2):
        O = TMP + 8 + 4*((rb*2+half) & 1)
        prs = range(4*half, 4*half+4)
        G = lambda i: v(acc(rb,0)+2*i, 2)
        U = lambda i: v(acc(rb,1)+2*i, 2)
        T = lambda i: v(TMP + 2*(i&3), 2)
        for i in prs:
            E(f"v_pk_fma_f32 {G(i)}, {v(CSR+2*i,2)}, {PM}, {G(i)} op_sel_hi:[1,0,1] neg_lo:[0,1,0] neg_hi:[0,1,0]")
        for i in prs:
            E(f"v_pk_mul_f32 {T(i)}, {G(i)}, {G(i)}")
        for i in prs:
            E(f"v_pk_fma_f32 {T(i)}, {T(i)}, {PK}, {PK} op_sel:[0,1,0] op_sel_hi:[1,1,0]")
        for i in prs:
            E(f"v_pk_mul_f32 {T(i)}, {T(i)}, {G(i)}")
        for i in prs:
            E(f"v_exp_f32 {v(TMP+2*(i&3))}, {v(TMP+2*(i&3))}")
            E(f"v_exp_f32 {v(TMP+2*(i&3)+1)}, {v(TMP+2*(i&3)+1)}")
        for i in prs:
            E(f"v_pk_fma_f32 {U(i)}, {v(CSR+16+2*i,2)}, {PM}, {U(i)} op_sel_hi:[1,0,1] neg_lo:[0,1,0] neg_hi:[0,1,0]")
        for i in prs:
            E(f"v_pk_fma_f32 {T(i)}, {T(i)}, {PM}, {PM} op_sel:[0,1,1] op_sel_hi:[1,1,1]")
        for i in prs:
            E(f"v_rcp_f32 {v(TMP+2*(i&3))}, {v(TMP+2*(i&3))}")
            E(f"v_rcp_f32 {v(TMP+2*(i&3)+1)}, {v(TMP+2*(i&3)+1)}")
        for i in prs:
            E(f"v_pk_mul_f32 {G(i)}, {G(i)}, {U(i)}")
        for i in prs:
            E(f"v_pk_mul_f32 {G(i)}, {G(i)}, {T(i)}")
        for i in prs:
            E(f"v_cvt_pk_bf16_f32 {v(O+(i&3))}, {v(acc(rb,0)+2*i)}, {v(acc(rb,0)+2*i+1)}")
        E(f"buffer_store_dwordx4 {v(O,4)}, v6, {s(sWS,4)}, {s(sT2+rb)} offen offset:{1024*half} sc1")
stamp(1)
E("s_waitcnt vmcnt(4)")
E("s_branch L_p2")

E("L_epi_dft:")
RR = 136; FR = 80
E(f"v_mov_b32 v5, {v(vPR)}")
for q in range(4):
    for rb in range(2):
        E(f"ds_read_b128 {v(RR+16*rb+4*q,4)}, v5 offset:{256+128*rb+32*q}")
E(f"s_mov_b32 {s(sK)}, {f32(math.cos(math.pi/8))}")
E(f"s_mov_b32 {s(sK+1)}, {f32(math.sin(math.pi/8))}")
E(f"s_mov_b32 {s(sK+2)}, {f32(math.sqrt(0.5))}")
E(f"s_mov_b32 {s(sK+3)}, {f32(math.sqrt(0.5))}")
E(f"v_and_b32 v2, 31, {v(vL)}")
E(f"v_lshrrev_b32 v3, 5, {v(vL)}")
E(f"v_lshlrev_b32 v4, 20, v3")
E(f"v_lshl_add_u32 v4, v2, 4, v4")
E(f"s_sub_u32 {s(sT0)}, {s(sC)}, 14")
E(f"s_lshl_b32 {s(sT0)}, {s(sT0)}, 11")
E(f"s_lshl_b32 {s(sT1)}, {s(sCQ)}, 9")
E(f"s_add_u32 {s(sT0)}, {s(sT0)}, {s(sT1)}")
E(f"v_add_u32 v4, {s(sT0)}, v4")
zskip(4, 2, 3)
E(f"s_lshl_b32 {s(sT0)}, {s(sI)}, 13")
E(f"s_lshl_b32 {s(sT1)}, {s(sRH)}, 12")
E(f"s_add_u32 {s(sT0)}, {s(sT0)}, {s(sT1)}")
E(f"s_add_u32 {s(sT0)}, {s(sT0)}, {Z_OFF}")
E(f"s_and_b32 {s(sT1)}, {s(sCQ)}, 1")
E(f"s_mul_i32 {s(sT1)}, {s(sT1)}, 0x80008000")
val = {}
for rb in range(2):
    for i in range(8):
        val[i + 8*rb] = [acc(rb,0)+2*i, acc(rb,1)+2*i]
free = [FR + 2*k for k in range(16)]
def padd(d, a, b, neg=False):
    E(f"v_pk_add_f32 {v(d,2)}, {v(a,2)}, {v(b,2)}" + (" neg_lo:[0,1] neg_hi:[0,1]" if neg else ""))
def tw(k):
    return {1:(sK,0,0,1), 3:(sK,1,0,0), 5:(sK,1,1,0), 7:(sK,0,1,1), 2:(sK+2,0,0,0), 6:(sK+2,0,1,0)}[k]
def twiddle(grp, tmp):
    global free
    for (a, b, k) in grp:
        if k in (0, 4):
            free += val[b]; val[b] = tmp[a]
        else:
            sp, sc, nc, ss = tw(k); x, y = tmp[a]; br, bi = val[b]
            ng = f" neg_lo:[0,1] neg_hi:[0,1]" if nc else ""
            E(f"v_pk_mul_f32 {v(br,2)}, {v(x,2)}, {s(sp,2)} op_sel:[0,{sc}] op_sel_hi:[1,{sc}]{ng}")
            E(f"v_pk_mul_f32 {v(bi,2)}, {v(y,2)}, {s(sp,2)} op_sel:[0,{sc}] op_sel_hi:[1,{sc}]{ng}")
    for (a, b, k) in grp:
        if k not in (0, 4):
            sp, sc, nc, ss = tw(k); x, y = tmp[a]; br, bi = val[b]
            E(f"v_pk_fma_f32 {v(br,2)}, {v(y,2)}, {s(sp,2)}, {v(br,2)} op_sel:[0,{ss},0] op_sel_hi:[1,{ss},1]")
            E(f"v_pk_fma_f32 {v(bi,2)}, {v(x,2)}, {s(sp,2)}, {v(bi,2)} op_sel:[0,{ss},0] op_sel_hi:[1,{ss},1] neg_lo:[1,0,0] neg_hi:[1,0,0]")
            free += tmp[a]
def butterflies(grp):
    tmp = {}
    for (a, b, k) in grp:
        t = [free.pop(), free.pop()]
        tmp[a] = t
        ar, ai = val[a]; br, bi = val[b]
        if k == 4:
            padd(t[0], ai, bi, True); padd(t[1], br, ar, True)
        else:
            padd(t[0], ar, br, True); padd(t[1], ai, bi, True)
    for (a, b, k) in grp:
        ar, ai = val[a]; br, bi = val[b]
        padd(ar, ar, br); padd(ai, ai, bi)
    twiddle(grp, tmp)
for c0 in (0, 4):
    grp = [(k, k + 8, k) for k in range(c0, c0 + 4)]
    E(f"s_waitcnt lgkmcnt({4 - c0})")
    tmp = {}
    for (a, b, k) in grp:
        for p in range(2):
            E(f"v_pk_mul_f32 {v(val[a][p],2)}, {v(val[a][p],2)}, {v(RR+2*k,2)}")
    for (a, b, k) in grp:
        t = [free.pop(), free.pop()]; tmp[a] = t
        ar, ai = val[a]; br, bi = val[b]; R = v(RR+16+2*k, 2)
        if k == 4:
            E(f"v_pk_fma_f32 {v(t[0],2)}, {v(bi,2)}, {R}, {v(ai,2)} neg_lo:[1,0,0] neg_hi:[1,0,0]")
            E(f"v_pk_fma_f32 {v(t[1],2)}, {v(br,2)}, {R}, {v(ar,2)} neg_lo:[0,0,1] neg_hi:[0,0,1]")
        else:
            E(f"v_pk_fma_f32 {v(t[0],2)}, {v(br,2)}, {R}, {v(ar,2)} neg_lo:[1,0,0] neg_hi:[1,0,0]")
            E(f"v_pk_fma_f32 {v(t[1],2)}, {v(bi,2)}, {R}, {v(ai,2)} neg_lo:[1,0,0] neg_hi:[1,0,0]")
    for (a, b, k) in grp:
        ar, ai = val[a]; br, bi = val[b]; R = v(RR+16+2*k, 2)
        E(f"v_pk_fma_f32 {v(ar,2)}, {v(br,2)}, {R}, {v(ar,2)}")
        E(f"v_pk_fma_f32 {v(ai,2)}, {v(bi,2)}, {R}, {v(ai,2)}")
    twiddle(grp, tmp)
OB = RR
def brev(x): return int(f"{x:04b}"[::-1], 2)
for hb in (0, 8):
    butterflies([(hb + k, hb + k + 4, 2*k) for k in range(4)])
    butterflies([(hb + 4*g + k, hb + 4*g + k + 2, 4*k) for g in range(2) for k in range(2)])
    for qb in (0, 4):
        butterflies([(hb + qb + 2*g, hb + qb + 2*g + 1, 0) for g in range(2)])
        outs = []
        for g in range(2):
            p = hb + qb + 2*g; r = brev(p)
            o = OB + 4*(p >> 1)
            outs.append((r, o))
            for u in range(2):
                re, im = val[p + u]
                E(f"v_cvt_pk_bf16_f32 {v(o+u)}, {v(re)}, {v(re+1)}")
                E(f"v_cvt_pk_bf16_f32 {v(o+2+u)}, {v(im)}, {v(im+1)}")
        if hb:
            for r, o in outs:
                for u in range(4): E(f"v_xor_b32 {v(o+u)}, {s(sT1)}, {v(o+u)}")
        for r, o in outs:
            E(f"s_add_u32 {s(sT2 + (o >> 2 & 1))}, {s(sT0)}, {r*16*8192}")
        for r, o in outs:
            E(f"v_permlane32_swap_b32 {v(o)}, {v(o+1)}")
            E(f"v_permlane32_swap_b32 {v(o+2)}, {v(o+3)}")
        for r, o in outs:
            E(f"buffer_store_dwordx4 {v(o,4)}, v4, {s(sWS,4)}, {s(sT2 + (o >> 2 & 1))} offen sc1")
stamp(1)
E("s_waitcnt vmcnt(8)")

E("L_p2:")
stamp(4)
HB = 80
ND = 6
E(f"s_mul_i32 {s(sT2)}, {s(sI)}, 14")
E(f"s_add_u32 {s(sT2)}, {s(sT2)}, {s(sC)}")
E(f"s_add_u32 {s(sT2)}, {s(sT2)}, 32")
E(f"s_lshl_b32 {s(sT0)}, {s(sC)}, 4")
E(f"s_add_u32 {s(sT0)}, {s(sT0)}, {s(sI)}")
E(f"s_sub_u32 {s(sT0)}, {s(sT0)}, {14*16}")
E(f"s_cmp_eq_u32 {s(sDFT)}, 1")
E(f"s_cselect_b32 {s(sT2)}, {s(sT0)}, {s(sT2)}")
E(f"s_lshl_b32 {s(sT2)}, {s(sT2)}, 7")
E(f"s_add_u32 {s(sT2)}, {s(sT2)}, {FL_OFF}")
srd(sX1, 26, 2048*1024)
E(f"s_and_b32 {s(sT3)}, {s(sRT)}, 1")
E(f"s_lshl_b32 {s(sT3)}, {s(sT3)}, 10")
E(f"s_add_u32 {s(sT3)}, {s(sT3)}, {s(sR)}")
E(f"s_lshl_b32 {s(sT3)}, {s(sT3)}, 10")
E(f"s_lshl_b32 {s(sT1)}, {s(sCT)}, 7")
E(f"s_add_u32 {s(sT3)}, {s(sT3)}, {s(sT1)}")

def nonce_and_flag(nyoung, tag):
    E(f"v_readfirstlane_b32 {s(sT0)}, {v(vNON)}")
    E(f"s_mov_b32 {s(sSP)}, 0")
    E(f"v_mov_b32 {v(HB)}, 0")
    E(f"s_cmp_lg_u32 {s(sT0)}, 0")
    E(f"s_cbranch_scc1 L_havenon{tag}")
    E(f"L_spinnon{tag}:")
    E(f"global_load_dwordx2 {v(vNON,2)}, {v(HB)}, s[24:25] sc1")
    E(f"s_add_u32 {s(sSP)}, {s(sSP)}, 1")
    E("s_waitcnt vmcnt(0)")
    E(f"v_readfirstlane_b32 {s(sT0)}, {v(vNON)}")
    E(f"s_cmp_ge_u32 {s(sSP)}, {SPIN}")
    E(f"s_cbranch_scc1 L_havenon{tag}")
    E(f"s_cmp_eq_u32 {s(sT0)}, 0")
    E(f"s_cbranch_scc1 L_spinnon{tag}")
    E(f"L_havenon{tag}:")
    if flag("dbg"): E(f"s_mov_b32 s79, {s(sT0)}")
    E(f"s_waitcnt vmcnt({nyoung})")
    E("s_barrier")
    if tag == "f":
        E(f"s_cmp_lg_u32 {s(sW)}, 0")
        E(f"s_cbranch_scc1 L_noflag")
        E("s_mov_b64 exec, 1")
        E(f"buffer_store_dwordx2 {v(vNON,2)}, {v(HB)}, {s(sWS,4)}, {s(sT2)} offen sc1")
        E("s_mov_b64 exec, -1")
        E("L_noflag:")
def poll(tag, vFO):
    E(f"s_mov_b32 {s(sSP)}, 0")
    E(f"L_poll{tag}:")
    E(f"buffer_load_dwordx2 {v(HB+2,2)}, {v(vFO)}, {s(sWS,4)}, 0 offen sc1")
    E(f"s_add_u32 {s(sSP)}, {s(sSP)}, 1")
    E("s_waitcnt vmcnt(0)")
    E(f"v_cmp_ne_u64 vcc, {v(HB+2,2)}, {v(vNON,2)}")
    E(f"s_cmp_ge_u32 {s(sSP)}, {SPIN}")
    E(f"s_cbranch_scc1 L_polled{tag}")
    E(f"s_cbranch_vccz L_polled{tag}")
    E(f"s_sleep {opt('sleep', 2)}")
    E(f"s_branch L_poll{tag}")
    E(f"L_polled{tag}:")
def acc2(tb, cb): return vACC + (tb*2+cb)*16
vOUT = 7
def out_addr():
    E(f"v_lshrrev_b32 v2, 3, v0")
    E(f"v_and_b32 v3, 7, v0")
    E(f"v_lshlrev_b32 {v(vOUT)}, 14, v2")
    E(f"v_lshl_add_u32 {v(vOUT)}, v3, 4, {v(vOUT)}")
def stream2(ld, mfma, wfree, waits):
    bufs = {j: HB + 8*j for j in range(ND)}
    issued = ND; xl = 0
    for j in range(16):
        E(f"s_waitcnt vmcnt({2*(issued - j - 1) + xl})")
        EL(waits.get(j, []))
        for tb in range(2):
            for cb in range(2):
                E(mfma(j, tb, cb, bufs[j]))
        for fr in (bufs[j], wfree(j)):
            if issued < 16:
                bufs[issued] = fr
                ld(issued, fr); issued += 1
        if issued == 16 and not xl:
            E(f"buffer_load_dwordx4 v[12:15], {v(vOUT)}, {s(sX0,4)}, {s(sT3)} offen")
            xl = 1

E(f"s_cmp_eq_u32 {s(sW)}, 7")
E("s_cbranch_scc1 L_p2_dft")
for j in range(NE, 9): trreads(j)
if NE < 7:
    E("s_waitcnt lgkmcnt(0)")
    r2dma(9 + NE, 16)
for j in range(9, 9 + NE): trreads(j)
E(f"s_mul_i32 {s(sT0)}, {s(sR)}, {14*128}")
E(f"s_lshl_b32 {s(sT1)}, {s(sW)}, 8")
E(f"s_add_u32 {s(sT0)}, {s(sT0)}, {s(sT1)}")
E(f"s_add_u32 {s(sT0)}, {s(sT0)}, {FL_OFF + 32*128}")
E(f"v_and_b32 v4, 1, {v(vL)}")
E(f"v_lshlrev_b32 v4, 7, v4")
E(f"v_add_u32 v4, {s(sT0)}, v4")
E(f"v_lshlrev_b32 v6, 4, {v(vL)}")
hdelta(sT0, sW)
skip3(6, 2, s(sT0))
E(f"v_add_u32 v5, {A_RB}, v6")
out_addr()
nonce_and_flag(2*(7 - NE), "f")
stamp(5)
E(f"s_mul_i32 {s(sT0)}, {s(sRT)}, {2*A_RB}")
E(f"s_lshl_b32 {s(sT1)}, {s(sW)}, 14")
E(f"s_add_u32 {s(sT0)}, {s(sT0)}, {s(sT1)}")
poll("f", 4)
stamp(6)
def ldh(j, B):
    E(f"buffer_load_dwordx4 {v(B,4)}, v6, {s(sWS,4)}, {s(sT0)} offen offset:{(j&3)*1024} sc1")
    E(f"buffer_load_dwordx4 {v(B+4,4)}, v5, {s(sWS,4)}, {s(sT0)} offen offset:{(j&3)*1024} sc1")
    if (j & 3) == 3: E(f"s_add_u32 {s(sT0)}, {s(sT0)}, 4096")
for j in range(ND): ldh(j, HB + 8*j)
for j in range(9 + NE, 16): trreads(j)
def mf_f(j, tb, cb, B):
    A = v(acc2(tb, cb), 16)
    return f"v_mfma_f32_32x32x16_bf16 {A}, {v(wreg(j,cb),4)}, {v(B+4*tb,4)}, {A if j else 0}"
stream2(ldh, mf_f, lambda j: wreg(j, 0), {0: ["s_waitcnt lgkmcnt(0)"]})
E("s_branch L_red")

E("L_p2_dft:")
rd7(1)
E(f"s_cmp_ge_u32 {s(sCT)}, 4")
E(f"s_cselect_b32 {s(sP)}, 0x80008000, 0")
sign7(0)
E("s_waitcnt lgkmcnt(0)")
r2dma(13, 16)
rd7(2)
sign7(1)
nonce_and_flag(6, "d")
stamp(5)
out_addr()
E(f"v_and_b32 v11, 31, {v(vL)}")
E(f"v_lshlrev_b32 v11, 7, v11")
E(f"v_add_u32 v11, {FL_OFF}, v11")
E(f"v_and_b32 v2, 31, {v(vL)}")
E(f"v_lshrrev_b32 v3, 5, {v(vL)}")
E(f"s_lshl_b32 {s(sT0)}, {s(sCT)}, 6")
E(f"s_cmp_ge_u32 {s(sCT)}, 4")
E("s_cbranch_scc1 L_direct")
E(f"s_sub_u32 {s(sT0)}, 256, {s(sT0)}")
E(f"v_sub_u32 v2, {s(sT0)}, v2")
E(f"v_lshlrev_b32 v6, 4, v2")
E(f"v_lshl_add_u32 v6, v3, 12, v6")
E(f"v_subrev_u32 v10, 512, v6")
E(f"s_sub_u32 {s(sT1)}, 16, {s(sR)}")
E(f"s_and_b32 {s(sT1)}, {s(sT1)}, 15")
E("s_branch L_dft2")
E("L_direct:")
E(f"s_sub_u32 {s(sT0)}, {s(sT0)}, 256")
E(f"v_add_u32 v2, {s(sT0)}, v2")
E(f"v_lshlrev_b32 v6, 4, v2")
E(f"v_lshl_add_u32 v6, v3, 12, v6")
E(f"v_add_u32 v10, 512, v6")
E(f"s_mov_b32 {s(sT1)}, {s(sR)}")
E("L_dft2:")
zskip(6, 2, 3)
zskip(10, 2, 3)
E(f"s_lshl_b32 {s(sT0)}, {s(sT1)}, 17")
E(f"s_add_u32 {s(sT0)}, {s(sT0)}, {Z_OFF}")
E("s_waitcnt vmcnt(0) lgkmcnt(0)")
rd7(3)
sign7(2)
E("s_waitcnt lgkmcnt(0)")
sign7(3)
poll("d", 11)
stamp(6)
def ldz(j, B):
    E(f"buffer_load_dwordx4 {v(B,4)}, v6, {s(sWS,4)}, {s(sT0)} offen sc1")
    E(f"buffer_load_dwordx4 {v(B+4,4)}, v10, {s(sWS,4)}, {s(sT0)} offen sc1")
    E(f"s_add_u32 {s(sT0)}, {s(sT0)}, 8192")
for j in range(ND): ldz(j, HB + 8*j)
def mf_d(j, tb, cb, B):
    A = v(acc2(tb, cb), 16)
    return f"v_mfma_f32_32x32x16_bf16 {A}, {v(B+4*cb,4)}, {v(wreg7(j,tb),4)}, {A if j else 0}"
stream2(ldz, mf_d, lambda j: wreg7(j, 0), {})

E("L_red:")
stamp(7)
E(f"v_bfe_u32 v2, {v(vL)}, 2, 3")
E(f"v_lshlrev_b32 v2, 13, v2")
E(f"v_and_b32 v3, 3, {v(vL)}")
E(f"v_lshl_add_u32 v2, v3, 8, v2")
E(f"v_lshrrev_b32 v3, 5, {v(vL)}")
E(f"v_and_b32 v4, 7, {v(vL)}")
E(f"v_xor_b32 v3, v3, v4")
E(f"v_lshl_add_u32 v2, v3, 4, v2")
E(f"v_add_u32 {v(HB)}, {s(sWd)}, v2")
for q in range(1, 4): E(f"v_xor_b32 {v(HB+q)}, {32*q}, {v(HB)}")
for q in range(4): E(f"v_add_u32 {v(HB+4+q)}, {8*Q}, {v(HB+q)}")
for tb in range(2):
    for cb in range(2):
        for q in range(4):
            E(f"ds_write_b128 {v(HB+4*tb+q)}, {v(acc2(tb,cb)+4*q,4)} offset:{cb*128}")
E(f"v_lshrrev_b32 v2, 3, v0")
E(f"v_and_b32 v3, 7, v0")
E(f"v_lshlrev_b32 v9, 1, v3")
E(f"v_and_b32 v10, 7, v2")
E(f"v_xor_b32 v9, v9, v10")
E(f"v_lshlrev_b32 v9, 4, v9")
E(f"v_and_b32 v10, 3, v2")
E(f"v_lshl_add_u32 v9, v10, 8, v9")
E(f"v_lshrrev_b32 v10, 2, v2")
E(f"v_lshl_add_u32 v9, v10, 13, v9")
E(f"v_xor_b32 v10, 16, v9")
E(f"v_or_b32 v3, {s(sCT)}, v3")
E(f"v_cmp_ne_u32 vcc, 0, v3")
E(f"s_mov_b32 {s(sK)}, {f32(-math.log2(math.e))}")
E("s_waitcnt lgkmcnt(0)")
E("s_barrier")
stamp(8)
RD = 128
for w in range(8):
    E(f"ds_read_b128 {v(RD+8*w,4)}, v9 offset:{w*1024}")
    E(f"ds_read_b128 {v(RD+8*w+4,4)}, v10 offset:{w*1024}")
def sum8(d, a):
    for k in range(4):
        E(f"v_pk_add_f32 {v(RD+8*d+2*k,2)}, {v(RD+8*d+2*k,2)}, {v(RD+8*a+2*k,2)}")
E("s_waitcnt lgkmcnt(12)"); sum8(0, 1)
E("s_waitcnt lgkmcnt(8)"); sum8(2, 3)
E("s_waitcnt lgkmcnt(4)"); sum8(4, 5); sum8(0, 2)
E("s_waitcnt lgkmcnt(2)"); sum8(4, 6); sum8(0, 4)
T = vACC
for k in range(4):
    E(f"v_pk_mul_f32 {v(T+2*k,2)}, {v(RD+2*k,2)}, {s(sK,2)} op_sel_hi:[1,0]")
for k in range(8):
    E(f"v_exp_f32 {v(T+k)}, {v(T+k)}")
E("s_nop 0")
for k in range(4):
    E(f"v_pk_add_f32 {v(T+2*k,2)}, {v(T+2*k,2)}, 1.0 op_sel_hi:[1,0]")
for k in range(8):
    E(f"v_rcp_f32 {v(T+k)}, {v(T+k)}")
E("s_waitcnt vmcnt(0) lgkmcnt(0)")
E(f"v_cndmask_b32 {v(RD+56)}, 0, {v(RD+56)}, vcc")
for k in range(4):
    E(f"v_lshlrev_b32 {v(T+8+2*k)}, 16, v{12+k}")
    E(f"v_and_b32 {v(T+9+2*k)}, {s(sMASK)}, v{12+k}")
for k in range(4):
    E(f"v_pk_mul_f32 {v(T+2*k,2)}, {v(T+2*k,2)}, {v(RD+2*k,2)}")
for k in range(4):
    E(f"v_pk_fma_f32 {v(T+2*k,2)}, {v(T+2*k,2)}, {v(RD+56+2*k,2)}, {v(T+8+2*k,2)}")
for k in range(4):
    E(f"v_cvt_pk_bf16_f32 v{12+k}, {v(T+2*k)}, {v(T+2*k+1)}")
E(f"buffer_store_dwordx4 v[12:15], {v(vOUT)}, {s(sX1,4)}, {s(sT3)} offen" + (" sc1" if flag("outsc1") else "") + (" nt" if flag("outnt") else ""))
if STAMP:
    E("s_waitcnt vmcnt(0)")
    stamp(9)
    E("s_waitcnt lgkmcnt(0)")
    E(f"s_lshl_b32 s78, s2, 3")
    E(f"s_add_u32 s78, s78, {s(sW)}")
    E(f"s_lshl_b32 s78, s78, 6")
    E(f"s_add_u32 s78, s78, {STAMP_OFF}")
    E(f"s_mov_b32 {s(sWS+2)}, 0x2000000")
    for k in range(12):
        E(f"v_mov_b32 {v(200+k)}, s{80+2*min(k,NST-1)}")
    E(f"v_mov_b32 v212, 0")
    E("s_mov_b64 exec, 1")
    if flag("dbg"):
        for k in range(10):
            E(f"v_subrev_u32 {v(216+k)}, s79, {v(200+k)}")
            E(f"v_add_u32 {v(216+k)}, 1000, {v(216+k)}")
            E(f"global_atomic_umax v212, {v(216+k)}, s[24:25] offset:{8+4*k}")
        E(f"v_sub_u32 v226, 100000, v216")
        E(f"global_atomic_umax v212, v226, s[24:25] offset:48")
    for k in range(3):
        E(f"buffer_store_dwordx4 {v(200+4*k,4)}, v212, {s(sWS,4)}, s78 offen offset:{16*k}")
E("L_end:")
E("s_endpgm")

E('.section .rodata,"a"')
E(".p2align 6")
E(f""".amdhsa_kernel {KNAME}
.amdhsa_next_free_vgpr 256
.amdhsa_next_free_sgpr 102
.amdhsa_accum_offset 256
.amdhsa_group_segment_fixed_size 0
.amdhsa_kernarg_size 96
.amdhsa_user_sgpr_count 2
.amdhsa_user_sgpr_kernarg_segment_ptr 1
.amdhsa_system_sgpr_workgroup_id_x 1
.end_amdhsa_kernel""")
open(OUT, "w").write("\n".join(L) + "\n")
```

```python
import sys, math, struct

ARGS = sys.argv[1:]
def flag(n): return ("--" + n) in ARGS
def opt(n, d):
    for a in ARGS:
        if a.startswith("--" + n + "="): return int(a.split("=")[1])
    return d
STAMP = flag("stamp")
OUT = [a for a in ARGS if not a.startswith("--")][0]
KNAME = "recurrent_scan__spectral_fnet__geglu_ffn__prompt_kernel"

A_RB = 112 * 1024
Z_OFF = 0x700000
FL_OFF = 0x901000
OVF = 0xA00000
WS_SIZE = 0x1400000
STAMP_OFF = 0x1800000
SPIN = 1 << 16

L = []
def E(s=""):
    for line in s.split("\n"):
        if not line.strip(): continue
        L.append(line if line.endswith(":") or line.startswith(".") or line.startswith(";") else "    " + line.strip())
def EL(l):
    for x in l: E(x)
def f32(x):
    return "0x%08x" % struct.unpack("<I", struct.pack("<f", x))[0]
def v(a, n=1):
    return f"v{a}" if n == 1 else f"v[{a}:{a+n-1}]"
def s(a, n=1):
    return f"s{a}" if n == 1 else f"s[{a}:{a+n-1}]"
NST = 10
def stamp(k, loop=False):
    if flag("itstamp"):
        if k == 2 and not loop: k = 1
        elif k == 0: pass
        elif not loop: return
    elif loop: return
    if STAMP:
        E(f"s_mem{'' if flag('cyc') else 'real'}time s[{80+2*k}:{81+2*k}]")
    elif opt("padk", -1) == k:
        E(f"s_memrealtime s[82:83]")
_lab = [0]
def newlab(p):
    _lab[0] += 1
    return f"L_{p}{_lab[0]}"

HEADER = open("recurrent_scan__spectral_fnet__geglu_ffn__prompt.s.ref").read().split("; Override")[0]
E(HEADER.rstrip())
E("; @launch grid=(256,1,1) block=(512,1,1) lds=163840")
E('.amdgcn_target "amdgcn-amd-amdhsa--gfx950"')
E(".text")

Q = 8192
WSLOT = 16384; NW = 6
XRING = NW * WSLOT; XSLOT = 16384; NX = 3
MISC = XRING + NX * XSLOT
ST_OFF = MISC
CS_OFF = MISC + 4096
PRIV = MISC + 8192
PP = [4, 8, 5, 0, 6, 1, 2, 7, 3]
PFREE = [10, 11, 11, 12, 13, 13, 14, 15, 15]

sX0, sX1, sG, sU, sWS = 4, 8, 12, 16, 20
sG2, sU2 = 40, 44
(sI, sC, sW, sWinc, sWlim, sWoff, sInc2, sAdj2, sXoff, sWd, sOff2, sCB, sRS, sP, sRH, sCQ, sT0, sT1, sMASK, sDFT,
 sRT, sCT, sR, sT2, sT3, sSP) = range(48, 74)
sK = 74
vL = 1
vA2 = 8
vNON = 14
vACC = 16
XE, XO, X1a, Ga, Ua, X0b, X1b, Gb, Ub = [80 + 4*k for k in range(9)]
vXB = 116; vWB = 124
vW2 = 7
vXo = 128; vWo = 132
vSUM, vSQ = 136, 138
vUT = 140
vSELG, vSELU, vCSD = 144, 148, 152
vSTW, vCSW, vSTR, vCSR_, vPW, vPR = range(156, 162)
vTA = 162
vZERO = 167

def skip3(vo, vt, delta):
    if (not flag("skip")): return
    E(f"v_bfe_u32 {v(vt)}, {v(vo)}, 7, 3")
    E(f"v_cmp_eq_u32 vcc, 3, {v(vt)}")
    E(f"v_add_u32 {v(vt)}, {delta}, {v(vo)}")
    E("s_nop 0")
    E(f"v_cndmask_b32 {v(vo)}, {v(vo)}, {v(vt)}, vcc")
def hdelta(sd, sslice):
    E(f"s_cmp_ge_u32 {s(sslice)}, 3")
    E(f"s_addc_u32 {s(sd)}, {s(sslice)}, 0")
    E(f"s_lshl_b32 {s(sd)}, {s(sd)}, 7")
    E(f"s_add_u32 {s(sd)}, {s(sd)}, {OVF - 384}")
def zskip(vo, vt, vt2):
    if (not flag("skip")): return
    E(f"v_bfe_u32 {v(vt2)}, {v(vo)}, 10, 2")
    E(f"v_lshlrev_b32 {v(vt2)}, 7, {v(vt2)}")
    E(f"v_add_u32 {v(vt2)}, {OVF + 128}, {v(vt2)}")
    skip3(vo, vt, v(vt2))
def acc(rb, p):
    return vACC + (rb * 2 + p) * 16
def srd(d, lo, size):
    E(f"s_mov_b32 {s(d)}, s{lo}\ns_mov_b32 {s(d+1)}, s{lo+1}\ns_mov_b32 {s(d+2)}, {size}\ns_mov_b32 {s(d+3)}, 0x20000")

E(f".globl {KNAME}\n.p2align 8\n.type {KNAME},@function\n{KNAME}:")
E("s_cmp_ge_u32 s2, 256")
E("s_cbranch_scc1 L_end")
stamp(0)
E("s_load_dwordx16 s[32:47], s[0:1], 0")
E("s_load_dwordx2 s[28:29], s[0:1], 64")
E("s_load_dwordx2 s[26:27], s[0:1], 72")
E("s_load_dwordx2 s[24:25], s[0:1], 80")
E("s_load_dwordx2 s[30:31], s[0:1], 88")
E("s_memrealtime s[78:79]")
E(f"v_lshrrev_b32 v2, 6, v0")
E(f"v_and_b32 {v(vL)}, 63, v0")
E(f"v_readfirstlane_b32 {s(sW)}, v2")
E("s_getpc_b64 s[4:5]")
E("L_pc:")
E(f"s_cmp_lg_u32 {s(sW)}, 7")
E("s_cbranch_scc1 L_nct")
E("s_and_b32 s6, s2, 0xf8")
E("v_and_b32 v2, 7, v0")
E("v_add_u32 v2, s6, v2")
E("v_lshlrev_b32 v2, 7, v2")
E("v_min_u32 v2, L_end-L_pc, v2")
E(f"global_load_dword {v(vTA+4)}, v2, s[4:5]")
E("L_nct:")
E(f"s_and_b32 {s(sT0)}, s2, 3")
E(f"s_lshl_b32 {s(sT0)}, {s(sT0)}, 2")
E(f"s_bfe_u32 {s(sI)}, s2, 0x20003")
E(f"s_add_u32 {s(sI)}, {s(sI)}, {s(sT0)}")
E(f"s_bfe_u32 {s(sT0)}, s2, 0x10002")
E(f"s_lshr_b32 {s(sT1)}, s2, 5")
E(f"s_mul_i32 {s(sC)}, {s(sT0)}, 7")
E(f"s_add_u32 {s(sC)}, {s(sC)}, {s(sT1)}")
E(f"s_sub_u32 {s(sC)}, {s(sC)}, 1")
E(f"s_add_u32 {s(sT0)}, {s(sT0)}, 14")
E(f"s_cmp_eq_u32 {s(sT1)}, 0")
E(f"s_cselect_b32 {s(sC)}, {s(sT0)}, {s(sC)}")
E(f"s_cselect_b32 {s(sDFT)}, 1, 0")
E(f"s_cselect_b32 {s(sRS)}, 2, 7")
E(f"s_lshl_b32 {s(sRS)}, {s(sRS)}, 9")
E(f"s_lshl_b32 {s(sWinc)}, {s(sRS)}, 5")
E(f"s_lshl_b32 {s(sWlim)}, {s(sRS)}, 9")
E(f"s_lshr_b32 {s(sRH)}, {s(sW)}, 2")
E(f"s_and_b32 {s(sCQ)}, {s(sW)}, 3")
E(f"v_lshrrev_b32 v2, 3, v0")
E(f"v_bfe_u32 v3, v2, 1, 3")
E(f"v_and_b32 v4, 7, {v(vL)}")
E(f"v_xor_b32 v3, v3, v4")
E(f"v_lshlrev_b32 v3, 4, v3")
E(f"s_lshl_b32 {s(sCB)}, {s(sC)}, 8")
E(f"s_cmp_eq_u32 {s(sDFT)}, 1")
E("s_cbranch_scc1 L_rows_dft")
E(f"v_lshlrev_b32 v2, 4, v2")
E(f"v_add_u32 v2, {s(sI)}, v2")
E(f"s_mov_b32 {s(sT0)}, {512*1024}")
E(f"s_mov_b32 {s(sT1)}, {1024*1024}")
E("s_branch L_rows_done")
E("L_rows_dft:")
E("v_and_b32 v4, 1, v2")
E("v_bfe_u32 v5, v2, 2, 1")
E("v_lshl_add_u32 v4, v5, 1, v4")
E("v_bfe_u32 v5, v2, 1, 1")
E("v_lshl_add_u32 v4, v5, 7, v4")
E("v_bfe_u32 v5, v2, 3, 2")
E("v_lshl_add_u32 v4, v5, 8, v4")
E(f"s_lshl_b32 {s(sT1)}, {s(sI)}, 3")
E(f"v_add_u32 v2, {s(sT1)}, v4")
E(f"s_mov_b32 {s(sT0)}, {1024*1024}")
E(f"s_mov_b32 {s(sT1)}, {4*1024}")
E(f"s_sub_u32 {s(sCB)}, {s(sCB)}, {14*256 - 512}")
E("L_rows_done:")
E(f"v_lshl_add_u32 {v(vXo)}, v2, 10, v3")
E(f"v_add_u32 {v(vXo+1)}, {s(sT0)}, {v(vXo)}")
E(f"v_add_u32 {v(vXo+2)}, {s(sT1)}, {v(vXo)}")
E(f"v_add_u32 {v(vXo+3)}, {s(sT1)}, {v(vXo+1)}")
E(f"v_lshrrev_b32 v2, 4, v0")
E(f"v_and_b32 v3, 3, v2")
E(f"v_lshlrev_b32 v3, 2, v3")
E(f"v_and_b32 v4, 15, {v(vL)}")
E(f"v_xor_b32 v3, v3, v4")
E(f"v_lshlrev_b32 v3, 4, v3")
E(f"v_mul_lo_u32 v2, v2, {s(sRS)}")
E(f"v_add3_u32 {v(vWo)}, v2, v3, {s(sCB)}")
E(f"s_lshl_b32 {s(sT0)}, {s(sRS)}, 4")
E(f"v_add_u32 {v(vWo+1)}, {s(sT0)}, {v(vWo)}")
E(f"s_mov_b32 {s(sXoff)}, 0")
E(f"s_mov_b32 {s(sWoff)}, 0")
E(f"s_lshl_b32 {s(sWd)}, {s(sW)}, 10")
E("s_waitcnt lgkmcnt(0)")
srd(sX0, 32, 2048*1024)
E(f"s_cmp_eq_u32 {s(sDFT)}, 1")
E(f"s_cselect_b32 {s(sG)}, s38, s44\ns_cselect_b32 {s(sG+1)}, s39, s45")
E(f"s_cselect_b32 {s(sU)}, s40, s46\ns_cselect_b32 {s(sU+1)}, s41, s47")
E(f"s_mov_b32 {s(sG+2)}, {s(sWlim)}\ns_mov_b32 {s(sG+3)}, 0x20000")
E(f"s_mov_b32 {s(sU+2)}, {s(sWlim)}\ns_mov_b32 {s(sU+3)}, 0x20000")

class Stream:
    def __init__(self):
        order = ["W0", "X0", "W1", "W2", "X1", "W3", "W4", "X2", "W5"]
        for P in range(3, 8): order += [f"W{2*P}", f"X{P}", f"W{2*P+1}"]
        self.todo = [(o, b) for o in order for b in range(4)]
        self.todo += [(f"T{k}", b) for k in range(9) for b in range(2)]
        self.issued = []
        self.bar = -1
    def free_after(self, o):
        k, n = o[0], int(o[1:])
        if k == "W": return n - 6
        if k == "X": return 2*(n-3) + 1
        return PFREE[n]
    def peek(self):
        if not self.todo: return None
        o, b = self.todo[0]
        return None if self.free_after(o) > self.bar else o[0]
    def next(self):
        o, b = self.todo.pop(0); self.issued.append(o)
        k, n = o[0], int(o[1:])
        post = []
        if k == "W":
            dst = (2*(n % 6) + (b & 1))*Q + (b >> 1)*4096
            ld = f"buffer_load_dwordx4 {v(vWo+(b>>1))}, {s(sU if b&1 else sG,4)}, {s(sWoff)} offen lds"
            if b == 3: post = [f"s_add_u32 {s(sWoff)}, {s(sWoff)}, {s(sWinc)}"]
        elif k == "X":
            dst = XRING + (n % 3)*XSLOT + b*4096
            ld = f"buffer_load_dwordx4 {v(vXo+b)}, {s(sX0,4)}, {s(sXoff)} offen lds"
            if b == 3: post = [f"s_add_u32 {s(sXoff)}, {s(sXoff)}, 128"]
        else:
            dst = (2*PP[n % 9] + b)*Q
            ld = f"buffer_load_dwordx4 {v(vW2)}, {s(sU2 if b else sG2,4)}, {s(sOff2)} offen lds"
            if b: post = [f"s_add_u32 {s(sOff2)}, {s(sOff2)}, {s(sInc2)}"] + ([f"s_sub_u32 {s(sOff2)}, {s(sOff2)}, {s(sAdj2)}"] if n == 7 else [])
        m0 = f"s_add_u32 m0, {s(sWd)}, {dst}" if dst else f"s_mov_b32 m0, {s(sWd)}"
        return m0, ld, post
    def wait(self, need):
        last = max(i for i, o in enumerate(self.issued) if o in need)
        for o in need: assert self.issued.count(o) == (2 if o[0] == "T" else 4), (o, self.issued)
        return len(self.issued) - 1 - last
    def copy(self):
        c = Stream(); c.todo = list(self.todo); c.issued = list(self.issued); c.bar = self.bar; return c
ST = Stream()
def dma_slot(st, nmax=2):
    k = st.peek()
    if k is None: return []
    if k == "T":
        m0, ld, post = st.next()
        return [m0, "s_nop 0", ld] + post
    lab = newlab("sk")
    o = [f"s_cbranch_vccnz {lab}"]
    for _ in range(nmax):
        if st.peek() in ("W", "X"):
            m0, ld, post = st.next()
            o += [m0, "s_nop 0", ld] + post
    return o + [f"{lab}:"]

E(f"s_cmp_ge_u32 {s(sW)}, 4")
E("s_cbranch_scc1 L_helper")
NPRO = opt("npro", 16)
for _ in range(NPRO):
    m0, ld, post = ST.next()
    EL([m0, "s_nop 0", ld] + post)
E("s_branch L_setup")
E("L_helper:")
E("s_cmp_lg_u32 s2, 0")
E("s_cbranch_scc1 L_nononce")
E(f"s_cmp_lg_u32 {s(sW)}, 4")
E("s_cbranch_scc1 L_nononce")
E("s_or_b32 s78, s78, 1")
E("v_mov_b32 v2, s78\nv_mov_b32 v3, s79\nv_mov_b32 v4, 0")
E("s_mov_b64 exec, 1")
E("global_store_dwordx2 v4, v[2:3], s[24:25] sc1")
E("s_mov_b64 exec, -1")
E("L_nononce:")
if not flag("nota"):
    if opt("tadelay", 0): E(f"s_sleep {opt('tadelay', 0)}")
    E(f"v_lshrrev_b32 v2, 1, {v(vL)}")
    E(f"s_lshl_b32 {s(sT0)}, {s(sI)}, 5")
    E(f"v_add_u32 v2, {s(sT0)}, v2")
    E(f"v_mul_lo_u32 v2, v2, {s(sRS)}")
    E(f"v_and_b32 v3, 1, {v(vL)}")
    E(f"v_lshl_add_u32 v2, v3, 7, v2")
    E(f"s_cmp_eq_u32 {s(sW)}, 4")
    E("s_cbranch_scc0 L_ta1")
    E(f"buffer_load_dword {v(vTA+4)}, v2, {s(sG,4)}, {s(sCB)} offen")
    E("L_ta1:")
    E(f"s_cmp_eq_u32 {s(sW)}, 5")
    E("s_cbranch_scc0 L_ta2")
    E(f"buffer_load_dword {v(vTA+4)}, v2, {s(sU,4)}, {s(sCB)} offen")
    E("L_ta2:")
    E(f"s_cmp_eq_u32 {s(sW)}, 6")
    E("s_cbranch_scc0 L_ta3")
    E(f"v_lshlrev_b32 v2, 7, {v(vL)}")
    E(f"s_lshl_b32 {s(sT0)}, s2, 13")
    E(f"buffer_load_dword {v(vTA+4)}, v2, {s(sX0,4)}, {s(sT0)} offen")
    E("L_ta3:")
E("L_setup:")
E(f"s_bfe_u32 {s(sCT)}, s2, 0x30003")
if flag("ctrot"):
    E(f"s_add_u32 {s(sCT)}, {s(sCT)}, s2")
    E(f"s_and_b32 {s(sCT)}, {s(sCT)}, 7")
E(f"s_and_b32 {s(sRT)}, s2, 7")
E(f"s_lshl_b32 {s(sRT)}, {s(sRT)}, 2")
E(f"s_lshr_b32 {s(sT1)}, s2, 6")
E(f"s_add_u32 {s(sRT)}, {s(sRT)}, {s(sT1)}")
E(f"s_lshr_b32 {s(sR)}, {s(sRT)}, 1")
srd(sWS, 30, WS_SIZE)
E(f"s_lshr_b32 {s(sT0)}, {s(sCQ)}, 1")
E(f"s_xor_b32 {s(sT0)}, {s(sT0)}, {s(sRH)}")
E(f"v_lshrrev_b32 v2, 5, {v(vL)}")
E(f"v_bfe_u32 v3, {v(vL)}, 2, 2")
E(f"v_lshlrev_b32 v4, 11, v2")
E(f"v_lshl_add_u32 v4, v3, 8, v4")
E(f"v_xor_b32 v3, {s(sCQ)}, v3")
E(f"v_lshl_add_u32 v4, v3, 6, v4")
E(f"v_bfe_u32 v3, {v(vL)}, 4, 1")
E(f"v_lshl_add_u32 v4, v3, 5, v4")
E(f"v_and_b32 v5, 3, {v(vL)}")
E(f"v_lshl_add_u32 v4, v5, 3, v4")
E(f"s_lshl_b32 {s(sT1)}, {s(sT0)}, 12")
E(f"v_add_u32 {v(vWB)}, {s(sT1)}, v4")
E(f"v_xor_b32 {v(vWB+1)}, 4096, {v(vWB)}")
E(f"v_add_u32 {v(vWB+2)}, {3*WSLOT}, {v(vWB)}")
E(f"v_add_u32 {v(vWB+3)}, {3*WSLOT}, {v(vWB+1)}")
E(f"v_and_b32 v5, 15, {v(vL)}")
E(f"v_lshlrev_b32 v3, 2, v3")
E(f"v_sub_u32 v5, v5, v3")
E(f"v_mov_b32 v6, 0x3f803f80")
E(f"v_cmp_eq_u32 vcc, 0, v5")
E(f"v_cmp_eq_u32 s[78:79], 8, v5")
E(f"v_and_b32 v3, 31, {v(vL)}")
E(f"v_bfe_u32 v4, {v(vL)}, 1, 3")
for k in range(4):
    E(f"v_cndmask_b32 {v(vSELG+k)}, 0, v6, vcc")
    E(f"v_cndmask_b32 {v(vSELU+k)}, 0, v6, s[78:79]")
E(f"v_xor_b32 v4, v4, v2")
E(f"v_lshlrev_b32 v4, 4, v4")
E(f"v_lshl_add_u32 v4, v3, 7, v4")
E(f"s_lshl_b32 {s(sT0)}, {s(sT0)}, 5")
E(f"v_xor_b32 v4, {s(sT0)}, v4")
E(f"s_and_b32 {s(sT0)}, {s(sCQ)}, 1")
E(f"s_lshl_b32 {s(sT1)}, {s(sRH)}, 1")
E(f"s_add_u32 {s(sT2)}, {s(sT0)}, {s(sT1)}")
E(f"s_lshl_b32 {s(sT0)}, {s(sT2)}, 12")
E(f"s_add_u32 {s(sT0)}, {s(sT0)}, {XRING}")
E(f"v_add_u32 v4, {s(sT0)}, v4")
for q in range(4):
    E(f"v_xor_b32 {v(vXB+2*q)}, {q*32}, v4")
    E(f"v_xor_b32 {v(vXB+2*q+1)}, {q*32+4096}, v4")
for r in list(range(vACC, vACC+64)) + list(range(vSUM, vSUM+4)) + list(range(vCSD, vCSD+4)) + [vZERO]:
    E(f"v_mov_b32 {v(r)}, 0")
E(f"s_mov_b32 {s(sMASK)}, 0xffff0000")
E(f"s_lshl_b32 {s(sT2)}, {s(sT2)}, 10")
E(f"s_add_u32 {s(sT2)}, {s(sT2)}, {ST_OFF}")
E(f"s_and_b32 {s(sT1)}, {s(sCQ)}, 2")
E(f"s_lshl_b32 {s(sT1)}, {s(sT1)}, 2")
E(f"s_add_u32 {s(sT1)}, {s(sT1)}, {s(sT2)}")
E(f"v_lshlrev_b32 v4, 5, v3")
E(f"v_lshl_add_u32 v5, v2, 2, v4")
E(f"v_add_u32 {v(vSTW)}, {s(sT1)}, v5")
E(f"v_lshlrev_b32 v5, 10, v2")
E(f"v_xor_b32 v5, {s(sT2)}, v5")
E(f"v_add_u32 {v(vSTR)}, v5, v4")
E(f"v_lshlrev_b32 v5, 2, v0")
E(f"v_add_u32 {v(vCSW)}, {CS_OFF}, v5")
E(f"v_xor_b32 {v(vCSR_)}, 1024, {v(vCSW)}")
E(f"s_lshl_b32 {s(sT0)}, {s(sW)}, 9")
E(f"s_add_u32 {s(sT0)}, {s(sT0)}, {PRIV}")
E(f"v_lshlrev_b32 v5, 2, {v(vL)}")
E(f"v_add_u32 {v(vPW)}, {s(sT0)}, v5")
E(f"v_lshlrev_b32 v5, 4, v2")
E(f"v_add_u32 {v(vPR)}, {s(sT0)}, v5")
E(f"s_mov_b32 {s(sOff2)}, 0")
E(f"v_lshrrev_b32 v5, 3, {v(vL)}")
E(f"v_and_b32 v6, 7, {v(vL)}")
E(f"s_cmp_eq_u32 {s(sW)}, 7")
E("s_cbranch_scc1 L_reconf7")
E(f"v_bfe_u32 v4, {v(vL)}, 4, 1")
E(f"v_lshlrev_b32 v4, 2, v4")
E(f"v_xor_b32 v4, v4, v6")
E(f"v_lshlrev_b32 v4, 4, v4")
E(f"v_lshl_add_u32 v4, v5, 10, v4")
E(f"s_lshl_b32 {s(sT0)}, {s(sW)}, 18")
E(f"s_lshl_b32 {s(sT1)}, {s(sCT)}, 7")
E(f"s_add_u32 {s(sT0)}, {s(sT0)}, {s(sT1)}")
srd(sG2, 28, 1792*1024)
E(f"s_add_u32 {s(sU2)}, s28, {Q}\ns_addc_u32 {s(sU2+1)}, s29, 0\ns_mov_b32 {s(sU2+2)}, {1792*1024-Q}")
E(f"s_mov_b32 {s(sInc2)}, {2*Q}")
E(f"s_mov_b32 {s(sAdj2)}, 0")
E(f"v_bfe_u32 v5, {v(vL)}, 2, 2")
E(f"v_lshl_add_u32 v5, v2, 2, v5")
E(f"v_lshlrev_b32 v5, 7, v5")
E(f"v_bfe_u32 v6, {v(vL)}, 3, 1")
E(f"v_lshl_add_u32 v5, v6, 6, v5")
E(f"v_bfe_u32 v6, {v(vL)}, 4, 1")
E(f"v_lshl_add_u32 v5, v6, 5, v5")
E(f"v_and_b32 v6, 3, {v(vL)}")
E(f"v_lshl_add_u32 v5, v6, 3, v5")
E(f"v_add_u32 {v(vA2)}, {s(sWd)}, v5")
E(f"v_xor_b32 {v(vA2+1)}, 64, {v(vA2)}")
for g in (1, 2):
    E(f"v_add_u32 {v(vA2+2*g)}, {8*Q*g}, {v(vA2)}\nv_add_u32 {v(vA2+2*g+1)}, {8*Q*g}, {v(vA2+1)}")
E("s_branch L_reconf_c")
E("L_reconf7:")
E(f"v_bfe_u32 v4, {v(vL)}, 4, 2")
E(f"v_lshlrev_b32 v4, 1, v4")
E(f"v_xor_b32 v4, v4, v6")
E(f"v_lshlrev_b32 v4, 4, v4")
E(f"v_lshl_add_u32 v4, v5, 16, v4")
E(f"s_and_b32 {s(sT0)}, {s(sRT)}, 1")
E(f"s_lshl_b32 {s(sT0)}, {s(sT0)}, 10")
E(f"s_add_u32 {s(sT0)}, {s(sT0)}, {s(sR)}")
E(f"s_lshl_b32 {s(sT0)}, {s(sT0)}, 12")
srd(sG2, 34, 2048*4096)
E(f"s_mov_b32 {s(sU2)}, s36\ns_mov_b32 {s(sU2+1)}, s37\ns_mov_b32 {s(sU2+2)}, {2048*4096}")
E(f"s_mov_b32 {s(sInc2)}, {8*65536}")
E(f"s_mov_b32 {s(sAdj2)}, {64*65536 - 128}")
E(f"v_and_b32 v5, 7, v3")
E(f"v_lshlrev_b32 v5, 7, v5")
E(f"v_bfe_u32 v6, v3, 1, 2")
E(f"v_lshl_add_u32 v5, v6, 5, v5")
E(f"v_lshl_add_u32 v5, v2, 3, v5")
E(f"v_add_u32 {v(vA2)}, {s(sWd)}, v5")
E(f"v_lshrrev_b32 v5, 3, v3")
E(f"v_lshlrev_b32 {v(vA2+1)}, 2, v5")
if flag("w7oob"):
    E(f"s_mov_b32 {s(sG2+2)}, 0\ns_mov_b32 {s(sU2+2)}, 0\ns_mov_b32 {s(sInc2)}, 0\ns_mov_b32 {s(sAdj2)}, 0")
E("L_reconf_c:")
if flag("alloob"):
    E(f"s_mov_b32 {s(sG2+2)}, 0\ns_mov_b32 {s(sU2+2)}, 0\ns_mov_b32 {s(sInc2)}, 0\ns_mov_b32 {s(sAdj2)}, 0")
E(f"s_mov_b32 {s(sU2+3)}, 0x20000")
E(f"v_add_u32 {v(vW2)}, {s(sT0)}, v4")
E(f"v_min_u32 v4, 55, {v(vL)}")
E(f"s_lshr_b32 {s(sT0)}, s2, 3")
E(f"s_mul_i32 {s(sT0)}, {s(sT0)}, 56")
E(f"v_add_u32 v4, {s(sT0)}, v4")
E(f"v_lshlrev_b32 v4, 10, v4")
E(f"v_add_u32 {v(vTA+2)}, 384, v4")
E(f"s_cmp_lg_u32 {s(sW)}, 4")
E("s_cbranch_scc1 L_touch_ws")
E(f"v_min_u32 v4, 55, {v(vL)}")
E(f"s_mul_i32 {s(sT0)}, s2, 56")
E(f"v_add_u32 v4, {s(sT0)}, v4")
E(f"v_lshlrev_b32 v4, 7, v4")
E(f"v_mov_b32 {v(vTA)}, s28\nv_mov_b32 {v(vTA+1)}, s29")
E("s_branch L_touch_c")
E("L_touch_ws:")
E(f"s_cmp_eq_u32 {s(sW)}, 5")
E(f"s_cselect_b32 {s(sT1)}, 63, 0")
E(f"v_and_b32 v5, {s(sT1)}, {v(vL)}")
E(f"v_bfe_u32 v4, v5, 1, 3")
E(f"s_lshl_b32 {s(sT0)}, s2, 3")
E(f"v_add_u32 v4, {s(sT0)}, v4")
E(f"v_lshlrev_b32 v4, 12, v4")
E(f"v_and_b32 v6, 1, v5")
E(f"v_lshl_add_u32 v4, v6, 7, v4")
E(f"v_and_b32 v6, 16, v5")
E(f"v_cmp_eq_u32 vcc, 0, v6")
E(f"v_mov_b32 {v(vTA)}, s36\nv_mov_b32 {v(vTA+1)}, s37\nv_mov_b32 v5, s34\nv_mov_b32 v6, s35")
E(f"v_cndmask_b32 {v(vTA)}, {v(vTA)}, v5, vcc\nv_cndmask_b32 {v(vTA+1)}, {v(vTA+1)}, v6, vcc")
E("L_touch_c:")
E(f"v_add_co_u32 {v(vTA)}, vcc, {v(vTA)}, v4\ns_nop 1\nv_addc_co_u32 {v(vTA+1)}, vcc, 0, {v(vTA+1)}, vcc")
E(f"s_mov_b32 vcc_lo, {s(sRH)}")
E(f"s_mov_b32 vcc_hi, 0")

def reads(F, it, sl):
    X0, X1, G, U = F
    q = 2*(it & 1) + sl
    xo = ((it >> 1) % 3) * XSLOT
    ws = it % 6
    wa = v(vWB + sl + 2*(ws // 3)); wo = (ws % 3) * WSLOT
    return [f"ds_read_b128 {v(X0,4)}, {v(vXB+2*q)} offset:{xo}",
            f"ds_read_b64_tr_b16 {v(G,2)}, {wa} offset:{wo}",
            f"ds_read_b64_tr_b16 {v(G+2,2)}, {wa} offset:{wo+1024}",
            f"ds_read_b64_tr_b16 {v(U,2)}, {wa} offset:{wo+8192}",
            f"ds_read_b64_tr_b16 {v(U+2,2)}, {wa} offset:{wo+9216}",
            f"ds_read_b128 {v(X1,4)}, {v(vXB+2*q+1)} offset:{xo}"]
def stats(X):
    o = []
    for r in range(4):
        t = vUT + 2*(r & 1)
        o += [f"v_lshlrev_b32 {v(t)}, 16, {v(X+r)}", f"v_and_b32 {v(t+1)}, {s(sMASK)}, {v(X+r)}",
              f"v_add_f32 {v(vSUM)}, {v(vSUM)}, {v(t)}", f"v_add_f32 {v(vSUM+1)}, {v(vSUM+1)}, {v(t+1)}",
              f"v_fmac_f32 {v(vSQ)}, {v(t)}, {v(t)}", f"v_fmac_f32 {v(vSQ+1)}, {v(t+1)}, {v(t+1)}"]
    return o
def mf(F, dft, k):
    X0, X1, G, U = F
    rb, p = k >> 1, k & 1
    X = v(X1 if rb else X0, 4); W = v(U if p else G, 4); A = v(acc(rb, p), 16)
    return f"v_mfma_f32_32x32x16_bf16 {A}, {X}, {W}, {A}" if dft else f"v_mfma_f32_32x32x16_bf16 {A}, {W}, {X}, {A}"
S0e = (XE, X1a, Ga, Ua); S0o = (XO, X1a, Ga, Ua); S1 = (X0b, X1b, Gb, Ub)
selG = f"v_mfma_f32_16x16x32_bf16 {v(vCSD,4)}, {v(vSELG,4)}, {v(Gb,4)}, {v(vCSD,4)}"
selU = f"v_mfma_f32_16x16x32_bf16 {v(vCSD,4)}, {v(vSELU,4)}, {v(Ub,4)}, {v(vCSD,4)}"
vX = 80

if opt("touch", 2) == -1:
    E(f"s_cbranch_vccz L_nt0")
    E(f"global_load_dword {v(vTA+4)}, {v(vTA,2)}, off")
    E(f"L_nt0:")
E(f"s_waitcnt vmcnt({ST.wait(['W0', 'X0'])})")
E("s_barrier")
stamp(2)
EL(reads(S0e, 0, 0))
E(f"s_cmp_eq_u32 {s(sDFT)}, 1")
E("s_cbranch_scc1 L_loop_dft")
LOOP_START = len(L)
ST0 = ST
for dft in (0, 1):
    E("L_loop_dft:" if dft else "L_loop_ffn:")
    ST = ST0.copy()
    for it in range(16):
        odd = it & 1
        last = it == 15
        cur = S0o if odd else S0e
        nxt = S0e if odd else S0o
        st = stats(cur[0]) if not flag("nostat") else [""]*24
        sa = [st[0:6], st[6:12], st[12:18], st[18:24]] if last else [st[0:3], st[3:6], st[6:9], st[9:12]]
        rd = reads(S1, it, 1)
        E("s_waitcnt lgkmcnt(3)")
        E(mf(cur, dft, 0)); EL(rd[0:3]); EL(sa[0])
        E("s_waitcnt lgkmcnt(4)")
        E(mf(cur, dft, 1)); EL(rd[3:6]); EL(sa[1])
        E("s_waitcnt lgkmcnt(6)")
        E(mf(cur, dft, 2)); EL(sa[2]); EL(dma_slot(ST))
        E(mf(cur, dft, 3)); EL(sa[3]); EL(dma_slot(ST))
        if not last:
            E("s_waitcnt lgkmcnt(3)")
            E(mf(S1, dft, 0))
            rd = reads(nxt, it + 1, 0)
            need = [f"W{it+1}"] + ([f"X{(it+1)//2}"] if odd else [])
            E(f"s_waitcnt vmcnt({ST.wait(need)}) lgkmcnt(0)")
            E("s_barrier")
            if it & 1: stamp(2 + it // 2, True)
            ST.bar = it
            EL(rd[0:3])
            E(mf(S1, dft, 1)); EL(rd[3:6]); EL(st[12:15])
            if it == 9:
                E(f"global_load_dwordx2 {v(vNON,2)}, {v(vZERO)}, s[24:25] sc1"); ST.issued.append("N")
            if it == opt("touch", 2):
                lab = newlab("nt")
                E(f"s_cbranch_vccz {lab}")
                E(f"global_load_dword {v(vTA+4)}, {v(vTA,2)}, off")
                E(f"{lab}:")
            if it == opt("touch3", 8):
                lab = newlab("nt")
                E(f"s_cmp_lg_u32 {s(sW)}, 6")
                E(f"s_cbranch_scc1 {lab}")
                E(f"global_load_dword {v(vTA+4)}, {v(vTA+2)}, s[28:29]")
                E(f"{lab}:")
            E(mf(S1, dft, 2)); EL(st[15:19]); EL(dma_slot(ST))
            E(mf(S1, dft, 3)); EL(st[19:23]); EL(dma_slot(ST))
            if not dft and not flag("nosel"): E(selG)
            E(st[23])
            if not dft and not flag("nosel"): E(selU)
        else:
            E(f"v_add_f32 {v(vSUM)}, {v(vSUM)}, {v(vSUM+1)}")
            E(f"v_add_f32 {v(vSQ)}, {v(vSQ)}, {v(vSQ+1)}")
            E("s_waitcnt lgkmcnt(1)")
            if not dft: E(selG); E(selU)
            E(f"ds_write2_b32 {v(vSTW)}, {v(vSUM)}, {v(vSQ)} offset0:0 offset1:4")
            E(mf(S1, dft, 0))
            if not dft:
                E("s_nop 5")
                E(f"ds_write_b32 {v(vCSW)}, {v(vCSD)}")
            E(mf(S1, dft, 1))
            E("s_waitcnt lgkmcnt(0)")
            E("s_barrier")
            stamp(2 + it // 2, True)
            ST.bar = it
            E(f"ds_read_b128 {v(vX,4)}, {v(vSTR)}")
            E(f"ds_read_b128 {v(vX+4,4)}, {v(vSTR)} offset:16")
            if not dft: E(f"ds_read_b32 {v(vX+8)}, {v(vCSR_)}")
            E(mf(S1, dft, 2)); EL(dma_slot(ST)); EL(dma_slot(ST))
            E(mf(S1, dft, 3)); EL(dma_slot(ST)); EL(dma_slot(ST))
    assert not ST.todo
    if not dft: E("s_branch L_epi")
def _keep(x):
    if flag("nodma") and "buffer_load" in x: return False
    if flag("nolds") and "ds_read" in x: return False
    if flag("nomfma") and "v_mfma" in x: return False
    return True
L[LOOP_START:] = [x for x in L[LOOP_START:] if _keep(x)]

E("L_epi:")
stamp(3)
vM, vSD, vCS, vRS, vTt = 120, 121, 122, 123, 124
E("s_waitcnt lgkmcnt(0)")
E(f"v_add_f32 {v(vX)}, {v(vX)}, {v(vX+1)}\nv_add_f32 {v(vX+2)}, {v(vX+2)}, {v(vX+3)}")
E(f"v_add_f32 {v(vX+4)}, {v(vX+4)}, {v(vX+5)}\nv_add_f32 {v(vX+6)}, {v(vX+6)}, {v(vX+7)}")
E(f"v_add_f32 {v(vCS)}, {v(vCSD)}, {v(vX+8)}")
E(f"v_add_f32 {v(vM)}, {v(vX)}, {v(vX+2)}")
E(f"v_add_f32 {v(vSD)}, {v(vX+4)}, {v(vX+6)}")
E(f"ds_write_b32 {v(vPW)}, {v(vCS)}")
E(f"v_mul_f32 {v(vM)}, {f32(1/512)}, {v(vM)}")
E(f"v_mul_f32 {v(vSD)}, {f32(1/512)}, {v(vSD)}")
E(f"v_fma_f32 {v(vSD)}, -{v(vM)}, {v(vM)}, {v(vSD)}")
E(f"v_max_f32 {v(vSD)}, 0, {v(vSD)}")
E(f"v_cvt_pk_bf16_f32 {v(vTt)}, {v(vM)}, {v(vSD)}")
E(f"v_lshlrev_b32 {v(vM)}, 16, {v(vTt)}")
E(f"v_and_b32 {v(vSD)}, {s(sMASK)}, {v(vTt)}")
E(f"v_add_f32 {v(vSD)}, {f32(1e-5)}, {v(vSD)}")
E(f"v_cvt_pk_bf16_f32 {v(vTt)}, {v(vSD)}, {v(vSD)}")
E(f"v_and_b32 {v(vSD)}, {s(sMASK)}, {v(vTt)}")
E(f"v_sqrt_f32 {v(vSD)}, {v(vSD)}")
E(f"v_lshlrev_b32 v6, 4, {v(vL)}")
E(f"v_cvt_pk_bf16_f32 {v(vTt)}, {v(vSD)}, {v(vSD)}")
E(f"v_and_b32 {v(vSD)}, {s(sMASK)}, {v(vTt)}")
E(f"v_rcp_f32 {v(vRS)}, {v(vSD)}")
E(f"s_nop 0")
E(f"ds_write_b32 {v(vPW)}, {v(vRS)} offset:256")

def wreg(j, cb):
    return (184 + 8*j if j < 9 else 128 + 8*(j-9)) + 4*cb
def trreads(j):
    for cb in range(2):
        for hh in range(2):
            q = 2*PP[j % 9] + hh
            E(f"ds_read_b64_tr_b16 {v(wreg(j,cb)+2*hh,2)}, {v(vA2 + 2*(q//8) + cb)} offset:{(q%8)*Q}")
def wreg7(j, tb): return (192 if j < 8 else 128) + 8*(j & 7) + 4*tb
def rd7(grp):
    lut = sum(PP[(4*grp + g) % 9] << (4*g) for g in range(4))
    E(f"v_mov_b32 v2, {lut}")
    E(f"v_bfe_u32 v2, v2, {v(vA2+1)}, 4")
    E(f"v_lshl_add_u32 v2, v2, 14, {v(vA2)}")
    E(f"v_xor_b32 v3, 32, v2\nv_xor_b32 v4, 64, v2\nv_xor_b32 v5, 96, v2")
    kh, tb = grp >> 1, grp & 1
    for jj in range(8):
        j = 8*kh + jj
        E(f"ds_read_b64 {v(wreg7(j,tb),2)}, v{2 + (jj >> 1)} offset:{(jj&1)*16}")
        E(f"ds_read_b64 {v(wreg7(j,tb)+2,2)}, v{2 + (jj >> 1)} offset:{(jj&1)*16+Q}")
def sign7(grp):
    kh, tb = grp >> 1, grp & 1
    for jj in range(8):
        for u in (2, 3):
            r = wreg7(8*kh + jj, tb) + u
            E(f"v_xor_b32 {v(r)}, {s(sP)}, {v(r)}")
def r2dma(k0, k1):
    for k in range(k0, k1):
        ST.todo = [(f"T{k}", 0), (f"T{k}", 1)]
        for b in range(2):
            m0, ld, post = ST.next()
            EL([m0, "s_nop 0", ld] + post)
NE = opt("ne", 7)
E(f"s_cmp_eq_u32 {s(sW)}, 7")
E("s_cbranch_scc1 L_e7")
E(f"s_waitcnt vmcnt({ST.wait([f'T{k}' for k in range(NE)])})")
for j in range(NE): trreads(j)
E("s_waitcnt lgkmcnt(0)")
r2dma(9, 9 + NE)
E("s_branch L_e8")
E("L_e7:")
E(f"s_waitcnt vmcnt(10)")
rd7(0)
E("s_waitcnt lgkmcnt(0)")
r2dma(9, 13)
E("L_e8:")
E(f"s_cmp_eq_u32 {s(sDFT)}, 1")
E("s_cbranch_scc1 L_epi_dft")

C0 = -2.0 * math.log2(math.e) * math.sqrt(2.0/math.pi)
C1 = C0 * 0.044715
P0 = 80
CSR = 88
for p in range(2):
    for q in range(4):
        E(f"ds_read_b128 {v(CSR+16*p+4*q,4)}, {v(vPR)} offset:{128*p+32*q}")
E(f"v_mov_b32 {v(P0)}, {v(vM)}")
E(f"v_mul_f32 {v(P0+1)}, {v(vSD)}, {v(vSD)}")
E(f"v_mul_f32 {v(P0+2)}, {f32(C0)}, {v(vRS)}")
E(f"v_mul_f32 {v(vTt)}, {v(vRS)}, {v(vRS)}")
E(f"v_mul_f32 {v(vTt)}, {v(vTt)}, {v(vRS)}")
E(f"v_mul_f32 {v(P0+3)}, {f32(C1)}, {v(vTt)}")
for k in range(4):
    E(f"v_mov_b32 {v(P0+4+k)}, {v(P0+k)}")
E(f"s_lshl_b32 {s(sT0)}, {s(sI)}, 2")
E(f"s_lshl_b32 {s(sT1)}, {s(sRH)}, 1")
for k in range(4):
    E(f"v_permlane32_swap_b32 {v(P0+k)}, {v(P0+4+k)}")
E(f"s_add_u32 {s(sT0)}, {s(sT0)}, {s(sT1)}")
E(f"s_and_b32 {s(sT1)}, {s(sCQ)}, 1")
E(f"s_add_u32 {s(sT2)}, {s(sT0)}, {s(sT1)}")
E(f"s_xor_b32 {s(sT3)}, {s(sT2)}, 1")
E(f"s_mul_i32 {s(sT2)}, {s(sT2)}, {A_RB}")
E(f"s_mul_i32 {s(sT3)}, {s(sT3)}, {A_RB}")
E(f"s_lshl_b32 {s(sT0)}, {s(sC)}, 13")
E(f"s_lshl_b32 {s(sT1)}, {s(sCQ)}, 11")
E(f"s_add_u32 {s(sT0)}, {s(sT0)}, {s(sT1)}")
E(f"s_add_u32 {s(sT2)}, {s(sT2)}, {s(sT0)}")
E(f"s_add_u32 {s(sT3)}, {s(sT3)}, {s(sT0)}")
E(f"s_lshr_b32 {s(sT0)}, {s(sC)}, 1")
hdelta(sT0, sT0)
skip3(6, 2, s(sT0))
E("s_waitcnt lgkmcnt(0)")
TMP = 136
for rb in range(2):
    PM = v(P0+4*rb, 2); PK = v(P0+4*rb+2, 2)
    for half in range(2):
        O = TMP + 8 + 4*((rb*2+half) & 1)
        prs = range(4*half, 4*half+4)
        G = lambda i: v(acc(rb,0)+2*i, 2)
        U = lambda i: v(acc(rb,1)+2*i, 2)
        T = lambda i: v(TMP + 2*(i&3), 2)
        for i in prs:
            E(f"v_pk_fma_f32 {G(i)}, {v(CSR+2*i,2)}, {PM}, {G(i)} op_sel_hi:[1,0,1] neg_lo:[0,1,0] neg_hi:[0,1,0]")
        for i in prs:
            E(f"v_pk_mul_f32 {T(i)}, {G(i)}, {G(i)}")
        for i in prs:
            E(f"v_pk_fma_f32 {T(i)}, {T(i)}, {PK}, {PK} op_sel:[0,1,0] op_sel_hi:[1,1,0]")
        for i in prs:
            E(f"v_pk_mul_f32 {T(i)}, {T(i)}, {G(i)}")
        for i in prs:
            E(f"v_exp_f32 {v(TMP+2*(i&3))}, {v(TMP+2*(i&3))}")
            E(f"v_exp_f32 {v(TMP+2*(i&3)+1)}, {v(TMP+2*(i&3)+1)}")
        for i in prs:
            E(f"v_pk_fma_f32 {U(i)}, {v(CSR+16+2*i,2)}, {PM}, {U(i)} op_sel_hi:[1,0,1] neg_lo:[0,1,0] neg_hi:[0,1,0]")
        for i in prs:
            E(f"v_pk_fma_f32 {T(i)}, {T(i)}, {PM}, {PM} op_sel:[0,1,1] op_sel_hi:[1,1,1]")
        for i in prs:
            E(f"v_rcp_f32 {v(TMP+2*(i&3))}, {v(TMP+2*(i&3))}")
            E(f"v_rcp_f32 {v(TMP+2*(i&3)+1)}, {v(TMP+2*(i&3)+1)}")
        for i in prs:
            E(f"v_pk_mul_f32 {G(i)}, {G(i)}, {U(i)}")
        for i in prs:
            E(f"v_pk_mul_f32 {G(i)}, {G(i)}, {T(i)}")
        for i in prs:
            E(f"v_cvt_pk_bf16_f32 {v(O+(i&3))}, {v(acc(rb,0)+2*i)}, {v(acc(rb,0)+2*i+1)}")
        E(f"buffer_store_dwordx4 {v(O,4)}, v6, {s(sWS,4)}, {s(sT2+rb)} offen offset:{1024*half} sc1")
stamp(1)
E("s_waitcnt vmcnt(4)")
E("s_branch L_p2")

E("L_epi_dft:")
RR = 136; FR = 80
E(f"v_mov_b32 v5, {v(vPR)}")
for q in range(4):
    for rb in range(2):
        E(f"ds_read_b128 {v(RR+16*rb+4*q,4)}, v5 offset:{256+128*rb+32*q}")
E(f"s_mov_b32 {s(sK)}, {f32(math.cos(math.pi/8))}")
E(f"s_mov_b32 {s(sK+1)}, {f32(math.sin(math.pi/8))}")
E(f"s_mov_b32 {s(sK+2)}, {f32(math.sqrt(0.5))}")
E(f"s_mov_b32 {s(sK+3)}, {f32(math.sqrt(0.5))}")
E(f"v_and_b32 v2, 31, {v(vL)}")
E(f"v_lshrrev_b32 v3, 5, {v(vL)}")
E(f"v_lshlrev_b32 v4, 20, v3")
E(f"v_lshl_add_u32 v4, v2, 4, v4")
E(f"s_sub_u32 {s(sT0)}, {s(sC)}, 14")
E(f"s_lshl_b32 {s(sT0)}, {s(sT0)}, 11")
E(f"s_lshl_b32 {s(sT1)}, {s(sCQ)}, 9")
E(f"s_add_u32 {s(sT0)}, {s(sT0)}, {s(sT1)}")
E(f"v_add_u32 v4, {s(sT0)}, v4")
zskip(4, 2, 3)
E(f"s_lshl_b32 {s(sT0)}, {s(sI)}, 13")
E(f"s_lshl_b32 {s(sT1)}, {s(sRH)}, 12")
E(f"s_add_u32 {s(sT0)}, {s(sT0)}, {s(sT1)}")
E(f"s_add_u32 {s(sT0)}, {s(sT0)}, {Z_OFF}")
E(f"s_and_b32 {s(sT1)}, {s(sCQ)}, 1")
E(f"s_mul_i32 {s(sT1)}, {s(sT1)}, 0x80008000")
val = {}
for rb in range(2):
    for i in range(8):
        val[i + 8*rb] = [acc(rb,0)+2*i, acc(rb,1)+2*i]
free = [FR + 2*k for k in range(16)]
def padd(d, a, b, neg=False):
    E(f"v_pk_add_f32 {v(d,2)}, {v(a,2)}, {v(b,2)}" + (" neg_lo:[0,1] neg_hi:[0,1]" if neg else ""))
def tw(k):
    return {1:(sK,0,0,1), 3:(sK,1,0,0), 5:(sK,1,1,0), 7:(sK,0,1,1), 2:(sK+2,0,0,0), 6:(sK+2,0,1,0)}[k]
def twiddle(grp, tmp):
    global free
    for (a, b, k) in grp:
        if k in (0, 4):
            free += val[b]; val[b] = tmp[a]
        else:
            sp, sc, nc, ss = tw(k); x, y = tmp[a]; br, bi = val[b]
            ng = f" neg_lo:[0,1] neg_hi:[0,1]" if nc else ""
            E(f"v_pk_mul_f32 {v(br,2)}, {v(x,2)}, {s(sp,2)} op_sel:[0,{sc}] op_sel_hi:[1,{sc}]{ng}")
            E(f"v_pk_mul_f32 {v(bi,2)}, {v(y,2)}, {s(sp,2)} op_sel:[0,{sc}] op_sel_hi:[1,{sc}]{ng}")
    for (a, b, k) in grp:
        if k not in (0, 4):
            sp, sc, nc, ss = tw(k); x, y = tmp[a]; br, bi = val[b]
            E(f"v_pk_fma_f32 {v(br,2)}, {v(y,2)}, {s(sp,2)}, {v(br,2)} op_sel:[0,{ss},0] op_sel_hi:[1,{ss},1]")
            E(f"v_pk_fma_f32 {v(bi,2)}, {v(x,2)}, {s(sp,2)}, {v(bi,2)} op_sel:[0,{ss},0] op_sel_hi:[1,{ss},1] neg_lo:[1,0,0] neg_hi:[1,0,0]")
            free += tmp[a]
def butterflies(grp):
    tmp = {}
    for (a, b, k) in grp:
        t = [free.pop(), free.pop()]
        tmp[a] = t
        ar, ai = val[a]; br, bi = val[b]
        if k == 4:
            padd(t[0], ai, bi, True); padd(t[1], br, ar, True)
        else:
            padd(t[0], ar, br, True); padd(t[1], ai, bi, True)
    for (a, b, k) in grp:
        ar, ai = val[a]; br, bi = val[b]
        padd(ar, ar, br); padd(ai, ai, bi)
    twiddle(grp, tmp)
for c0 in (0, 4):
    grp = [(k, k + 8, k) for k in range(c0, c0 + 4)]
    E(f"s_waitcnt lgkmcnt({4 - c0})")
    tmp = {}
    for (a, b, k) in grp:
        for p in range(2):
            E(f"v_pk_mul_f32 {v(val[a][p],2)}, {v(val[a][p],2)}, {v(RR+2*k,2)}")
    for (a, b, k) in grp:
        t = [free.pop(), free.pop()]; tmp[a] = t
        ar, ai = val[a]; br, bi = val[b]; R = v(RR+16+2*k, 2)
        if k == 4:
            E(f"v_pk_fma_f32 {v(t[0],2)}, {v(bi,2)}, {R}, {v(ai,2)} neg_lo:[1,0,0] neg_hi:[1,0,0]")
            E(f"v_pk_fma_f32 {v(t[1],2)}, {v(br,2)}, {R}, {v(ar,2)} neg_lo:[0,0,1] neg_hi:[0,0,1]")
        else:
            E(f"v_pk_fma_f32 {v(t[0],2)}, {v(br,2)}, {R}, {v(ar,2)} neg_lo:[1,0,0] neg_hi:[1,0,0]")
            E(f"v_pk_fma_f32 {v(t[1],2)}, {v(bi,2)}, {R}, {v(ai,2)} neg_lo:[1,0,0] neg_hi:[1,0,0]")
    for (a, b, k) in grp:
        ar, ai = val[a]; br, bi = val[b]; R = v(RR+16+2*k, 2)
        E(f"v_pk_fma_f32 {v(ar,2)}, {v(br,2)}, {R}, {v(ar,2)}")
        E(f"v_pk_fma_f32 {v(ai,2)}, {v(bi,2)}, {R}, {v(ai,2)}")
    twiddle(grp, tmp)
OB = RR
def brev(x): return int(f"{x:04b}"[::-1], 2)
for hb in (0, 8):
    butterflies([(hb + k, hb + k + 4, 2*k) for k in range(4)])
    butterflies([(hb + 4*g + k, hb + 4*g + k + 2, 4*k) for g in range(2) for k in range(2)])
    for qb in (0, 4):
        butterflies([(hb + qb + 2*g, hb + qb + 2*g + 1, 0) for g in range(2)])
        outs = []
        for g in range(2):
            p = hb + qb + 2*g; r = brev(p)
            o = OB + 4*(p >> 1)
            outs.append((r, o))
            for u in range(2):
                re, im = val[p + u]
                E(f"v_cvt_pk_bf16_f32 {v(o+u)}, {v(re)}, {v(re+1)}")
                E(f"v_cvt_pk_bf16_f32 {v(o+2+u)}, {v(im)}, {v(im+1)}")
        if hb:
            for r, o in outs:
                for u in range(4): E(f"v_xor_b32 {v(o+u)}, {s(sT1)}, {v(o+u)}")
        for r, o in outs:
            E(f"s_add_u32 {s(sT2 + (o >> 2 & 1))}, {s(sT0)}, {r*16*8192}")
        for r, o in outs:
            E(f"v_permlane32_swap_b32 {v(o)}, {v(o+1)}")
            E(f"v_permlane32_swap_b32 {v(o+2)}, {v(o+3)}")
        for r, o in outs:
            E(f"buffer_store_dwordx4 {v(o,4)}, v4, {s(sWS,4)}, {s(sT2 + (o >> 2 & 1))} offen sc1")
stamp(1)
E("s_waitcnt vmcnt(8)")

E("L_p2:")
stamp(4)
HB = 80
ND = 6
E(f"s_mul_i32 {s(sT2)}, {s(sI)}, 14")
E(f"s_add_u32 {s(sT2)}, {s(sT2)}, {s(sC)}")
E(f"s_add_u32 {s(sT2)}, {s(sT2)}, 32")
E(f"s_lshl_b32 {s(sT0)}, {s(sC)}, 4")
E(f"s_add_u32 {s(sT0)}, {s(sT0)}, {s(sI)}")
E(f"s_sub_u32 {s(sT0)}, {s(sT0)}, {14*16}")
E(f"s_cmp_eq_u32 {s(sDFT)}, 1")
E(f"s_cselect_b32 {s(sT2)}, {s(sT0)}, {s(sT2)}")
E(f"s_lshl_b32 {s(sT2)}, {s(sT2)}, 7")
E(f"s_add_u32 {s(sT2)}, {s(sT2)}, {FL_OFF}")
srd(sX1, 26, 2048*1024)
E(f"s_and_b32 {s(sT3)}, {s(sRT)}, 1")
E(f"s_lshl_b32 {s(sT3)}, {s(sT3)}, 10")
E(f"s_add_u32 {s(sT3)}, {s(sT3)}, {s(sR)}")
E(f"s_lshl_b32 {s(sT3)}, {s(sT3)}, 10")
E(f"s_lshl_b32 {s(sT1)}, {s(sCT)}, 7")
E(f"s_add_u32 {s(sT3)}, {s(sT3)}, {s(sT1)}")

def nonce_and_flag(nyoung, tag):
    E(f"v_readfirstlane_b32 {s(sT0)}, {v(vNON)}")
    E(f"s_mov_b32 {s(sSP)}, 0")
    E(f"v_mov_b32 {v(HB)}, 0")
    E(f"s_cmp_lg_u32 {s(sT0)}, 0")
    E(f"s_cbranch_scc1 L_havenon{tag}")
    E(f"L_spinnon{tag}:")
    E(f"global_load_dwordx2 {v(vNON,2)}, {v(HB)}, s[24:25] sc1")
    E(f"s_add_u32 {s(sSP)}, {s(sSP)}, 1")
    E("s_waitcnt vmcnt(0)")
    E(f"v_readfirstlane_b32 {s(sT0)}, {v(vNON)}")
    E(f"s_cmp_ge_u32 {s(sSP)}, {SPIN}")
    E(f"s_cbranch_scc1 L_havenon{tag}")
    E(f"s_cmp_eq_u32 {s(sT0)}, 0")
    E(f"s_cbranch_scc1 L_spinnon{tag}")
    E(f"L_havenon{tag}:")
    if flag("dbg") or opt("pad", 0): E(f"s_mov_b32 s79, {s(sT0)}")
    E(f"s_waitcnt vmcnt({nyoung})")
    E("s_barrier")
    if tag == "f":
        E(f"s_cmp_lg_u32 {s(sW)}, 0")
        E(f"s_cbranch_scc1 L_noflag")
        E("s_mov_b64 exec, 1")
        E(f"buffer_store_dwordx2 {v(vNON,2)}, {v(HB)}, {s(sWS,4)}, {s(sT2)} offen sc1")
        E("s_mov_b64 exec, -1")
        E("L_noflag:")
def poll(tag, vFO):
    E(f"s_mov_b32 {s(sSP)}, 0")
    E(f"L_poll{tag}:")
    E(f"buffer_load_dwordx2 {v(HB+2,2)}, {v(vFO)}, {s(sWS,4)}, 0 offen sc1")
    E(f"s_add_u32 {s(sSP)}, {s(sSP)}, 1")
    E("s_waitcnt vmcnt(0)")
    E(f"v_cmp_ne_u64 vcc, {v(HB+2,2)}, {v(vNON,2)}")
    E(f"s_cmp_ge_u32 {s(sSP)}, {SPIN}")
    E(f"s_cbranch_scc1 L_polled{tag}")
    E(f"s_cbranch_vccz L_polled{tag}")
    E(f"s_sleep {opt('sleep', 2)}")
    E(f"s_branch L_poll{tag}")
    E(f"L_polled{tag}:")
def acc2(tb, cb): return vACC + (tb*2+cb)*16
vOUT = 7
def out_addr():
    E(f"v_lshrrev_b32 v2, 3, v0")
    E(f"v_and_b32 v3, 7, v0")
    E(f"v_lshlrev_b32 {v(vOUT)}, 14, v2")
    E(f"v_lshl_add_u32 {v(vOUT)}, v3, 4, {v(vOUT)}")
def stream2(ld, mfma, wfree, waits):
    bufs = {j: HB + 8*j for j in range(ND)}
    issued = ND; xl = 0
    for j in range(16):
        E(f"s_waitcnt vmcnt({2*(issued - j - 1) + xl})")
        EL(waits.get(j, []))
        for tb in range(2):
            for cb in range(2):
                E(mfma(j, tb, cb, bufs[j]))
        for fr in (bufs[j], wfree(j)):
            if issued < 16:
                bufs[issued] = fr
                ld(issued, fr); issued += 1
        if issued == 16 and not xl:
            E(f"buffer_load_dwordx4 v[12:15], {v(vOUT)}, {s(sX0,4)}, {s(sT3)} offen")
            xl = 1

E(f"s_cmp_eq_u32 {s(sW)}, 7")
E("s_cbranch_scc1 L_p2_dft")
for j in range(NE, 9): trreads(j)
if NE < 7:
    E("s_waitcnt lgkmcnt(0)")
    r2dma(9 + NE, 16)
for j in range(9, 9 + NE): trreads(j)
E(f"s_mul_i32 {s(sT0)}, {s(sR)}, {14*128}")
E(f"s_lshl_b32 {s(sT1)}, {s(sW)}, 8")
E(f"s_add_u32 {s(sT0)}, {s(sT0)}, {s(sT1)}")
E(f"s_add_u32 {s(sT0)}, {s(sT0)}, {FL_OFF + 32*128}")
E(f"v_and_b32 v4, 1, {v(vL)}")
E(f"v_lshlrev_b32 v4, 7, v4")
E(f"v_add_u32 v4, {s(sT0)}, v4")
E(f"v_lshlrev_b32 v6, 4, {v(vL)}")
hdelta(sT0, sW)
skip3(6, 2, s(sT0))
E(f"v_add_u32 v5, {A_RB}, v6")
out_addr()
nonce_and_flag(2*(7 - NE), "f")
stamp(5)
E(f"s_mul_i32 {s(sT0)}, {s(sRT)}, {2*A_RB}")
E(f"s_lshl_b32 {s(sT1)}, {s(sW)}, 14")
E(f"s_add_u32 {s(sT0)}, {s(sT0)}, {s(sT1)}")
poll("f", 4)
stamp(6)
def ldh(j, B):
    E(f"buffer_load_dwordx4 {v(B,4)}, v6, {s(sWS,4)}, {s(sT0)} offen offset:{(j&3)*1024} sc1")
    E(f"buffer_load_dwordx4 {v(B+4,4)}, v5, {s(sWS,4)}, {s(sT0)} offen offset:{(j&3)*1024} sc1")
    if (j & 3) == 3: E(f"s_add_u32 {s(sT0)}, {s(sT0)}, 4096")
for j in range(ND): ldh(j, HB + 8*j)
for j in range(9 + NE, 16): trreads(j)
def mf_f(j, tb, cb, B):
    A = v(acc2(tb, cb), 16)
    return f"v_mfma_f32_32x32x16_bf16 {A}, {v(wreg(j,cb),4)}, {v(B+4*tb,4)}, {A if j else 0}"
stream2(ldh, mf_f, lambda j: wreg(j, 0), {0: ["s_waitcnt lgkmcnt(0)"]})
E("s_branch L_red")

E("L_p2_dft:")
rd7(1)
E(f"s_cmp_ge_u32 {s(sCT)}, 4")
E(f"s_cselect_b32 {s(sP)}, 0x80008000, 0")
sign7(0)
E("s_waitcnt lgkmcnt(0)")
r2dma(13, 16)
rd7(2)
sign7(1)
nonce_and_flag(6, "d")
stamp(5)
out_addr()
E(f"v_and_b32 v11, 31, {v(vL)}")
E(f"v_lshlrev_b32 v11, 7, v11")
E(f"v_add_u32 v11, {FL_OFF}, v11")
E(f"v_and_b32 v2, 31, {v(vL)}")
E(f"v_lshrrev_b32 v3, 5, {v(vL)}")
E(f"s_lshl_b32 {s(sT0)}, {s(sCT)}, 6")
E(f"s_cmp_ge_u32 {s(sCT)}, 4")
E("s_cbranch_scc1 L_direct")
E(f"s_sub_u32 {s(sT0)}, 256, {s(sT0)}")
E(f"v_sub_u32 v2, {s(sT0)}, v2")
E(f"v_lshlrev_b32 v6, 4, v2")
E(f"v_lshl_add_u32 v6, v3, 12, v6")
E(f"v_subrev_u32 v10, 512, v6")
E(f"s_sub_u32 {s(sT1)}, 16, {s(sR)}")
E(f"s_and_b32 {s(sT1)}, {s(sT1)}, 15")
E("s_branch L_dft2")
E("L_direct:")
E(f"s_sub_u32 {s(sT0)}, {s(sT0)}, 256")
E(f"v_add_u32 v2, {s(sT0)}, v2")
E(f"v_lshlrev_b32 v6, 4, v2")
E(f"v_lshl_add_u32 v6, v3, 12, v6")
E(f"v_add_u32 v10, 512, v6")
E(f"s_mov_b32 {s(sT1)}, {s(sR)}")
E("L_dft2:")
zskip(6, 2, 3)
zskip(10, 2, 3)
E(f"s_lshl_b32 {s(sT0)}, {s(sT1)}, 17")
E(f"s_add_u32 {s(sT0)}, {s(sT0)}, {Z_OFF}")
E("s_waitcnt vmcnt(0) lgkmcnt(0)")
rd7(3)
sign7(2)
E("s_waitcnt lgkmcnt(0)")
sign7(3)
poll("d", 11)
stamp(6)
def ldz(j, B):
    E(f"buffer_load_dwordx4 {v(B,4)}, v6, {s(sWS,4)}, {s(sT0)} offen sc1")
    E(f"buffer_load_dwordx4 {v(B+4,4)}, v10, {s(sWS,4)}, {s(sT0)} offen sc1")
    E(f"s_add_u32 {s(sT0)}, {s(sT0)}, 8192")
for j in range(ND): ldz(j, HB + 8*j)
def mf_d(j, tb, cb, B):
    A = v(acc2(tb, cb), 16)
    return f"v_mfma_f32_32x32x16_bf16 {A}, {v(B+4*cb,4)}, {v(wreg7(j,tb),4)}, {A if j else 0}"
stream2(ldz, mf_d, lambda j: wreg7(j, 0), {})

E("L_red:")
stamp(7)
E(f"v_bfe_u32 v2, {v(vL)}, 2, 3")
E(f"v_lshlrev_b32 v2, 13, v2")
E(f"v_and_b32 v3, 3, {v(vL)}")
E(f"v_lshl_add_u32 v2, v3, 8, v2")
E(f"v_lshrrev_b32 v3, 5, {v(vL)}")
E(f"v_and_b32 v4, 7, {v(vL)}")
E(f"v_xor_b32 v3, v3, v4")
E(f"v_lshl_add_u32 v2, v3, 4, v2")
E(f"v_add_u32 {v(HB)}, {s(sWd)}, v2")
for q in range(1, 4): E(f"v_xor_b32 {v(HB+q)}, {32*q}, {v(HB)}")
for q in range(4): E(f"v_add_u32 {v(HB+4+q)}, {8*Q}, {v(HB+q)}")
for tb in range(2):
    for cb in range(2):
        for q in range(4):
            E(f"ds_write_b128 {v(HB+4*tb+q)}, {v(acc2(tb,cb)+4*q,4)} offset:{cb*128}")
E(f"v_lshrrev_b32 v2, 3, v0")
E(f"v_and_b32 v3, 7, v0")
E(f"v_lshlrev_b32 v9, 1, v3")
E(f"v_and_b32 v10, 7, v2")
E(f"v_xor_b32 v9, v9, v10")
E(f"v_lshlrev_b32 v9, 4, v9")
E(f"v_and_b32 v10, 3, v2")
E(f"v_lshl_add_u32 v9, v10, 8, v9")
E(f"v_lshrrev_b32 v10, 2, v2")
E(f"v_lshl_add_u32 v9, v10, 13, v9")
E(f"v_xor_b32 v10, 16, v9")
E(f"v_or_b32 v3, {s(sCT)}, v3")
E(f"v_cmp_ne_u32 vcc, 0, v3")
E(f"s_mov_b32 {s(sK)}, {f32(-math.log2(math.e))}")
E("s_waitcnt lgkmcnt(0)")
E("s_barrier")
stamp(8)
RD = 128
for w in range(8):
    E(f"ds_read_b128 {v(RD+8*w,4)}, v9 offset:{w*1024}")
    E(f"ds_read_b128 {v(RD+8*w+4,4)}, v10 offset:{w*1024}")
def sum8(d, a):
    for k in range(4):
        E(f"v_pk_add_f32 {v(RD+8*d+2*k,2)}, {v(RD+8*d+2*k,2)}, {v(RD+8*a+2*k,2)}")
E("s_waitcnt lgkmcnt(12)"); sum8(0, 1)
E("s_waitcnt lgkmcnt(8)"); sum8(2, 3)
E("s_waitcnt lgkmcnt(4)"); sum8(4, 5); sum8(0, 2)
E("s_waitcnt lgkmcnt(2)"); sum8(4, 6); sum8(0, 4)
T = vACC
for k in range(4):
    E(f"v_pk_mul_f32 {v(T+2*k,2)}, {v(RD+2*k,2)}, {s(sK,2)} op_sel_hi:[1,0]")
for k in range(8):
    E(f"v_exp_f32 {v(T+k)}, {v(T+k)}")
E("s_nop 0")
for k in range(4):
    E(f"v_pk_add_f32 {v(T+2*k,2)}, {v(T+2*k,2)}, 1.0 op_sel_hi:[1,0]")
for k in range(8):
    E(f"v_rcp_f32 {v(T+k)}, {v(T+k)}")
E("s_waitcnt vmcnt(0) lgkmcnt(0)")
E(f"v_cndmask_b32 {v(RD+56)}, 0, {v(RD+56)}, vcc")
for k in range(4):
    E(f"v_lshlrev_b32 {v(T+8+2*k)}, 16, v{12+k}")
    E(f"v_and_b32 {v(T+9+2*k)}, {s(sMASK)}, v{12+k}")
for k in range(4):
    E(f"v_pk_mul_f32 {v(T+2*k,2)}, {v(T+2*k,2)}, {v(RD+2*k,2)}")
for k in range(4):
    E(f"v_pk_fma_f32 {v(T+2*k,2)}, {v(T+2*k,2)}, {v(RD+56+2*k,2)}, {v(T+8+2*k,2)}")
for k in range(4):
    E(f"v_cvt_pk_bf16_f32 v{12+k}, {v(T+2*k)}, {v(T+2*k+1)}")
E(f"buffer_store_dwordx4 v[12:15], {v(vOUT)}, {s(sX1,4)}, {s(sT3)} offen" + (" sc1" if flag("outsc1") else "") + (" nt" if flag("outnt") else ""))
if STAMP:
    E("s_waitcnt vmcnt(0)")
    stamp(9)
    E("s_waitcnt lgkmcnt(0)")
    E(f"s_lshl_b32 s78, s2, 3")
    E(f"s_add_u32 s78, s78, {s(sW)}")
    E(f"s_lshl_b32 s78, s78, 6")
    E(f"s_add_u32 s78, s78, {STAMP_OFF}")
    E(f"s_mov_b32 {s(sWS+2)}, 0x2000000")
    for k in range(12):
        E(f"v_mov_b32 {v(200+k)}, s{80+2*min(k,NST-1)}")
    E(f"v_mov_b32 v212, 0")
    E("s_mov_b64 exec, 1")
    if flag("dbg"):
        for k in range(10):
            E(f"v_subrev_u32 {v(216+k)}, s79, {v(200+k)}")
            E(f"v_add_u32 {v(216+k)}, 1000, {v(216+k)}")
            E(f"global_atomic_umax v212, {v(216+k)}, s[24:25] offset:{8+4*k}")
        E(f"v_sub_u32 v226, 100000, v216")
        E(f"global_atomic_umax v212, v226, s[24:25] offset:48")
    for k in range(3):
        E(f"buffer_store_dwordx4 {v(200+4*k,4)}, v212, {s(sWS,4)}, s78 offen offset:{16*k}")
if opt("pad", 0):
    E("L_padspin:")
    E("s_memrealtime s[80:81]")
    E("s_waitcnt lgkmcnt(0)")
    E("s_sub_u32 s80, s80, " + ("s82" if opt("padk", -1) >= 0 else "s79"))
    E(f"s_cmp_lt_u32 s80, {opt('pad', 0)}")
    E("s_cbranch_scc1 L_padspin")
E("L_end:")
E("s_endpgm")

E('.section .rodata,"a"')
E(".p2align 6")
E(f""".amdhsa_kernel {KNAME}
.amdhsa_next_free_vgpr 256
.amdhsa_next_free_sgpr 102
.amdhsa_accum_offset 256
.amdhsa_group_segment_fixed_size 0
.amdhsa_kernarg_size 96
.amdhsa_user_sgpr_count 2
.amdhsa_user_sgpr_kernarg_segment_ptr 1
.amdhsa_system_sgpr_workgroup_id_x 1
.end_amdhsa_kernel""")
open(OUT, "w").write("\n".join(L) + "\n")
```

```python
import sys, math, struct

ARGS = sys.argv[1:]
def flag(n): return ("--" + n) in ARGS
def opt(n, d):
    for a in ARGS:
        if a.startswith("--" + n + "="): return int(a.split("=")[1])
    return d
STAMP = flag("stamp")
OUT = [a for a in ARGS if not a.startswith("--")][0]
KNAME = "recurrent_scan__spectral_fnet__geglu_ffn__prompt_kernel"

A_RB = 112 * 1024
Z_OFF = 0x700000
FL_OFF = 0x901000
GR_OFF = 0x912000
WS_SIZE = 0x91A000
STAMP_OFF = 0x1800000
SPIN = 1 << 16

L = []
def E(s=""):
    for line in s.split("\n"):
        if not line.strip(): continue
        L.append(line if line.endswith(":") or line.startswith(".") or line.startswith(";") else "    " + line.strip())
def EL(l):
    for x in l: E(x)
def f32(x):
    return "0x%08x" % struct.unpack("<I", struct.pack("<f", x))[0]
def v(a, n=1):
    return f"v{a}" if n == 1 else f"v[{a}:{a+n-1}]"
def s(a, n=1):
    return f"s{a}" if n == 1 else f"s[{a}:{a+n-1}]"
NST = 10
def pstamp(k):
    if flag("prostamp"): E(f"s_memrealtime s[{80+2*k}:{81+2*k}]")
def stamp(k, loop=False):
    if flag("prostamp") and k not in (0, 9): return
    if flag("itstamp"):
        if k == 2 and not loop: k = 1
        elif k == 0: pass
        elif not loop: return
    elif loop: return
    if STAMP:
        E(f"s_mem{'' if flag('cyc') else 'real'}time s[{80+2*k}:{81+2*k}]")
_lab = [0]
def newlab(p):
    _lab[0] += 1
    return f"L_{p}{_lab[0]}"

HEADER = open("recurrent_scan__spectral_fnet__geglu_ffn__prompt.s.ref").read().split("; Override")[0]
E(HEADER.rstrip())
E("; @launch grid=(256,1,1) block=(512,1,1) lds=163840")
E('.amdgcn_target "amdgcn-amd-amdhsa--gfx950"')
E(".text")

Q = 8192
BLK = 16384
XRING = 6 * BLK
MISC = 9 * BLK
ST_OFF = MISC
CS_OFF = MISC + 4096
PRIV = MISC + 8192
CNT = MISC
PP = [4, 8, 5, 0, 6, 1, 2, 7, 3]

sX0, sX1, sG, sU, sWS = 4, 8, 12, 16, 20
sG2, sU2 = 40, 44
(sI, sC, sW, sWinc, sWlim, sWoff, sWoff2, sFL, sXoff, sWd, sOff2, sCB, sRS, sP, sRH, sCQ, sT0, sT1, sMASK, sDFT,
 sRT, sCT, sR, sT2, sT3, sSP) = range(48, 74)
sK = 74
sNA = 3
sH0, sH1 = 74, 75
sUN = [sWinc, sWlim, sCB, sRS]
vL = 1
vW2 = 7
vA2 = 8
vNON = 14
vACC = 16
vXo = 160
vWo = 164
vTA = 188
vZERO = 166
vFA = 172
vFAo = 170
vGR = 146
vGRl = 171

def finalize(vS, vQ, vM, vSD, vT):
    return [f"v_mul_f32 {v(vM)}, {f32(1/512)}, {v(vS)}",
            f"v_mul_f32 {v(vSD)}, {f32(1/512)}, {v(vQ)}",
            f"v_fma_f32 {v(vSD)}, -{v(vM)}, {v(vM)}, {v(vSD)}",
            f"v_max_f32 {v(vSD)}, 0, {v(vSD)}",
            f"v_cvt_pk_bf16_f32 {v(vT)}, {v(vM)}, {v(vSD)}",
            f"v_lshlrev_b32 {v(vM)}, 16, {v(vT)}",
            f"v_and_b32 {v(vSD)}, {s(sMASK)}, {v(vT)}",
            f"v_add_f32 {v(vSD)}, {f32(1e-5)}, {v(vSD)}",
            f"v_cvt_pk_bf16_f32 {v(vT)}, {v(vSD)}, {v(vSD)}",
            f"v_and_b32 {v(vSD)}, {s(sMASK)}, {v(vT)}",
            f"v_sqrt_f32 {v(vSD)}, {v(vSD)}",
            "s_nop 0",
            f"v_cvt_pk_bf16_f32 {v(vT)}, {v(vSD)}, {v(vSD)}",
            f"v_and_b32 {v(vSD)}, {s(sMASK)}, {v(vT)}"]
def srd(d, lo, size):
    E(f"s_mov_b32 {s(d)}, s{lo}\ns_mov_b32 {s(d+1)}, s{lo+1}\ns_mov_b32 {s(d+2)}, {size}\ns_mov_b32 {s(d+3)}, 0x20000")

E(f".globl {KNAME}\n.p2align 8\n.type {KNAME},@function\n{KNAME}:")
E("s_cmp_ge_u32 s2, 256")
E("s_cbranch_scc1 L_end")
stamp(0)
E("s_load_dwordx16 s[32:47], s[0:1], 0")
E("s_load_dwordx2 s[28:29], s[0:1], 64")
E("s_load_dwordx2 s[26:27], s[0:1], 72")
E("s_load_dwordx2 s[24:25], s[0:1], 80")
E("s_load_dwordx2 s[30:31], s[0:1], 88")
E("s_memrealtime s[78:79]")
E(f"v_lshrrev_b32 v2, 6, v0")
E(f"v_and_b32 {v(vL)}, 63, v0")
E(f"v_readfirstlane_b32 {s(sW)}, v2")
E("s_getpc_b64 s[4:5]")
E("L_pc:")
E(f"s_cmp_lg_u32 {s(sW)}, 7")
E("s_cbranch_scc1 L_nct")
E("s_lshr_b32 s6, s2, 3")
E("s_mul_i32 s6, s6, 9")
E("v_and_b32 v2, 15, v0")
E("v_min_u32 v2, 8, v2")
E("v_add_u32 v2, s6, v2")
E("v_lshlrev_b32 v2, 7, v2")
E("v_min_u32 v2, L_end-L_pc, v2")
E(f"global_load_dword {v(vTA+3)}, v2, s[4:5]")
E("L_nct:")
E(f"s_and_b32 {s(sT0)}, s2, 3")
E(f"s_lshl_b32 {s(sT0)}, {s(sT0)}, 2")
E(f"s_bfe_u32 {s(sI)}, s2, 0x20003")
E(f"s_add_u32 {s(sI)}, {s(sI)}, {s(sT0)}")
E(f"s_bfe_u32 {s(sT0)}, s2, 0x10002")
E(f"s_lshr_b32 {s(sT1)}, s2, 5")
E(f"s_mul_i32 {s(sC)}, {s(sT0)}, 7")
E(f"s_add_u32 {s(sC)}, {s(sC)}, {s(sT1)}")
E(f"s_sub_u32 {s(sC)}, {s(sC)}, 1")
E(f"s_add_u32 {s(sT0)}, {s(sT0)}, 14")
E(f"s_cmp_eq_u32 {s(sT1)}, 0")
E(f"s_cselect_b32 {s(sC)}, {s(sT0)}, {s(sC)}")
E(f"s_cselect_b32 {s(sDFT)}, 1, 0")
E(f"s_cselect_b32 {s(sRS)}, 2, 7")
E(f"s_lshl_b32 {s(sRS)}, {s(sRS)}, 9")
E(f"s_lshl_b32 {s(sWlim)}, {s(sRS)}, 9")
E(f"s_lshr_b32 {s(sRH)}, {s(sW)}, 2")
E(f"s_and_b32 {s(sCQ)}, {s(sW)}, 3")
E(f"s_lshl_b32 {s(sWd)}, {s(sW)}, 10")
E(f"v_bfe_u32 v2, v0, 3, 5")
E(f"v_bfe_u32 v3, v2, 1, 3")
E(f"v_and_b32 v4, 7, {v(vL)}")
E(f"v_xor_b32 v3, v3, v4")
E(f"v_lshlrev_b32 v3, 4, v3")
E(f"s_lshl_b32 {s(sCB)}, {s(sC)}, 8")
E(f"s_cmp_eq_u32 {s(sDFT)}, 1")
E("s_cbranch_scc1 L_rows_dft")
E(f"v_mul_lo_u32 v5, v2, {s(sRS)}")
E(f"v_bfe_u32 v6, {v(vL)}, 4, 1")
E(f"v_lshlrev_b32 v6, 2, v6")
E(f"v_xor_b32 v6, v6, v4")
E(f"v_lshlrev_b32 v6, 4, v6")
E(f"v_add3_u32 {v(vWo)}, v5, v6, {s(sCB)}")
E(f"v_lshlrev_b32 v2, 4, v2")
E(f"v_add_u32 v2, {s(sI)}, v2")
E(f"s_mov_b32 {s(sT0)}, {512*1024}")
E(f"s_mov_b32 {s(sT1)}, {1024*1024}")
E("s_branch L_rows_done")
E("L_rows_dft:")
E(f"s_sub_u32 {s(sCB)}, {s(sCB)}, {14*256 - 512}")
E(f"v_lshrrev_b32 v5, 4, v0")
E(f"v_and_b32 v6, 3, v5")
E(f"v_lshlrev_b32 v6, 2, v6")
E(f"v_and_b32 v4, 15, {v(vL)}")
E(f"v_xor_b32 v6, v6, v4")
E(f"v_lshlrev_b32 v6, 4, v6")
E(f"v_lshlrev_b32 v5, 10, v5")
E(f"v_add3_u32 {v(vWo)}, v5, v6, {s(sCB)}")
E(f"v_add_u32 {v(vWo+1)}, {16*1024}, {v(vWo)}")
E("v_and_b32 v4, 1, v2")
E("v_lshlrev_b32 v4, 1, v4")
E("v_and_or_b32 v4, v2, 4, v4")
E("v_bfe_u32 v5, v2, 1, 1")
E("v_lshl_add_u32 v4, v5, 7, v4")
E("v_bfe_u32 v5, v2, 3, 2")
E("v_lshl_add_u32 v4, v5, 8, v4")
E(f"s_lshr_b32 {s(sT1)}, {s(sI)}, 1")
E(f"s_lshl_b32 {s(sT1)}, {s(sT1)}, 4")
E(f"s_and_b32 {s(sT0)}, {s(sI)}, 1")
E(f"s_add_u32 {s(sT1)}, {s(sT1)}, {s(sT0)}")
E(f"v_add_u32 v2, {s(sT1)}, v4")
E(f"s_mov_b32 {s(sT0)}, {1024*1024}")
E(f"s_mov_b32 {s(sT1)}, {8*1024}")
E("L_rows_done:")
E(f"v_lshl_add_u32 {v(vXo)}, v2, 10, v3")
E(f"v_add_u32 {v(vXo+1)}, {s(sT0)}, {v(vXo)}")
E(f"v_add_u32 {v(vXo+2)}, {s(sT1)}, {v(vXo)}")
E(f"v_add_u32 {v(vXo+3)}, {s(sT1)}, {v(vXo+1)}")
pstamp(1)
E("s_waitcnt lgkmcnt(0)")
pstamp(2)
srd(sX0, 32, 2048*1024)
E(f"s_cmp_eq_u32 {s(sDFT)}, 1")
E(f"s_cselect_b32 {s(sG)}, s38, s44\ns_cselect_b32 {s(sG+1)}, s39, s45")
E(f"s_cselect_b32 {s(sU)}, s40, s46\ns_cselect_b32 {s(sU+1)}, s41, s47")
E(f"s_mov_b32 {s(sG+2)}, {s(sWlim)}\ns_mov_b32 {s(sG+3)}, 0x20000")
E(f"s_mov_b32 {s(sU+2)}, {s(sWlim)}\ns_mov_b32 {s(sU+3)}, 0x20000")

def tpiece(n, b):
    pre = [f"s_add_u32 {s(sOff2)}, {s(sUN[n >> 2])}, {(n & 3)*2*Q}"] if b == 0 else []
    dst = PP[n % 9]*BLK + b*Q
    return pre, dst, f"buffer_load_dwordx4 {v(vW2)}, {s(sU2 if b else sG2,4)}, {s(sOff2)} offen lds"
class Stream:
    def __init__(self, order, free_after, piece):
        self.todo = [(o, b) for o in order for b in range(2 if o[0] == "T" else 4)]
        self.free_after = free_after; self.piece = piece
        self.issued = []
        self.bar = -1
    def peek(self):
        if not self.todo: return None
        o, b = self.todo[0]
        return None if self.free_after[o] > self.bar else o[0]
    def next(self):
        o, b = self.todo.pop(0); self.issued.append(o)
        pre, dst, ld = tpiece(int(o[1:]), b) if o[0] == "T" else self.piece(o, b)
        m0 = f"s_add_u32 m0, {s(sWd)}, {dst}" if dst else f"s_mov_b32 m0, {s(sWd)}"
        return ([m0] + pre if pre else [m0, "s_nop 0"]) + [ld]
    def wait(self, need):
        last = max(i for i, o in enumerate(self.issued) if o in need)
        for o in need:
            if o[0] in "WXT": assert self.issued.count(o) == (2 if o[0] == "T" else 4), (o, self.issued)
        return len(self.issued) - 1 - last
def dma_slot(st, nmax=2):
    k = st.peek()
    if k is None: return []
    if k == "T": return st.next()
    lab = newlab("sk")
    o = []
    for _ in range(nmax):
        if st.peek() in ("W", "X"): o += st.next()
    if o[1] == "s_nop 0": o[1] = f"s_cbranch_vccnz {lab}"
    else: o.insert(0, f"s_cbranch_vccnz {lab}")
    return o + [f"{lab}:"]

d_order = ["W0", "X0", "W1", "W2", "X1", "W3", "W4", "X2", "W5"]
for P in range(3, 8): d_order += [f"W{2*P}", f"X{P}", f"W{2*P+1}"]
d_order += [f"T{k}" for k in range(9)]
d_free = {f"W{n}": n - 6 for n in range(16)}
d_free.update({f"X{n}": 2*(n-3) + 1 for n in range(8)})
d_free.update({f"T{k}": [10, 11, 11, 12, 13, 13, 14, 15, 15][k] for k in range(9)})
def d_piece(o, b):
    n = int(o[1:])
    if o[0] == "W":
        pre = [f"s_mov_b32 {s(sWoff)}, {n*32*1024}"] if b == 0 else []
        return pre, (n % 6)*BLK + (b & 1)*Q + (b >> 1)*4096, f"buffer_load_dwordx4 {v(vWo+(b>>1))}, {s(sU if b&1 else sG,4)}, {s(sWoff)} offen lds"
    pre = [f"s_movk_i32 {s(sXoff)}, {n*128}"] if b == 0 else []
    return pre, XRING + (n % 3)*BLK + b*4096, f"buffer_load_dwordx4 {v(vXo+b)}, {s(sX0,4)}, {s(sXoff)} offen lds"
SD = Stream(d_order, d_free, d_piece)

UNIT = list(range(8)) + [2, 3, 4, 5, 6, 7, 0, 1]
XIT = {n: f"X{n}" for n in range(8)}
XIT.update({8+k: f"X{2+k}" for k in range(6)}); XIT.update({14: "X8", 15: "X9"})
f_order = []
for n in range(8): f_order += [f"W{n}", f"X{n}"]
f_order += ["W8", "W9", "W10", "W11", "W12", "W13", "W14", "W15", "X8", "X9"] + [f"T{k}" for k in range(9)]
last_use = {f"W{n}": n for n in range(16)}
for n in range(16): last_use[XIT[n]] = n
f_free, f_blk = {}, {}
freeq = [(-1, b) for b in range(9)]
pending = list(f_order)
rel = {}
for o in f_order:
    freeq.sort()
    t, b = freeq.pop(0)
    f_free[o] = t; f_blk[o] = b
    if o in last_use: freeq.append((last_use[o], b))
perm = {f_blk[f"T{k}"]: PP[k] for k in range(9)}
f_blk = {o: perm[b] for o, b in f_blk.items()}
def f_piece(o, b):
    n = int(o[1:])
    if o[0] == "W":
        off = UNIT[n]*64*3584 + (n >> 3)*128 + (b >> 1)*32*3584
        pre = [f"s_mov_b32 {s(sWoff)}, {off}"] if not b & 1 else []
        return pre, f_blk[o]*BLK + (b & 1)*Q + (b >> 1)*4096, f"buffer_load_dwordx4 {v(vWo)}, {s(sU if b&1 else sG,4)}, {s(sWoff)} offen lds"
    pre = [f"s_movk_i32 {s(sXoff)}, {(n & 7)*128}"] if b == 0 else []
    return pre, f_blk[o]*BLK + b*4096, f"buffer_load_dwordx4 {v(vXo+b)}, {s(sX0,4)}, {s(sXoff)} offen lds"

def capture(fn):
    n0 = len(L); fn(); lines = [x.strip() for x in L[n0:]]; del L[n0:]
    out = []
    for x in lines:
        if out and (x.startswith(("s_cselect", "s_addc"))): out[-1] += "\n" + x
        else: out.append(x)
    return out
def first_loads(st, n):
    lab = newlab("fl")
    E(f"s_cbranch_vccnz {lab}")
    for _ in range(n): EL(st.next())
    E(f"{lab}:")
def start_loads(st):
    E(f"s_lshl_b32 {s(sT0)}, {s(sC)}, 3")
    E(f"s_add_u32 {s(sT0)}, {s(sT0)}, {s(sW)}")
    E(f"s_lshl_b32 {s(sT0)}, {s(sT0)}, 4")
    E(f"s_add_u32 {s(sT0)}, {s(sT0)}, {s(sI)}")
    E(f"s_lshl_b32 {s(sT0)}, {s(sT0)}, 10")
    E(f"v_lshlrev_b32 v6, 4, {v(vL)}")
    E(f"v_mov_b32 {v(vZERO)}, 0")
    E(f"v_mov_b32 {v(vZERO+1)}, 0")
    E(f"v_mov_b32 v4, {CNT}")
    E(f"ds_write_b64 v4, {v(vZERO,2)}")
    lh, ld = newlab("sl"), newlab("sl")
    E(f"s_cbranch_vccnz {lh}")
    for _ in range(opt("npro", 16) - 8): EL(st.next())
    E(f"buffer_load_dwordx4 v[192:195], v6, {s(sX0,4)}, {s(sT0)} offen"); st.issued.append("R")
    E(f"s_branch {ld}")
    E(f"{lh}:")
    E(f"buffer_load_dwordx4 v[192:195], v6, {s(sX0,4)}, {s(sT0)} offen")
    if not flag("nota"):
        E(f"v_lshrrev_b32 v4, 1, {v(vL)}")
        E(f"s_lshl_b32 {s(sT0)}, {s(sI)}, 5")
        E(f"v_add_u32 v4, {s(sT0)}, v4")
        E(f"v_mul_lo_u32 v4, v4, {s(sRS)}")
        E(f"v_and_b32 v5, 1, {v(vL)}")
        E(f"v_lshl_add_u32 v4, v5, 7, v4")
        l1 = newlab("sl")
        E(f"s_cmp_eq_u32 {s(sW)}, 4")
        E(f"s_cbranch_scc0 {l1}")
        E(f"buffer_load_dword {v(vTA+3)}, v4, {s(sG,4)}, {s(sCB)} offen")
        E(f"{l1}:")
        E(f"s_cmp_eq_u32 {s(sW)}, 5")
        E(f"s_cbranch_scc0 {ld}")
        E(f"buffer_load_dword {v(vTA+3)}, v4, {s(sU,4)}, {s(sCB)} offen")
    E(f"{ld}:")
def late1():
    srd(sWS, 30, WS_SIZE)
    E(f"s_mov_b32 {s(sMASK)}, 0xffff0000")
    E(f"s_lshl_b32 {s(sT0)}, {s(sI)}, 4")
    E(f"s_add_u32 {s(sT0)}, {s(sT0)}, {s(sC)}")
    E(f"s_lshl_b32 {s(sT0)}, {s(sT0)}, 4")
    E(f"s_add_u32 {s(sT0)}, {s(sT0)}, {s(sW)}")
    E(f"s_lshl_b32 {s(sT0)}, {s(sT0)}, 3")
    E(f"s_add_u32 {s(sT3)}, {s(sT0)}, {GR_OFF}")
    E(f"v_min_u32 v4, 55, {v(vL)}")
    E(f"s_mul_i32 {s(sT0)}, s2, 56")
    E(f"v_add_u32 v5, {s(sT0)}, v4")
    E(f"v_lshlrev_b32 {v(vTA)}, 7, v5")
    E(f"s_lshr_b32 {s(sT0)}, s2, 3")
    E(f"s_mul_i32 {s(sT0)}, {s(sT0)}, 56")
    E(f"v_add_u32 v4, {s(sT0)}, v4")
    E(f"v_lshlrev_b32 v4, 10, v4")
    E(f"v_add_u32 {v(vTA+1)}, 384, v4")
    E(f"s_bfe_u32 {s(sCT)}, s2, 0x30003")
    E(f"s_and_b32 {s(sRT)}, s2, 7")
    E(f"s_lshl_b32 {s(sRT)}, {s(sRT)}, 2")
    E(f"s_lshr_b32 {s(sT1)}, s2, 6")
    E(f"s_add_u32 {s(sRT)}, {s(sRT)}, {s(sT1)}")
    E(f"s_lshr_b32 {s(sR)}, {s(sRT)}, 1")
    E(f"v_lshrrev_b32 v5, 3, {v(vL)}")
    E(f"v_bfe_u32 v4, {v(vL)}, 4, 1")
    E(f"v_lshlrev_b32 v4, 2, v4")
    E(f"v_xor_b32 v4, v4, {v(vL)}")
    E(f"v_and_b32 v4, 7, v4")
    E(f"v_lshlrev_b32 v4, 4, v4")
    E(f"v_lshl_add_u32 v4, v5, 10, v4")
    E(f"s_cmp_eq_u32 {s(sW)}, 7")
    E(f"s_cselect_b32 {s(sT0)}, {1792*1024}, 0")
    E(f"s_lshl_b32 {s(sT1)}, {s(sCT)}, 7")
    E(f"s_add_u32 {s(sT0)}, {s(sT0)}, {s(sT1)}")
    E(f"v_add_u32 {v(vW2)}, {s(sT0)}, v4")
    srd(sG2, 28, 1792*1024)
    E(f"s_add_u32 {s(sU2)}, s28, {Q}\ns_addc_u32 {s(sU2+1)}, s29, 0\ns_mov_b32 {s(sU2+2)}, {1792*1024-Q}\ns_mov_b32 {s(sU2+3)}, 0x20000")
def late2():
    for g in range(4):
        E(f"s_lshl_b32 {s(sT0)}, {s(sW)}, 2")
        E(f"s_add_u32 {s(sT0)}, {s(sT0)}, {g}")
        E(f"s_lshl_b32 {s(sT1)}, {s(sT0)}, 17")
        E(f"s_cmp_ge_u32 {s(sT0)}, 14")
        E(f"s_cselect_b32 {s(sT0)}, {(14*8 - 4)*16384}, 0")
        E(f"s_sub_u32 {s(sUN[g])}, {s(sT1)}, {s(sT0)}")
        E(f"s_min_u32 {s(sUN[g])}, {s(sUN[g])}, {108*16384}")
    E(f"v_bfe_u32 v5, {v(vL)}, 2, 2")
    E(f"v_lshl_add_u32 v5, v2, 2, v5")
    E(f"v_lshlrev_b32 v5, 7, v5")
    E(f"v_bfe_u32 v4, {v(vL)}, 3, 1")
    E(f"v_lshl_add_u32 v5, v4, 6, v5")
    E(f"v_bfe_u32 v4, {v(vL)}, 4, 1")
    E(f"v_lshl_add_u32 v5, v4, 5, v5")
    E(f"v_and_b32 v4, 3, {v(vL)}")
    E(f"v_lshl_add_u32 v5, v4, 3, v5")
    E(f"v_add_u32 {v(vA2)}, {s(sWd)}, v5")
    E(f"v_xor_b32 {v(vA2+1)}, 64, {v(vA2)}")
    for g in (1, 2):
        E(f"v_add_u32 {v(vA2+2*g)}, {8*Q*g}, {v(vA2)}\nv_add_u32 {v(vA2+2*g+1)}, {8*Q*g}, {v(vA2+1)}")
    E(f"s_mul_i32 {s(sT0)}, {s(sR)}, {28*128}")
    E(f"s_lshl_b32 {s(sT1)}, {s(sW)}, 9")
    E(f"s_add_u32 {s(sT0)}, {s(sT0)}, {s(sT1)}")
    E(f"s_add_u32 {s(sT0)}, {s(sT0)}, {FL_OFF + 32*128}")
    E(f"v_lshlrev_b32 v4, 7, v4")
    E(f"v_add_u32 {v(vFAo)}, {s(sT0)}, v4")
def touches(it):
    for k, (o, d, w) in enumerate((("touch", N_PUB, 4), ("touch3", 8, 6))):
        if it == opt(o, d):
            lab = newlab("nt")
            E(f"s_cmp_lg_u32 {s(sW)}, {w}")
            E(f"s_cbranch_scc1 {lab}")
            E(f"global_load_dword {v(vTA+3)}, {v(vTA+k)}, s[28:29]")
            E(f"{lab}:")
def rowstats(B=192, n=4):
    o = []
    U = B + n; S = U + 2*n
    for r in range(n):
        o += [f"v_lshlrev_b32 v{U+2*r}, 16, v{B+r}", f"v_and_b32 v{U+2*r+1}, {s(sMASK)}, v{B+r}"]
    o += [f"v_add_f32 v{S}, v{U}, v{U+2}", f"v_mul_f32 v{S+1}, v{U}, v{U}", f"v_add_f32 v{S+2}, v{U+1}, v{U+3}", f"v_mul_f32 v{S+3}, v{U+1}, v{U+1}"]
    for r in range(2, n): o += [f"v_add_f32 v{S}, v{S}, v{U+2*r}", f"v_add_f32 v{S+2}, v{S+2}, v{U+2*r+1}"]
    for r in range(1, n): o += [f"v_fmac_f32 v{S+1}, v{U+2*r}, v{U+2*r}", f"v_fmac_f32 v{S+3}, v{U+2*r+1}, v{U+2*r+1}"]
    o += [f"v_add_f32 v{S}, v{S}, v{S+2}", f"v_add_f32 v{S+1}, v{S+1}, v{S+3}", "s_nop 0"]
    ctls = ["row_shr:1 row_mask:0xf bank_mask:0xf bound_ctrl:0", "row_shr:2 row_mask:0xf bank_mask:0xf bound_ctrl:0",
            "row_shr:4 row_mask:0xf bank_mask:0xf bound_ctrl:0", "row_shr:8 row_mask:0xf bank_mask:0xf bound_ctrl:0",
            "row_bcast:15 row_mask:0xa bank_mask:0xf", "row_bcast:31 row_mask:0xc bank_mask:0xf"]
    for ctl in ctls[:6 if n == 4 else 5]:
        o += [f"v_add_f32_dpp v{S}, v{S}, v{S} {ctl}", f"v_add_f32_dpp v{S+1}, v{S+1}, v{S+1} {ctl}", "s_nop 0"]
    o.pop()
    o += finalize(S, S+1, S+2, S+3, S+4)
    o += [f"v_lshrrev_b32 v{S+2}, 16, v{S+2}", f"v_or_b32 {v(vGR)}, v{S+2}, v{S+3}"]
    return o
SLOW = []
def helper_wait(n):
    lab = newlab("hw")
    E(f"s_cbranch_vccz {lab}")
    E(f"s_waitcnt vmcnt({n})")
    E(f"{lab}:")
def nonce_load(st):
    E(f"global_load_dwordx2 {v(vNON,2)}, {v(vZERO)}, s[24:25] sc1"); st.issued.append("N")
def nonce_check(tag):
    E(f"v_readfirstlane_b32 {s(sP)}, {v(vNON)}")
    E(f"s_cmp_eq_u32 {s(sP)}, 0")
    E(f"s_cbranch_scc1 L_slown{tag}")
    E(f"L_backn{tag}:")
    SLOW.extend([f"L_slown{tag}:", f"s_mov_b32 {s(sSP)}, 0", f"L_slown2{tag}:",
                 f"global_load_dwordx2 {v(vNON,2)}, {v(vZERO)}, s[24:25] sc1", f"s_add_u32 {s(sSP)}, {s(sSP)}, 1",
                 "s_waitcnt vmcnt(0)", f"v_readfirstlane_b32 {s(sP)}, {v(vNON)}",
                 f"s_cmp_ge_u32 {s(sSP)}, {SPIN}", f"s_cbranch_scc1 L_backn{tag}",
                 f"s_cmp_eq_u32 {s(sP)}, 0", f"s_cbranch_scc1 L_slown2{tag}", f"s_branch L_backn{tag}"])
def publish(tag, st):
    helper_wait(0)
    nonce_check(tag)
    E(f"v_mov_b32 {v(vGR+1)}, {v(vNON)}")
    E("s_mov_b32 exec_lo, 0\ns_mov_b32 exec_hi, 0x80000000")
    E(f"buffer_store_dwordx2 {v(vGR,2)}, {v(vZERO)}, {s(sWS,4)}, {s(sT3)} offen sc1"); st.issued.append("P")
    E("s_mov_b64 exec, -1")
def gr_load(st):
    E(f"buffer_load_dwordx2 {v(vGR,2)}, {v(vGRl)}, {s(sWS,4)}, 0 offen sc1"); st.issued.append("G")
def gr_check(tag, hw=True):
    if hw: helper_wait(0)
    E(f"v_cmp_ne_u32 s[78:79], {v(vGR+1)}, {v(vNON)}")
    E("s_cmp_lg_u64 s[78:79], 0")
    E(f"s_cbranch_scc1 L_slowg{tag}")
    E(f"L_backg{tag}:")
    SLOW.extend([f"L_slowg{tag}:", f"s_mov_b32 {s(sSP)}, 0", f"L_slowg2{tag}:",
                 f"buffer_load_dwordx2 {v(vGR,2)}, {v(vGRl)}, {s(sWS,4)}, 0 offen sc1", f"s_add_u32 {s(sSP)}, {s(sSP)}, 1",
                 "s_waitcnt vmcnt(0)", f"v_cmp_ne_u32 s[78:79], {v(vGR+1)}, {v(vNON)}",
                 f"s_cmp_ge_u32 {s(sSP)}, {SPIN}", f"s_cbranch_scc1 L_backg{tag}",
                 "s_cmp_lg_u64 s[78:79], 0", f"s_cbranch_scc1 L_slowg2{tag}", f"s_branch L_backg{tag}"])
N_NON, N_RS, N_PUB, N_GL, N_GC = opt("nnon", 1), 2, 3, opt("ngl", 6), opt("ngc", 8)
VQ = []
def cost(x): return 2 if x.split()[0] in ("v_exp_f32", "v_rcp_f32", "v_sqrt_f32") else 1
def fill(budget):
    while VQ and budget >= cost(VQ[0]):
        x = VQ.pop(0); budget -= cost(x)
        E(x)
E(f"s_mov_b32 vcc_lo, {s(sRH)}")
E(f"s_mov_b32 vcc_hi, 0")
E("s_cmp_ge_u32 s2, 8")
E("s_cbranch_scc1 L_nononce")
E(f"s_cmp_lg_u32 {s(sW)}, 3")
E("s_cbranch_scc1 L_nononce")
E("s_or_b32 s78, s78, 1")
E("v_mov_b32 v2, s78\nv_mov_b32 v3, s79\nv_mov_b32 v4, 0\nv_mov_b32 v5, 0")
E("s_mov_b64 exec, 1")
E("global_atomic_cmpswap_x2 v4, v[2:5], s[24:25] sc1")
E("s_mov_b64 exec, -1")
E("s_nop 0")
E("L_nononce:")
E(f"s_cmp_eq_u32 {s(sDFT)}, 1")
E("s_cbranch_scc1 L_dft")
WA = 80; HA = 144; WB = 192
def wreg(k, cb): return WA + 8*(k % 7) + 4*cb
def trreads(k):
    for cb in range(2):
        for hh in range(2):
            q = 2*PP[k % 9] + hh
            E(f"ds_read_b64_tr_b16 {v(wreg(k,cb)+2*hh,2)}, {v(vA2 + 2*(q//8) + cb)} offset:{(q%8)*Q}")
def refill(k0, k1):
    for k in range(k0, k1):
        for b in range(2):
            pre, dst, ld = tpiece(k, b)
            m0 = f"s_add_u32 m0, {s(sWd)}, {dst}" if dst else f"s_mov_b32 m0, {s(sWd)}"
            EL(([m0] + pre if pre else [m0, "s_nop 0"]) + [ld])
def p2head():
    srd(sX1, 26, 2048*1024)
    E(f"s_and_b32 {s(sT3)}, {s(sRT)}, 1")
    E(f"s_lshl_b32 {s(sT3)}, {s(sT3)}, 9")
    E(f"s_add_u32 {s(sT3)}, {s(sT3)}, {s(sR)}")
    E(f"s_lshl_b32 {s(sT3)}, {s(sT3)}, 10")
    E(f"s_lshl_b32 {s(sT1)}, {s(sCT)}, 7")
    E(f"s_add_u32 {s(sT3)}, {s(sT3)}, {s(sT1)}")
def p2addr():
    E(f"v_lshlrev_b32 v6, 4, {v(vL)}")
    E(f"v_add_u32 v5, {2*A_RB}, v6")
    E(f"s_lshl_b32 {s(sT0)}, {s(sR)}, 2")
    E(f"s_and_b32 {s(sT1)}, {s(sRT)}, 1")
    E(f"s_add_u32 {s(sT0)}, {s(sT0)}, {s(sT1)}")
    E(f"s_mul_i32 {s(sT0)}, {s(sT0)}, {A_RB}")
    for g in range(4):
        E(f"s_lshr_b32 {s(sK+g)}, {s(sUN[g])}, 4")
        E(f"s_add_u32 {s(sK+g)}, {s(sK+g)}, {s(sT0)}")
def old78():
    lab = newlab("o78")
    if not flag("noprio"): E("s_setprio 1")
    E(f"s_cbranch_vccnz {lab}")
    if not flag("noprio"): E("s_setprio 2")
    refill(7, 9)
    E(f"{lab}:")
def arrive1(k, vt):
    E(f"v_mov_b32 {v(vt)}, {CNT + 4*k}")
    E(f"v_mov_b32 {v(vt+1)}, 1")
    E("s_mov_b64 exec, 1")
    E(f"ds_add_rtn_u32 {v(vt+1)}, {v(vt)}, {v(vt+1)}")
    E("s_mov_b64 exec, -1")
def arrive2(vt):
    lab = newlab("ar")
    E(f"v_readfirstlane_b32 {s(sSP)}, {v(vt+1)}")
    E(f"v_mov_b32 {v(vt)}, 0")
    E(f"s_cmp_lg_u32 {s(sSP)}, {s(sNA)}")
    E(f"s_cbranch_scc1 {lab}")
    E("s_mov_b64 exec, 1")
    E(f"buffer_store_dwordx2 {v(vNON,2)}, {v(vt)}, {s(sWS,4)}, {s(sFL)} offen sc1")
    E("s_mov_b64 exec, -1")
    E(f"{lab}:")

TW = 192
def twgen(k0, k1):
    for ks in range(k0, k1):
        t = 16 + 12*(ks & 1)
        for u in range(4): E(f"v_fmamk_f32 {v(t+u)}, v8, {f32(16*(ks >> 1) + (ks & 1) + 2*u)}, v9")
        if flag("fract"):
            for u in range(4): E(f"v_fract_f32 {v(t+u)}, {v(t+u)}")
        for u in range(4): E(f"v_cos_f32 {v(t+4+u)}, {v(t+u)}")
        for u in range(4): E(f"v_sin_f32 {v(t+8+u)}, {v(t+u)}")
        E(f"v_cvt_pk_bf16_f32 {v(TW+4*ks)}, {v(t+4)}, {v(t+5)}")
        E(f"v_cvt_pk_bf16_f32 {v(TW+4*ks+1)}, {v(t+6)}, {v(t+7)}")
        E(f"v_cvt_pk_bf16_f32 {v(TW+4*ks+2)}, {v(t+8)}, {v(t+9)}")
        E(f"v_cvt_pk_bf16_f32 {v(TW+4*ks+3)}, {v(t+10)}, {v(t+11)}")
def twphase():
    E(f"s_and_b32 {s(sT0)}, {s(sRT)}, 1")
    E(f"s_lshl_b32 {s(sT0)}, {s(sT0)}, 9")
    E(f"s_add_u32 {s(sT0)}, {s(sT0)}, {s(sR)}")
    E(f"v_and_b32 v8, 31, {v(vL)}")
    E(f"v_lshlrev_b32 v8, 4, v8")
    E(f"v_add_u32 v8, {s(sT0)}, v8")
    E(f"v_cvt_f32_u32 v8, v8")
    E(f"s_mov_b32 {s(sT0)}, {f32(1/2048)}")
    E(f"s_cmp_ge_u32 {s(sCT)}, 4")
    E(f"s_cselect_b32 {s(sT0)}, {s(sT0)}, {f32(-1/2048)}")
    E(f"v_mul_f32 v8, {s(sT0)}, v8")
    E(f"v_lshrrev_b32 v9, 5, {v(vL)}")
    E(f"v_lshlrev_b32 v9, 3, v9")
    E(f"v_cvt_f32_u32 v9, v9")
    E(f"v_mul_f32 v9, v9, v8")
vXB = 128; vWB = 140
vSELG, vSELU, vCSD = 148, 152, 156
vCSW, vCSR = 168, 169
P0 = 176
MB = 182
MA = 128
TT = 112; OO = 120
def accf(rb, p): return vACC + 32*rb + 16*p
class Log:
    def __init__(self): self.issued = []
    def wait(self, need):
        idx = [i for i, o in enumerate(self.issued) if o in need]
        return len(self.issued) - 1 - max(idx) if idx else None
I0, I1 = Log(), Log()
WX = [o for o in f_order if o[0] != "T"]
def dma_item(o, log, grp):
    for b in range(4):
        pre, dst, ld = f_piece(o, b)
        m0 = f"s_add_u32 m0, {s(sWd)}, {(dst - 4096*grp) & 0xffffffff}"
        EL(([m0] + pre if pre else [m0, "s_nop 0"]) + [ld]); log.issued.append(o)
def dma_ready(bar, log, grp, nmax=99):
    while WX and f_free[WX[0]] <= bar and nmax:
        dma_item(WX.pop(0), log, grp); nmax -= 1
def t_item(k, log):
    if flag("not"): return
    refill(k, k + 1); log.issued += [f"T{k}"]*2
sPU = [sWoff2, sCQ, sT2]
vW2b = 165
def u_item(k, log):
    for b in range(2):
        m0 = f"s_add_u32 m0, {s(sWd)}, {PP[k]*BLK + b*Q + 4096}"
        pre = f"s_add_u32 {s(sOff2)}, {s(sPU[k >> 2])}, {(k & 3)*2*Q}" if b == 0 else "s_nop 0"
        EL([m0, pre, f"buffer_load_dwordx4 {v(vW2b)}, {s(sU2 if b else sG2,4)}, {s(sOff2)} offen lds"]); log.issued.append(f"U{k}")
def weave(dfn, log, other):
    n0 = len(L); i0 = len(log.issued); dfn()
    lines = L[n0:]; del L[n0:]
    tags = log.issued[i0:]; del log.issued[i0:]
    assert len(lines) == 3*len(tags)
    nd = len(tags); no = len(other)
    j = 0
    for d in range(nd):
        L.extend(lines[3*d:3*d+3]); log.issued.append(tags[d])
        upto = (d + 1)*no // nd
        while j < upto:
            x = other[j]; j += 1; E(x)
            if x.startswith("buffer_store"): log.issued.append("S")
    while j < no:
        x = other[j]; j += 1; E(x)
        if x.startswith("buffer_store"): log.issued.append("S")
def setup_f():
    E(f"s_bfe_u32 {s(sT2)}, {s(sW)}, 0x10001")
    E(f"s_and_b32 {s(sCQ)}, {s(sW)}, 1")
    E(f"v_lshrrev_b32 v2, 5, {v(vL)}")
    E(f"v_and_b32 v3, 31, {v(vL)}")
    E(f"v_bfe_u32 v5, {v(vL)}, 3, 1")
    E(f"v_xor_b32 v5, {s(sCQ)}, v5")
    E(f"v_lshlrev_b32 v5, 6, v5")
    E(f"v_lshl_add_u32 v5, v2, 10, v5")
    E(f"v_bfe_u32 v4, {v(vL)}, 2, 2")
    E(f"v_lshl_add_u32 v5, v4, 7, v5")
    E(f"v_and_b32 v4, 3, {v(vL)}")
    E(f"v_lshl_add_u32 v5, v4, 3, v5")
    E(f"v_bfe_u32 v4, {v(vL)}, 4, 1")
    E(f"v_lshl_add_u32 v5, v4, 5, v5")
    E(f"s_lshl_b32 {s(sT1)}, {s(sT2)}, 12")
    E(f"v_add_u32 {v(vWB)}, {s(sT1)}, v5")
    E(f"v_xor_b32 {v(vWB+1)}, 4096, {v(vWB)}")
    E(f"v_and_b32 v5, 15, {v(vL)}")
    E(f"v_lshlrev_b32 v4, 2, v4")
    E(f"v_sub_u32 v5, v5, v4")
    E(f"v_cmp_eq_u32 s[78:79], 0, v5")
    E(f"v_cmp_eq_u32 s[76:77], 8, v5")
    E(f"v_mov_b32 v6, 0x3f803f80")
    E(f"v_bfe_u32 v4, {v(vL)}, 1, 3")
    for k in range(4):
        E(f"v_cndmask_b32 {v(vSELG+k)}, 0, v6, s[78:79]")
        E(f"v_cndmask_b32 {v(vSELU+k)}, 0, v6, s[76:77]")
    E(f"v_xor_b32 v4, v4, v2")
    E(f"v_lshlrev_b32 v4, 4, v4")
    E(f"v_lshl_add_u32 v4, v3, 7, v4")
    E(f"s_mul_i32 {s(sT0)}, {s(sT2)}, {8192 + 64}")
    E(f"v_xor_b32 v4, {s(sT0)}, v4")
    for o in range(4): E(f"v_xor_b32 {v(vXB+o)}, {o*32}, v4")
    for g in (1, 2):
        for o in range(4): E(f"v_add_u32 {v(vXB+4*g+o)}, {3*BLK*g}, {v(vXB+o)}")
        for o in range(2): E(f"v_add_u32 {v(vWB+2*g+o)}, {3*BLK*g}, {v(vWB+o)}")
    E(f"s_mov_b32 {s(sNA)}, 3")
    E(f"s_mul_i32 {s(sFL)}, {s(sI)}, 28")
    E(f"s_mul_i32 {s(sT0)}, {s(sRH)}, 14")
    E(f"s_add_u32 {s(sFL)}, {s(sFL)}, {s(sT0)}")
    E(f"s_add_u32 {s(sFL)}, {s(sFL)}, {s(sC)}")
    E(f"s_lshl_b32 {s(sFL)}, {s(sFL)}, 7")
    E(f"s_add_u32 {s(sFL)}, {s(sFL)}, {FL_OFF + 32*128}")
    E(f"s_lshl_b32 {s(sT0)}, {s(sI)}, 11")
    E(f"s_lshl_b32 {s(sT1)}, {s(sT2)}, 10")
    E(f"s_add_u32 {s(sT0)}, {s(sT0)}, {s(sT1)}")
    E(f"s_add_u32 {s(sT0)}, {s(sT0)}, {GR_OFF}")
    E(f"v_and_b32 v4, 7, {v(vL)}")
    E(f"v_lshlrev_b32 v4, 3, v4")
    E(f"v_lshrrev_b32 v5, 3, {v(vL)}")
    E(f"v_lshl_add_u32 v4, v5, 7, v4")
    E(f"v_add_u32 {v(vGRl)}, {s(sT0)}, v4")
    E(f"v_lshlrev_b32 v4, 2, v0")
    E(f"v_add_u32 {v(vCSW)}, {CS_OFF}, v4")
    E(f"s_and_b32 {s(sT0)}, {s(sW)}, 5")
    E(f"s_lshl_b32 {s(sT0)}, {s(sT0)}, 8")
    E(f"s_add_u32 {s(sT0)}, {s(sT0)}, {CS_OFF}")
    E(f"v_lshlrev_b32 v4, 2, v3")
    E(f"v_lshl_add_u32 v4, v2, 9, v4")
    E(f"v_add_u32 {v(vCSR)}, {s(sT0)}, v4")
    E(f"s_lshl_b32 {s(sT0)}, {s(sI)}, 2")
    E(f"s_lshl_b32 {s(sT1)}, {s(sT2)}, 1")
    E(f"s_add_u32 {s(sT0)}, {s(sT0)}, {s(sT1)}")
    E(f"s_mul_i32 {s(sH0)}, {s(sT0)}, {A_RB}")
    E(f"s_lshl_b32 {s(sT0)}, {s(sC)}, 13")
    E(f"s_lshl_b32 {s(sT1)}, {s(sRH)}, 12")
    E(f"s_add_u32 {s(sT0)}, {s(sT0)}, {s(sT1)}")
    E(f"s_lshl_b32 {s(sT1)}, {s(sCQ)}, 11")
    E(f"s_add_u32 {s(sT0)}, {s(sT0)}, {s(sT1)}")
    E(f"s_add_u32 {s(sH0)}, {s(sH0)}, {s(sT0)}")
    E(f"s_add_u32 {s(sH1)}, {s(sH0)}, {A_RB}")
    E(f"v_lshlrev_b32 v6, 4, {v(vL)}")
    for r in (MB+1, MB+3, MB+4, MB+5, vZERO, vZERO+1): E(f"v_mov_b32 {v(r)}, 0")
class Lgkm:
    def __init__(self): self.q = []
    def op(self, text, tag):
        E(text); self.q.append(tag)
    def wait(self, need, extra=""):
        idx = [i for i, t in enumerate(self.q) if t in need]
        n = 0 if need == "all" else (len(self.q) - 1 - max(idx) if idx else None)
        if n is None:
            if extra: E(f"s_waitcnt {extra}")
            return
        n = min(n, 15)
        E(f"s_waitcnt {extra}lgkmcnt({n})")
        self.q = self.q[len(self.q)-n:] if n else []
def fset(g): return 80 + 16*(g % 3)
def freads(g):
    n, o = g >> 2, g & 3
    xb, wb = f_blk[XIT[n]], f_blk[f"W{n}"]
    wa = v(vWB + 2*(wb // 3) + (o >> 1)); wo = (wb % 3)*BLK + (o & 1)*2048
    xa = v(vXB + 4*(xb // 3) + o); xo = (xb % 3)*BLK
    F = fset(g)
    return [(f"ds_read_b128 {v(F,4)}, {xa} offset:{xo}", f"a{g}"),
            (f"ds_read_b64_tr_b16 {v(F+8,2)}, {wa} offset:{wo}", f"a{g}"),
            (f"ds_read_b64_tr_b16 {v(F+10,2)}, {wa} offset:{wo+512}", f"a{g}"),
            (f"ds_read_b64_tr_b16 {v(F+12,2)}, {wa} offset:{wo+8192}", f"a{g}"),
            (f"ds_read_b64_tr_b16 {v(F+14,2)}, {wa} offset:{wo+8192+512}", f"a{g}"),
            (f"ds_read_b128 {v(F+4,4)}, {xa} offset:{xo+4096}", f"a{g}")]
C0 = -2.0 * math.log2(math.e) * math.sqrt(2.0/math.pi)
C1 = C0 * 0.044715
cszero = [f"v_mov_b32 {v(MA+r)}, 0" for r in (1, 2, 3, 5, 6, 7)]
cssplit = []
for p in range(2):
    c, t = v(MA+8+p), v(MA+10+p)
    cssplit += [f"v_cvt_pk_bf16_f32 {t}, {c}, {c}", f"v_and_b32 {t}, {s(sMASK)}, {t}", f"v_sub_f32 {t}, {c}, {t}", f"v_cvt_pk_bf16_f32 {v(MA+4*p)}, {c}, {t}"]
fcorr = [f"v_mfma_f32_32x32x16_bf16 {v(accf(rb,p),16)}, {v(MA+4*p,4)}, {v(MB+2*rb,4)}, {v(accf(rb,p),16)}" for rb in range(2) for p in range(2)]
consts = ([f"v_and_b32 {v(MB)}, 0xffff, {v(vGR)}", f"v_and_b32 v4, {s(sMASK)}, {v(vGR)}", f"v_xor_b32 {v(MB)}, 0x8000, {v(MB)}",
           f"v_rcp_f32 v5, v4", f"v_lshl_or_b32 {v(MB)}, {v(MB)}, 16, {v(MB)}",
           f"v_mul_f32 {v(P0)}, v4, v4", f"v_mul_f32 {v(P0+2)}, {f32(C0)}, v5", f"v_mul_f32 v4, v5, v5",
           f"v_mul_f32 v4, v4, v5", f"v_mul_f32 {v(P0+4)}, {f32(C1)}, v4", f"v_mov_b32 {v(MB+2)}, {v(MB)}"]
          + [f"v_mov_b32 {v(P0+2*k+1)}, {v(P0+2*k)}" for k in range(3)] + ["s_nop 1", f"v_permlane32_swap_b32 {v(MB)}, {v(MB+2)}"]
          + [f"v_permlane32_swap_b32 {v(P0+2*k)}, {v(P0+2*k+1)}" for k in range(3)])
def gelu(rb, half):
    G = accf(rb, 0) + 8*half; U = accf(rb, 1) + 8*half; q, k0, k1 = [v(P0+2*k+rb) for k in range(3)]
    O = OO + 4*half
    o = []
    R = range(8)
    o += [f"v_mul_f32 {v(TT+j)}, {v(G+j)}, {v(G+j)}" for j in R]
    o += [f"v_fma_f32 {v(TT+j)}, {v(TT+j)}, {k1}, {k0}" for j in R]
    o += [f"v_mul_f32 {v(TT+j)}, {v(TT+j)}, {v(G+j)}" for j in R]
    for j in R: o += [f"v_exp_f32 {v(TT+j)}, {v(TT+j)}", f"v_mul_f32 {v(G+j)}, {v(G+j)}, {v(U+j)}"]
    o += [f"v_fma_f32 {v(TT+j)}, {v(TT+j)}, {q}, {q}" for j in R]
    o += [f"v_rcp_f32 {v(TT+j)}, {v(TT+j)}" for j in R]
    o += [f"v_mul_f32 {v(G+j)}, {v(G+j)}, {v(TT+j)}" for j in R]
    o += [f"v_cvt_pk_bf16_f32 {v(O+j)}, {v(G+2*j)}, {v(G+2*j+1)}" for j in range(4)]
    o += [f"buffer_store_dwordx4 {v(O,4)}, v6, {s(sWS,4)}, {s(sH0+rb)} offen offset:{1024*half} sc1"]
    return o
def compute(p, log, hook):
    LG = Lgkm()
    g0 = 32*p
    for g in (g0, g0 + 1):
        for t, tag in freads(g): LG.op(t, tag)
    for g in range(g0, g0 + 32):
        n, o = g >> 2, g & 3
        F = fset(g)
        rd = freads(g + 2) if g + 2 < g0 + 32 else []
        LG.wait([f"a{g}"])
        for k in range(4):
            rb, pp = k >> 1, k & 1
            A = v(accf(rb, pp), 16)
            E(f"v_mfma_f32_32x32x16_bf16 {A}, {v(F+8+4*pp,4)}, {v(F+4*rb,4)}, {A if g > g0 else 0}")
            if o == 2 and k == 0:
                if (n & 7) == 7:
                    E("s_nop 5")
                    LG.op(f"ds_write_b32 {v(vCSW)}, {v(vCSD)}", "cw")
                w = log.wait([f"W{n+1}", XIT[n+1]]) if n < 15 else None
                LG.wait("all", f"vmcnt({w}) " if w is not None else "")
                E("s_barrier")
                if n & 1: stamp(2 + n // 2, True)
                if (n & 7) == 7:
                    LG.op(f"ds_read_b32 {v(MA+8)}, {v(vCSR)}", "cs")
                    LG.op(f"ds_read_b32 {v(MA+9)}, {v(vCSR)} offset:128", "cs")
                    VQ.extend(cszero)
            for t, tag in rd[2*k:2*k+2]: LG.op(t, tag)
            hook(n, o, k)
            if (n & 7) == 7 and o == 3 and k == 0:
                LG.wait(["cs"]); VQ.extend(cssplit)
            fill(3)
            if o < 2 and k >= 2 and not flag("nosel"):
                D = v(vCSD, 4)
                E(f"v_mfma_f32_16x16x32_bf16 {D}, {v(vSELU if k & 1 else vSELG,4)}, {v(F+8+4*(k&1),4)}, {D if (g > g0 or k & 1) else 0}")
    assert not VQ
CPRIO = opt("cprio", 2)
TWN = opt("twn", 2)

E("s_cbranch_vccnz L_g1")
setup_f(); late1(); late2()
E(f"v_mov_b32 v4, {CNT}")
for k in range(3): E(f"ds_write_b64 v4, {v(vZERO,2)} offset:{8*k}")
for g in range(3):
    E(f"s_lshl_b32 {s(sPU[g])}, {s(sW)}, 19")
    E(f"s_add_u32 {s(sPU[g])}, {s(sPU[g])}, {((16 + g)*8 - 108)*16384}")
    E(f"s_min_u32 {s(sPU[g])}, {s(sPU[g])}, {108*16384}")
E(f"s_cmp_eq_u32 {s(sW)}, 3")
E(f"s_cselect_b32 {s(sT0)}, {1792*1024}, 0")
E(f"v_add_u32 {v(vW2b)}, {s(sT0)}, {v(vW2)}")
E(f"s_setprio {CPRIO}")
E("s_waitcnt lgkmcnt(0)")
E("s_barrier")
stamp(2)
G0_AT = len(L)
E("L_g1:")
dma_ready(-1, I1, 1, 2)
E(f"v_and_b32 v4, 31, {v(vL)}")
E(f"s_lshl_b32 {s(sT0)}, {s(sI)}, 5")
E(f"v_add_u32 v5, {s(sT0)}, v4")
E(f"v_mul_lo_u32 v5, v5, {s(sRS)}")
E(f"v_add_u32 {v(vTA+2)}, {s(sCB)}, v5")
E(f"v_lshrrev_b32 v5, 5, v0")
E(f"s_lshl_b32 {s(sT0)}, {s(sC)}, 3")
E(f"s_sub_u32 {s(sT0)}, {s(sT0)}, 8")
E(f"v_add_u32 v5, {s(sT0)}, v5")
E(f"v_lshlrev_b32 v5, 14, v5")
E(f"v_lshl_add_u32 v24, v4, 4, v5")
SUF = capture(setup_f)
EL(SUF[:len(SUF)//2])
dma_ready(-1, I1, 1, opt("npro", 4) - 2)
EL(SUF[len(SUF)//2:])
def wtouch(p):
    if flag("nota"): return
    l1, l2 = newlab("wt"), newlab("wt")
    E(f"s_cmp_lg_u32 {s(sW)}, {4 + 2*p}")
    E(f"s_cbranch_scc1 {l1}")
    E(f"buffer_load_dword {v(vTA+3)}, {v(vTA+2)}, {s(sG,4)}, 0 offen offset:{128*p}")
    E(f"{l1}:")
    E(f"s_cmp_lg_u32 {s(sW)}, {5 + 2*p}")
    E(f"s_cbranch_scc1 {l2}")
    E(f"buffer_load_dword {v(vTA+3)}, {v(vTA+2)}, {s(sU,4)}, 0 offen offset:{128*p}")
    E(f"{l2}:")
def rowloads():
    E(f"s_lshl_b32 {s(sT0)}, {s(sI)}, 10")
    E(f"buffer_load_dwordx4 v[16:19], v24, {s(sX0,4)}, {s(sT0)} offen")
    E(f"buffer_load_dwordx4 v[20:23], v24, {s(sX0,4)}, {s(sT0)} offen offset:512"); I1.issued += ["R", "R"]
    wtouch(0)
    if opt("tb", 3) < 0: wtouch(1)
if not flag("rowlate"): rowloads()
E(f"s_waitcnt vmcnt({I1.wait(['W0', 'X0'])})")
E("s_barrier")
stamp(2)
if flag("rowlate"): rowloads()
for n in range(8):
    if n == opt("tb", 3): wtouch(1)
    other = []
    if n == 0: other = capture(late1)
    if n == 1:
        nonce_load(I1); other = capture(late2)
    if n == opt("npub", 2):
        E(f"s_waitcnt vmcnt({I1.wait(['R'])})")
        other = rowstats(16, 8)
    weave(lambda: dma_ready(n - 1, I1, 1, opt("dmax", 3)), I1, other)
    if n == opt("npub", 2):
        E(f"s_waitcnt vmcnt({I1.wait(['N'])})")
        nonce_check("f1")
        E(f"v_mov_b32 {v(vGR+1)}, {v(vNON)}")
        E(f"s_lshl_b32 {s(sT0)}, {s(sW)}, 3")
        E(f"s_sub_u32 {s(sT0)}, {s(sT0)}, 64")
        E(f"s_add_u32 {s(sT3)}, {s(sT3)}, {s(sT0)}")
        E(f"v_lshlrev_b32 v4, 3, v2")
        E("s_mov_b32 exec_lo, 0x80000000\ns_mov_b32 exec_hi, 0x80000000")
        E(f"buffer_store_dwordx2 {v(vGR,2)}, v4, {s(sWS,4)}, {s(sT3)} offen sc1"); I1.issued.append("P")
        E("s_mov_b64 exec, -1")
        E(f"s_cmp_lg_u32 {s(sW)}, 7")
        E(f"s_cbranch_scc1 L_ntp")
        twphase()
        E("L_ntp:")
    for k, (o, d, w) in enumerate((("touch", 3, 4), ("touch3", 6, 6))):
        if n == opt(o, d):
            lab = newlab("nt")
            E(f"s_cmp_lg_u32 {s(sW)}, {w}")
            E(f"s_cbranch_scc1 {lab}")
            E(f"global_load_dword {v(vTA+3)}, {v(vTA+k)}, s[28:29]")
            E(f"{lab}:")
    if 3 <= n < 7:
        lab = newlab("tw")
        E(f"s_cmp_lg_u32 {s(sW)}, 7")
        E(f"s_cbranch_scc1 {lab}")
        twgen(TWN*(n-3), TWN*(n-2))
        E(f"{lab}:")
    if n == 5: gr_load(I1)
    if n == 7:
        E(f"s_waitcnt vmcnt({I1.wait(['G'])})"); gr_check("f1", False); EL(consts)
        E(f"s_setprio {CPRIO}")
    E(f"s_waitcnt vmcnt({I1.wait([f'W{n+1}', XIT[n+1]])})")
    E("s_barrier")
    if n & 1: stamp(2 + n // 2, True)
compute(1, I1, lambda n, o, k: None)
EL(fcorr)
stamp(3)
E("s_nop 9")
for rb in range(2):
    for half in range(2): EL(gelu(rb, half))
stamp(1)
E(f"s_lshl_b32 {s(sT0)}, {s(sW)}, 2")
E(f"s_add_u32 {s(sT0)}, {s(sT0)}, {CNT - 8}")
E(f"v_mov_b32 v2, {s(sT0)}")
E("L_wl:")
E("ds_read_b32 v3, v2")
E("s_waitcnt lgkmcnt(0)")
E(f"v_readfirstlane_b32 {s(sT0)}, v3")
E(f"s_cmp_eq_u32 {s(sT0)}, 0")
E("s_cbranch_scc1 L_wl")
E("s_branch L_p2")
G1_CODE = L[G0_AT:]; del L[G0_AT:]
def hook0(n, o, k):
    if (n, o, k) == (5, 0, 3): nonce_load(I0)
    if (n, o, k) == (opt("ngl", 6), 2, 3): gr_load(I0)
compute(0, I0, hook0)
E("s_setprio 0")
E("s_waitcnt vmcnt(0)")
nonce_check("f0"); gr_check("f0", False)
EPI = consts + fcorr + ["s_nop 9"]
for rb in range(2):
    for half in range(2): EPI += gelu(rb, half)
tq = list(range(9)); rq = []
EC = opt("ec", 80)
NA = opt("na", 15)
for n in range(8, 17):
    rd = [k for (k, t) in rq if t + opt('tl', 3) <= n]
    if rd:
        E(f"s_waitcnt vmcnt({I0.wait([f'T{k}' for k in rd])})")
        for k in rd: trreads(k)
    chunk = []
    b_ = EC if n > 8 else EC // 2
    while EPI and b_ > 0:
        x = EPI.pop(0); b_ -= cost(x); chunk.append(x)
    def dm():
        dma_ready(n - 1, I0, 0)
        while tq and f_free[f"T{tq[0]}"] <= n - 1:
            k = tq.pop(0); t_item(k, I0); u_item(k, I0)
            if k < 7: rq.append((k, n))
    weave(dm, I0, chunk)
    if rd:
        E("s_waitcnt lgkmcnt(0)")
        for k in rd: t_item(k + 9, I0)
        rq = [(k, t) for (k, t) in rq if k not in rd]
    if n == 16: break
    if n == NA:
        assert not EPI
        E(f"s_waitcnt vmcnt({I0.wait(['S'])})")
        arrive1(0, 2)
        E("s_waitcnt lgkmcnt(0)")
        arrive2(2)
    if n == 15: p2head(); p2addr()
    if n == 15:
        E(f"buffer_load_dwordx2 {v(vFA,2)}, {v(vFAo)}, {s(sWS,4)}, 0 offen sc1"); I0.issued.append("F")
    w = I0.wait([f"W{n+1}", XIT[n+1]]) if n < 15 else None
    if w is not None: E(f"s_waitcnt vmcnt({w})")
    E("s_barrier")
    if n & 1: stamp(2 + n // 2, True)
assert not WX and not tq
stamp(3); stamp(1)
rd = [k for (k, t) in rq]
E(f"s_waitcnt vmcnt({I0.wait([f'T{k}' for k in rd] + ['F'])})")
for k in rd: trreads(k)
E("s_waitcnt lgkmcnt(0)")
for k in rd: t_item(k + 9, I0)
E(f"s_lshl_b32 {s(sT0)}, {s(sW)}, 2")
E(f"s_add_u32 {s(sT0)}, {s(sT0)}, {CNT + 8}")
E(f"v_mov_b32 v2, {s(sT0)}")
E(f"s_waitcnt vmcnt({I0.wait(['U8'])})")
E("ds_write_b32 v2, v2")
stamp(4); stamp(5)
E(f"s_mov_b32 {s(sSP)}, 0")
E("s_branch L_pollca")
L.extend(G1_CODE)

E("L_dft:")
X0a, X1a, Ga, Ua, X0b, X1b, Gb, Ub = [80 + 4*k for k in range(8)]
dXB = 116; dWB = 124
dPW, dPR = 158, 5
RR = 192; FR = 80
def acc(rb, p): return vACC + (rb * 2 + p) * 16
first_loads(SD, 8)
E(f"v_lshrrev_b32 v2, 5, {v(vL)}")
E(f"v_and_b32 v3, 31, {v(vL)}")
E(f"v_bfe_u32 v5, {v(vL)}, 2, 2")
E(f"v_lshlrev_b32 v4, 11, v2")
E(f"v_lshl_add_u32 v4, v5, 8, v4")
E(f"v_xor_b32 v5, {s(sCQ)}, v5")
E(f"v_lshl_add_u32 v4, v5, 6, v4")
E(f"v_bfe_u32 v5, {v(vL)}, 4, 1")
E(f"v_lshl_add_u32 v4, v5, 5, v4")
E(f"v_and_b32 v5, 3, {v(vL)}")
E(f"v_lshl_add_u32 {v(dWB)}, v5, 3, v4")
E(f"v_add_u32 {v(dWB+1)}, {3*BLK}, {v(dWB)}")
E(f"v_bfe_u32 v4, {v(vL)}, 1, 3")
E(f"v_xor_b32 v4, v4, v2")
E(f"v_lshlrev_b32 v4, 4, v4")
E(f"v_lshl_add_u32 v4, v3, 7, v4")
E(f"s_lshl_b32 {s(sT0)}, {s(sRH)}, 13")
E(f"s_add_u32 {s(sT0)}, {s(sT0)}, {XRING}")
E(f"v_add_u32 v4, {s(sT0)}, v4")
for q in range(4):
    E(f"v_xor_b32 {v(dXB+q)}, {q*32}, v4")
start_loads(SD)
VBA = 5
def late_d():
    E(f"s_mov_b32 {s(sNA)}, 7")
    E(f"s_lshl_b32 {s(sFL)}, {s(sC)}, 4")
    E(f"s_add_u32 {s(sFL)}, {s(sFL)}, {s(sI)}")
    E(f"s_lshl_b32 {s(sFL)}, {s(sFL)}, 7")
    E(f"s_add_u32 {s(sFL)}, {s(sFL)}, {FL_OFF - 14*16*128}")
    E(f"s_lshl_b32 {s(sT0)}, {s(sW)}, 9")
    E(f"s_add_u32 {s(sT0)}, {s(sT0)}, {PRIV}")
    E(f"v_lshlrev_b32 v5, 2, {v(vL)}")
    E(f"v_add_u32 {v(dPW)}, {s(sT0)}, v5")
    E(f"v_and_b32 v4, 1, {v(vL)}")
    E(f"v_bfe_u32 v5, {v(vL)}, 2, 1")
    E(f"v_lshl_add_u32 v4, v5, 1, v4")
    E(f"v_lshlrev_b32 v4, 12, v4")
    E(f"v_bfe_u32 v5, {v(vL)}, 1, 1")
    E(f"v_lshl_add_u32 v4, v5, 7, v4")
    E(f"v_bfe_u32 v5, {v(vL)}, 3, 3")
    E(f"v_lshl_add_u32 v4, v5, 8, v4")
    E(f"s_and_b32 {s(sT1)}, {s(sI)}, 1")
    E(f"s_lshl_b32 {s(sT2)}, {s(sRH)}, 3")
    E(f"s_add_u32 {s(sT1)}, {s(sT1)}, {s(sT2)}")
    E(f"s_lshl_b32 {s(sT1)}, {s(sT1)}, 11")
    E(f"s_lshr_b32 {s(sT2)}, {s(sI)}, 1")
    E(f"s_lshl_b32 {s(sT2)}, {s(sT2)}, 3")
    E(f"s_add_u32 {s(sT1)}, {s(sT1)}, {s(sT2)}")
    E(f"s_add_u32 {s(sT1)}, {s(sT1)}, {GR_OFF}")
    E(f"v_add_u32 {v(vGRl)}, {s(sT1)}, v4")
    E(f"v_lshlrev_b32 v5, 4, v2")
    E(f"v_add_u32 {v(dPR)}, {s(sT0)}, v5")
    E(f"v_lshlrev_b32 v4, 20, v2")
    E(f"v_lshl_add_u32 v4, v3, 4, v4")
    E(f"s_lshl_b32 {s(sWoff2)}, {s(sI)}, 13")
    E(f"s_sub_u32 {s(sT1)}, {s(sC)}, 14")
    E(f"s_lshl_b32 {s(sT1)}, {s(sT1)}, 11")
    E(f"s_add_u32 {s(sWoff2)}, {s(sWoff2)}, {s(sT1)}")
    E(f"s_lshl_b32 {s(sT1)}, {s(sCQ)}, 9")
    E(f"s_add_u32 {s(sWoff2)}, {s(sWoff2)}, {s(sT1)}")
    E(f"s_lshl_b32 {s(sT1)}, {s(sRH)}, 12")
    E(f"s_add_u32 {s(sWoff2)}, {s(sWoff2)}, {s(sT1)}")
    E(f"s_add_u32 {s(sWoff2)}, {s(sWoff2)}, {Z_OFF}")
    E(f"s_mov_b32 {s(sK)}, {f32(math.cos(math.pi/8))}")
    E(f"s_mov_b32 {s(sK+2)}, {f32(math.sin(math.pi/8))}")
def reads(F, it, sl):
    X0, X1, G, U = F
    q = 2*(it & 1) + sl
    xo = ((it >> 1) % 3) * BLK
    ws = it % 6
    wa = v(dWB + ws // 3); wo = (ws % 3) * BLK + sl*4096
    return [f"ds_read_b128 {v(X0,4)}, {v(dXB+q)} offset:{xo}",
            f"ds_read_b64_tr_b16 {v(G,2)}, {wa} offset:{wo}",
            f"ds_read_b64_tr_b16 {v(G+2,2)}, {wa} offset:{wo+1024}",
            f"ds_read_b64_tr_b16 {v(U,2)}, {wa} offset:{wo+8192}",
            f"ds_read_b64_tr_b16 {v(U+2,2)}, {wa} offset:{wo+9216}",
            f"ds_read_b128 {v(X1,4)}, {v(dXB+q)} offset:{xo+4096}"]
def mf(F, k, first=False):
    X0, X1, G, U = F
    rb, p = k >> 1, k & 1
    A = v(acc(rb, p), 16)
    return f"v_mfma_f32_32x32x16_bf16 {A}, {v(X1 if rb else X0, 4)}, {v(U if p else G, 4)}, {0 if first else A}"
S0 = (X0a, X1a, Ga, Ua); S1 = (X0b, X1b, Gb, Ub)
E(f"s_waitcnt vmcnt({SD.wait(['W0', 'X0'])}) lgkmcnt(0)")
E("s_barrier")
stamp(2)
EL(reads(S0, 0, 0))
DGL, DGC = 8, 10
for it in range(16):
    odd = it & 1
    last = it == 15
    rd = reads(S1, it, 1)
    if it == 0: VQ += capture(late1)
    if it == N_RS:
        assert not VQ; helper_wait(1); VQ += rowstats()
    if it == N_PUB + 1: VQ += capture(late2) + capture(late_d)
    if it == DGL: assert not VQ
    if it == DGC:
        gr_check("d")
        E(f"v_and_b32 v143, {s(sMASK)}, {v(vGR)}")
        E(f"v_rcp_f32 v143, v143")
    E("s_waitcnt lgkmcnt(3)")
    E(mf(S0, 0, it == 0)); EL(rd[0:3]); fill(VBA)
    E("s_waitcnt lgkmcnt(4)")
    E(mf(S0, 1, it == 0)); EL(rd[3:6]); fill(VBA)
    E("s_waitcnt lgkmcnt(6)")
    E(mf(S0, 2, it == 0)); fill(VBA); EL(dma_slot(SD))
    E(mf(S0, 3, it == 0)); fill(VBA); EL(dma_slot(SD))
    E("s_waitcnt lgkmcnt(3)")
    E(mf(S1, 0))
    if it == DGC: E(f"ds_write_b32 {v(dPW)}, v143")
    if it == DGC + 1:
        for q in range(4):
            for rb in range(2):
                E(f"ds_read_b128 {v(RR+16*rb+4*q,4)}, {v(dPR)} offset:{128*rb+32*q}")
    if not last:
        rd = reads(S0, it + 1, 0)
        need = [f"W{it+1}"] + ([f"X{(it+1)//2}"] if odd else []) + (["G"] if it == DGC - 1 else []) + (["R"] if it == N_RS - 1 else []) + (["N"] if it == N_PUB else [])
        E(f"s_waitcnt vmcnt({SD.wait(need)}) lgkmcnt(0)")
    else:
        rd = []
        E("s_waitcnt lgkmcnt(0)")
    E("s_barrier")
    if it & 1: stamp(2 + it // 2, True)
    SD.bar = it
    EL(rd[0:3]); fill(VBA)
    E(mf(S1, 1)); EL(rd[3:6])
    if it == N_NON: nonce_load(SD)
    if it == N_PUB:
        assert not VQ, len(VQ); publish("d", SD)
    if it == DGL: gr_load(SD)
    if it != 8: touches(it)
    if it == 6: touches(8)
    fill(VBA)
    if last: EL(dma_slot(SD)); EL(dma_slot(SD))
    E(mf(S1, 2)); fill(VBA); EL(dma_slot(SD))
    E(mf(S1, 3)); fill(VBA); EL(dma_slot(SD))
assert not SD.todo
stamp(3)
E("s_setprio 1")
E(f"s_mov_b32 s78, {f32(math.sqrt(0.5))}")
E("s_nop 9")
val = {}
for rb in range(2):
    for i in range(8):
        val[i + 8*rb] = [acc(rb,0)+2*i, acc(rb,1)+2*i]
free = [FR + 2*k for k in range(16)]
def padd(d, a, b, neg=False):
    E(f"v_pk_add_f32 {v(d,2)}, {v(a,2)}, {v(b,2)}" + (" neg_lo:[0,1] neg_hi:[0,1]" if neg else ""))
def tw(k):
    return {1:(0,sK,0,sK+2), 3:(0,sK+2,0,sK), 5:(0,sK+2,1,sK), 7:(0,sK,1,sK+2), 2:(0,78,0,78), 6:(0,78,1,78)}[k]
def twiddle(grp, tmp):
    global free
    for (a, b, k) in grp:
        if k in (0, 4):
            free += val[b]; val[b] = tmp[a]
        else:
            sp, sc, nc, ss = tw(k); x, y = tmp[a]; br, bi = val[b]
            ng = f" neg_lo:[0,1] neg_hi:[0,1]" if nc else ""
            E(f"v_pk_mul_f32 {v(br,2)}, {v(x,2)}, {s(sc,2)} op_sel_hi:[1,0]{ng}")
            E(f"v_pk_mul_f32 {v(bi,2)}, {v(y,2)}, {s(sc,2)} op_sel_hi:[1,0]{ng}")
    for (a, b, k) in grp:
        if k not in (0, 4):
            sp, sc, nc, ss = tw(k); x, y = tmp[a]; br, bi = val[b]
            E(f"v_pk_fma_f32 {v(br,2)}, {v(y,2)}, {s(ss,2)}, {v(br,2)} op_sel_hi:[1,0,1]")
            E(f"v_pk_fma_f32 {v(bi,2)}, {v(x,2)}, {s(ss,2)}, {v(bi,2)} op_sel_hi:[1,0,1] neg_lo:[1,0,0] neg_hi:[1,0,0]")
            free += tmp[a]
def butterflies(grp):
    tmp = {}
    for (a, b, k) in grp:
        t = [free.pop(), free.pop()]
        tmp[a] = t
        ar, ai = val[a]; br, bi = val[b]
        if k == 4:
            padd(t[0], ai, bi, True); padd(t[1], br, ar, True)
        else:
            padd(t[0], ar, br, True); padd(t[1], ai, bi, True)
    for (a, b, k) in grp:
        ar, ai = val[a]; br, bi = val[b]
        padd(ar, ar, br); padd(ai, ai, bi)
    twiddle(grp, tmp)
for c0 in (0, 4):
    grp = [(k, k + 8, k) for k in range(c0, c0 + 4)]
    tmp = {}
    for (a, b, k) in grp:
        for p in range(2):
            E(f"v_pk_mul_f32 {v(val[a][p],2)}, {v(val[a][p],2)}, {v(RR+2*k,2)}")
    for (a, b, k) in grp:
        t = [free.pop(), free.pop()]; tmp[a] = t
        ar, ai = val[a]; br, bi = val[b]; R = v(RR+16+2*k, 2)
        if k == 4:
            E(f"v_pk_fma_f32 {v(t[0],2)}, {v(bi,2)}, {R}, {v(ai,2)} neg_lo:[1,0,0] neg_hi:[1,0,0]")
            E(f"v_pk_fma_f32 {v(t[1],2)}, {v(br,2)}, {R}, {v(ar,2)} neg_lo:[0,0,1] neg_hi:[0,0,1]")
        else:
            E(f"v_pk_fma_f32 {v(t[0],2)}, {v(br,2)}, {R}, {v(ar,2)} neg_lo:[1,0,0] neg_hi:[1,0,0]")
            E(f"v_pk_fma_f32 {v(t[1],2)}, {v(bi,2)}, {R}, {v(ai,2)} neg_lo:[1,0,0] neg_hi:[1,0,0]")
    for (a, b, k) in grp:
        ar, ai = val[a]; br, bi = val[b]; R = v(RR+16+2*k, 2)
        E(f"v_pk_fma_f32 {v(ar,2)}, {v(br,2)}, {R}, {v(ar,2)}")
        E(f"v_pk_fma_f32 {v(ai,2)}, {v(bi,2)}, {R}, {v(ai,2)}")
    twiddle(grp, tmp)
OB = RR
def brev(x): return int(f"{x:04b}"[::-1], 2)
for hb in (0, 8):
    butterflies([(hb + k, hb + k + 4, 2*k) for k in range(4)])
    butterflies([(hb + 4*g + k, hb + 4*g + k + 2, 4*k) for g in range(2) for k in range(2)])
    for qb in (0, 4):
        butterflies([(hb + qb + 2*g, hb + qb + 2*g + 1, 0) for g in range(2)])
        outs = []
        for g in range(2):
            p = hb + qb + 2*g; r = brev(p)
            o = OB + 4*(p >> 1)
            outs.append((r, o))
            for u in range(2):
                re, im = val[p + u]
                E(f"v_cvt_pk_bf16_f32 {v(o+u)}, {v(re)}, {v(re+1)}")
                E(f"v_cvt_pk_bf16_f32 {v(o+2+u)}, {v(im)}, {v(im+1)}")
        for r, o in outs:
            E(f"s_add_u32 {s(sT2 + (o >> 2 & 1))}, {s(sWoff2)}, {r*16*8192}")
        for r, o in outs:
            E(f"v_permlane32_swap_b32 {v(o)}, {v(o+1)}")
            E(f"v_permlane32_swap_b32 {v(o+2)}, {v(o+3)}")
        E(f"buffer_store_dwordx4 {v(outs[0][1],4)}, v4, {s(sWS,4)}, {s(sT2 + (outs[0][1] >> 2 & 1))} offen sc1")
        E(f"buffer_store_dwordx4 {v(outs[1][1],4)}, v4, {s(sWS,4)}, {s(sT2 + (outs[1][1] >> 2 & 1))} offen sc1")
stamp(1)
E("s_waitcnt vmcnt(8)")

E("L_p2:")
stamp(4)
p2head()
vOUT = 7
def out_addr():
    E(f"v_bfe_u32 v2, v0, 3, 5")
    E(f"v_lshrrev_b32 v3, 8, v0")
    E(f"v_lshlrev_b32 {v(vOUT)}, 14, v2")
    E(f"v_lshl_add_u32 {v(vOUT)}, v3, 20, {v(vOUT)}")
    E(f"v_and_b32 v3, 7, v0")
    E(f"v_lshl_add_u32 {v(vOUT)}, v3, 4, {v(vOUT)}")
def poll(tag, vFO, soff, vD, first_loaded=False):
    E(f"s_mov_b32 {s(sSP)}, 0")
    if first_loaded: E(f"s_branch L_pollc{tag}")
    E(f"L_poll{tag}:")
    E(f"buffer_load_dwordx2 {v(vD,2)}, {v(vFO)}, {s(sWS,4)}, {soff} offen sc1")
    E(f"s_add_u32 {s(sSP)}, {s(sSP)}, 1")
    E("s_waitcnt vmcnt(0)")
    E(f"L_pollc{tag}:")
    E(f"v_cmp_ne_u64 vcc, {v(vD,2)}, {v(vNON,2)}")
    E(f"s_cmp_ge_u32 {s(sSP)}, {SPIN}")
    E(f"s_cbranch_scc1 L_polled{tag}")
    E(f"s_cbranch_vccz L_polled{tag}")
    E(f"s_sleep {opt('sleepd', 2) if tag == 'd' else opt('sleep', 2)}")
    E(f"s_branch L_poll{tag}")
    E(f"L_polled{tag}:")
def acc2(tb, cb): return vACC + (tb*2+cb)*16

E(f"s_cmp_eq_u32 {s(sW)}, 7")
E("s_cbranch_scc1 L_p2_dft")
for k in range(7): trreads(k)
p2addr()
def ldh(k, B):
    E(f"buffer_load_dwordx4 {v(B,4)}, v6, {s(sWS,4)}, {s(sK + (k >> 2))} offen offset:{(k&3)*1024} sc1")
    E(f"buffer_load_dwordx4 {v(B+4,4)}, v5, {s(sWS,4)}, {s(sK + (k >> 2))} offen offset:{(k&3)*1024} sc1")
NR = opt("nr", 7)
HD = 15
def stream(H0, HS, rf0):
    q = []
    def h(k): ldh(k, 136 + 8*(k % HD)); q.extend([f"h{k}"]*2)
    def need(tags):
        idx = [i for i, t in enumerate(q) if t in tags]
        return len(q) - 1 - max(idx) if idx else None
    issued = 0; rf = rf0
    for k in range(H0):
        h(k); issued += 1
    for k in range(16):
        if k == 0 and rf0 == 16: out_addr()
        w = need([f"h{k}"] + ([f"r{k+7}"] if k + 7 < 16 else []))
        E(f"s_waitcnt vmcnt({w})" + (f" lgkmcnt({min(15, 4*(min(k + 6, 15) - k))})" if k >= 7 else ""))
        for tb in range(2):
            for cb in range(2):
                A = v(acc2(tb, cb), 16)
                E(f"v_mfma_f32_32x32x16_bf16 {A}, {v(wreg(k,cb),4)}, {v(136 + 8*(k % HD) + 4*tb,4)}, {A if k else 0}")
        if k + 7 < 16:
            assert k + 7 < rf
            trreads(k + 7)
        for _ in range(2):
            if rf < 16:
                refill(rf, rf + 1); q.extend([f"r{rf}"]*2); rf += 1
                if rf == 16: out_addr()
        for _ in range(HS):
            if issued < 16:
                h(issued); issued += 1
        if k == 9:
            assert issued == 16 and rf == 16
            E(f"buffer_load_dwordx4 v[12:15], {v(vOUT)}, {s(sX0,4)}, {s(sT3)} offen"); q.append("x")
    E("s_branch L_red")
E("s_waitcnt lgkmcnt(0)")
NY = opt("ny", 4)
refill(9, 9 + NY)
E(f"s_waitcnt vmcnt({2*NY})")
arrive1(1, 2)
E("s_waitcnt lgkmcnt(0)")
arrive2(2)
stamp(5)
E(f"s_setprio {opt('yp', 0)}")
refill(9 + NY, 16)
poll("a", vFAo, "0", vFA)
stamp(6)
stream(opt("h0", 6), opt("hs", 3), 16)

E("L_p2_dft:")
out_addr()
E(f"v_and_b32 v2, 31, {v(vL)}")
E(f"v_lshrrev_b32 v3, 5, {v(vL)}")
E(f"v_lshlrev_b32 v11, 7, v2")
E(f"v_add_u32 v11, {FL_OFF}, v11")
E(f"s_lshl_b32 {s(sT0)}, {s(sCT)}, 6")
E(f"s_cmp_ge_u32 {s(sCT)}, 4")
E("s_cbranch_scc1 L_direct")
E(f"s_sub_u32 {s(sT0)}, 256, {s(sT0)}")
E(f"v_sub_u32 v2, {s(sT0)}, v2")
E(f"v_lshlrev_b32 v6, 4, v2")
E(f"v_lshl_add_u32 v6, v3, 12, v6")
E(f"v_subrev_u32 v10, 512, v6")
E(f"s_sub_u32 {s(sT1)}, 16, {s(sR)}")
E(f"s_and_b32 {s(sT1)}, {s(sT1)}, 15")
E("s_branch L_dft2")
E("L_direct:")
E(f"s_sub_u32 {s(sT0)}, {s(sT0)}, 256")
E(f"v_add_u32 v2, {s(sT0)}, v2")
E(f"v_lshlrev_b32 v6, 4, v2")
E(f"v_lshl_add_u32 v6, v3, 12, v6")
E(f"v_add_u32 v10, 512, v6")
E(f"s_mov_b32 {s(sT1)}, {s(sR)}")
E("L_dft2:")
twphase()
twgen(4*TWN, 16)
E("s_waitcnt vmcnt(0)")
arrive1(1, 4)
E("s_waitcnt lgkmcnt(0)")
arrive2(4)
stamp(5)
E(f"s_cmp_eq_u32 {s(sDFT)}, 0")
E("s_cbranch_scc1 L_havetw")
E("s_setprio 0")
twgen(0, 4*TWN)
E("L_havetw:")
E(f"s_lshl_b32 {s(sT0)}, {s(sT1)}, 17")
E(f"s_add_u32 {s(sT0)}, {s(sT0)}, {Z_OFF}")
poll("d", 11, "0", 2)
if not flag("noprio"): E(f"s_setprio {opt('w7p', 1)}")
stamp(6)
ZD = 14
def ldz(B):
    E(f"buffer_load_dwordx4 {v(B,4)}, v6, {s(sWS,4)}, {s(sT0)} offen sc1")
    E(f"buffer_load_dwordx4 {v(B+4,4)}, v10, {s(sWS,4)}, {s(sT0)} offen sc1")
    E(f"s_add_u32 {s(sT0)}, {s(sT0)}, 8192")
for j in range(ZD): ldz(80 + 8*j)
issued = ZD; xl = 0
for j in range(16):
    B = 80 + 8*(j % ZD)
    E(f"s_waitcnt vmcnt({2*(issued - j - 1) + xl})")
    for cb in range(2):
        A = v(acc2(j & 1, cb), 16)
        E(f"v_mfma_f32_32x32x16_bf16 {A}, {v(B+4*cb,4)}, {v(TW+4*j,4)}, {A if j > 1 else 0}")
    if issued < 16:
        ldz(B); issued += 1
        if issued == 16:
            E(f"buffer_load_dwordx4 v[12:15], {v(vOUT)}, {s(sX0,4)}, {s(sT3)} offen"); xl = 1
E("s_nop 11")
for r in range(32):
    E(f"v_sub_f32 {v(acc2(1,0)+r)}, {v(acc2(0,0)+r)}, {v(acc2(1,0)+r)}")
for r in range(32):
    E(f"v_fma_f32 {v(acc2(0,0)+r)}, {v(acc2(0,0)+r)}, 2.0, -{v(acc2(1,0)+r)}")

E("L_red:")
stamp(7)
HB = 80
E(f"v_bfe_u32 v2, {v(vL)}, 2, 3")
E(f"v_lshlrev_b32 v2, 13, v2")
E(f"v_and_b32 v3, 3, {v(vL)}")
E(f"v_lshl_add_u32 v2, v3, 8, v2")
E(f"v_lshrrev_b32 v3, 5, {v(vL)}")
E(f"v_and_b32 v4, 7, {v(vL)}")
E(f"v_xor_b32 v3, v3, v4")
E(f"v_lshl_add_u32 v2, v3, 4, v2")
E(f"v_add_u32 {v(HB)}, {s(sWd)}, v2")
for q in range(1, 4): E(f"v_xor_b32 {v(HB+q)}, {32*q}, {v(HB)}")
for q in range(4): E(f"v_add_u32 {v(HB+4+q)}, {8*Q}, {v(HB+q)}")
for tb in range(2):
    for cb in range(2):
        for q in range(4):
            E(f"ds_write_b128 {v(HB+4*tb+q)}, {v(acc2(tb,cb)+4*q,4)} offset:{cb*128}")
E(f"v_lshrrev_b32 v2, 3, v0")
E(f"v_and_b32 v3, 7, v0")
E(f"v_lshlrev_b32 v9, 1, v3")
E(f"v_and_b32 v10, 7, v2")
E(f"v_xor_b32 v9, v9, v10")
E(f"v_lshlrev_b32 v9, 4, v9")
E(f"v_and_b32 v10, 3, v2")
E(f"v_lshl_add_u32 v9, v10, 8, v9")
E(f"v_lshrrev_b32 v10, 2, v2")
E(f"v_lshl_add_u32 v9, v10, 13, v9")
E(f"v_xor_b32 v10, 16, v9")
E(f"v_or_b32 v3, {s(sCT)}, v3")
E(f"v_cmp_ne_u32 vcc, 0, v3")
E(f"s_mov_b32 {s(sK)}, {f32(-math.log2(math.e))}")
E("s_waitcnt lgkmcnt(0)")
E("s_barrier")
stamp(8)
RD = 128
for w in range(8):
    E(f"ds_read_b128 {v(RD+8*w,4)}, v9 offset:{w*1024}")
    E(f"ds_read_b128 {v(RD+8*w+4,4)}, v10 offset:{w*1024}")
def sum8(d, a):
    for k in range(4):
        E(f"v_pk_add_f32 {v(RD+8*d+2*k,2)}, {v(RD+8*d+2*k,2)}, {v(RD+8*a+2*k,2)}")
E("s_waitcnt lgkmcnt(12)"); sum8(0, 1)
E("s_waitcnt lgkmcnt(8)"); sum8(2, 3)
E("s_waitcnt lgkmcnt(4)"); sum8(4, 5); sum8(0, 2)
E("s_waitcnt lgkmcnt(2)"); sum8(4, 6); sum8(0, 4)
T = vACC
for k in range(4):
    E(f"v_pk_mul_f32 {v(T+2*k,2)}, {v(RD+2*k,2)}, {s(sK,2)} op_sel_hi:[1,0]")
for k in range(8):
    E(f"v_exp_f32 {v(T+k)}, {v(T+k)}")
E("s_nop 0")
for k in range(4):
    E(f"v_pk_add_f32 {v(T+2*k,2)}, {v(T+2*k,2)}, 1.0 op_sel_hi:[1,0]")
for k in range(8):
    E(f"v_rcp_f32 {v(T+k)}, {v(T+k)}")
E("s_waitcnt vmcnt(0) lgkmcnt(0)")
E(f"v_cndmask_b32 {v(RD+56)}, 0, {v(RD+56)}, vcc")
for k in range(4):
    E(f"v_lshlrev_b32 {v(T+8+2*k)}, 16, v{12+k}")
    E(f"v_and_b32 {v(T+9+2*k)}, {s(sMASK)}, v{12+k}")
for k in range(4):
    E(f"v_pk_mul_f32 {v(T+2*k,2)}, {v(T+2*k,2)}, {v(RD+2*k,2)}")
for k in range(4):
    E(f"v_pk_fma_f32 {v(T+2*k,2)}, {v(T+2*k,2)}, {v(RD+56+2*k,2)}, {v(T+8+2*k,2)}")
for k in range(4):
    E(f"v_cvt_pk_bf16_f32 v{12+k}, {v(T+2*k)}, {v(T+2*k+1)}")
E(f"buffer_store_dwordx4 v[12:15], {v(vOUT)}, {s(sX1,4)}, {s(sT3)} offen" + (" sc1" if flag("outsc1") else "") + (" nt" if flag("outnt") else ""))
if STAMP:
    E("s_waitcnt vmcnt(0)")
    stamp(9)
    E("s_waitcnt lgkmcnt(0)")
    E(f"s_lshl_b32 s78, s2, 3")
    E(f"s_add_u32 s78, s78, {s(sW)}")
    E(f"s_lshl_b32 s78, s78, 6")
    E(f"s_add_u32 s78, s78, {STAMP_OFF}")
    E(f"s_mov_b32 {s(sWS+2)}, 0x2000000")
    for k in range(12):
        E(f"v_mov_b32 {v(200+k)}, s{80+2*min(k,NST-1)}")
    E(f"v_mov_b32 v212, 0")
    E("s_mov_b64 exec, 1")
    for k in range(3):
        E(f"buffer_store_dwordx4 {v(200+4*k,4)}, v212, {s(sWS,4)}, s78 offen offset:{16*k}")
E("L_end:")
E("s_endpgm")
EL(SLOW)

E('.section .rodata,"a"')
E(".p2align 6")
E(f""".amdhsa_kernel {KNAME}
.amdhsa_next_free_vgpr 256
.amdhsa_next_free_sgpr 102
.amdhsa_accum_offset 256
.amdhsa_group_segment_fixed_size 0
.amdhsa_kernarg_size 96
.amdhsa_user_sgpr_count 2
.amdhsa_user_sgpr_kernarg_segment_ptr 1
.amdhsa_system_sgpr_workgroup_id_x 1
.end_amdhsa_kernel""")
if flag("align"):
    L2 = []
    for x in L:
        if x.strip().startswith(("v_mfma", "ds_read", "buffer_load")): L2.append(".p2align 3, , 4" if False else ".p2alignl 3, 0xbf800000")
        L2.append(x)
    L = L2
open(OUT, "w").write("\n".join(L) + "\n")
if flag("v"): print(I0.issued, I1.issued)
```

```python
import sys, math, struct

ARGS = sys.argv[1:]
def flag(n): return ("--" + n) in ARGS
def opt(n, d):
    for a in ARGS:
        if a.startswith("--" + n + "="): return int(a.split("=")[1])
    return d
def lopt(n, d):
    for a in ARGS:
        if a.startswith("--" + n + "="): return [int(x) for x in a.split("=")[1].split(",")]
    return d
STAMP = flag("stamp")
OUT = [a for a in ARGS if not a.startswith("--")][0]
KNAME = "recurrent_scan__spectral_fnet__geglu_ffn__prompt_kernel"

A_RB = 112 * 1024
Z_OFF = 0x700000
GR_OFF = 0x912000
FL_OFF = 0x920000
WP_OFF = 0xA00000
WS_SIZE = 0xC00000
STAMP_OFF = 0x1800000
SPIN = 1 << 16

L = []
def E(s=""):
    for line in s.split("\n"):
        if not line.strip(): continue
        L.append(line if line.endswith(":") or line.startswith(".") or line.startswith(";") else "    " + line.strip())
def EL(l):
    for x in l: E(x)
def f32(x): return "0x%08x" % struct.unpack("<I", struct.pack("<f", x))[0]
def v(a, n=1): return f"v{a}" if n == 1 else f"v[{a}:{a+n-1}]"
def s(a, n=1): return f"s{a}" if n == 1 else f"s[{a}:{a+n-1}]"
NST = 10
def stamp(k, loop=False):
    if flag("itstamp"):
        if k == 2 and not loop: k = 1
        elif k == 0: pass
        elif not loop: return
    elif loop: return
    if STAMP: E(f"s_mem{'' if flag('cyc') else 'real'}time s[{80+2*k}:{81+2*k}]")
_lab = [0]
def newlab(p):
    _lab[0] += 1
    return f"L_{p}{_lab[0]}"
def capture(fn):
    n0 = len(L); fn(); lines = [x.strip() for x in L[n0:]]; del L[n0:]
    out = []
    for x in lines:
        if out and x.startswith(("s_cselect", "s_addc")): out[-1] += "\n" + x
        else: out.append(x)
    return out

HEADER = open("recurrent_scan__spectral_fnet__geglu_ffn__prompt.s.ref").read().split("; Override")[0]
E(HEADER.rstrip())
E("; @launch grid=(256,1,1) block=(512,1,1) lds=163840")
E(open("design.txt").read())
E('.amdgcn_target "amdgcn-amd-amdhsa--gfx950"')
E(".text")

Q = 8192
BLK = 16384
XRING = 6 * BLK
MISC = 9 * BLK
CNT = MISC
CS_OFF = MISC + 4096
PRIV = MISC + 8192

sNA = 3
sX0, sX1, sG, sU, sWS = 4, 8, 12, 16, 20
sWD = 40
(sI, sC, sW, sWP, sWlim, sWoff, sZO, sFL, sXoff, sWd, sFLp, sCB, sRS, sP, sRH, sCQ, sT0, sT1, sMASK, sDFT,
 sRT, sCT, sR, sT2, sT3, sSP) = range(48, 74)
sK = 74
sTAG = 34; sPB = 36; sPD = 12
sH0, sH1 = 74, 75
vL = 1; vOUT = 7; vNON = 14; vACC = 16
vGR = 146; vXo = 160; vWo = 164; vZERO = 166; vFAo = 170; vGRl = 171; vFA = 172; vFPo = 174
vTA = 188; vFP = 190
def wreg(k, cb=0): return (192 + 8*k if k < 8 else 80 + 8*(k - 8)) + 4*cb
HA = 144

def srd(d, lo, size):
    E(f"s_mov_b32 {s(d)}, s{lo}\ns_mov_b32 {s(d+1)}, s{lo+1}\ns_mov_b32 {s(d+2)}, {size}\ns_mov_b32 {s(d+3)}, 0x20000")

E(f".globl {KNAME}\n.p2align 8\n.type {KNAME},@function\n{KNAME}:")
E("s_cmp_ge_u32 s2, 256")
E("s_cbranch_scc1 L_end")
stamp(0)
E("s_load_dwordx16 s[32:47], s[0:1], 0")
E("s_load_dwordx2 s[28:29], s[0:1], 64")
E("s_load_dwordx2 s[26:27], s[0:1], 72")
E("s_load_dwordx2 s[24:25], s[0:1], 80")
E("s_load_dwordx2 s[30:31], s[0:1], 88")
E("s_memrealtime s[78:79]")
E(f"v_lshrrev_b32 v2, 6, v0")
E(f"v_and_b32 {v(vL)}, 63, v0")
E(f"v_readfirstlane_b32 {s(sW)}, v2")
E("s_getpc_b64 s[4:5]")
E("L_pc:")
E(f"s_cmp_lg_u32 {s(sW)}, 2")
E("s_cbranch_scc1 L_nct")
E("s_and_b32 s6, s2, 0xf8")
E("v_and_b32 v2, 7, v0")
E("v_add_u32 v2, s6, v2")
E("v_lshlrev_b32 v2, 7, v2")
E("v_min_u32 v2, L_end-L_pc, v2")
E(f"global_load_dword {v(vTA+1)}, v2, s[4:5]")
E("L_nct:")
E(f"s_and_b32 {s(sT0)}, s2, 3")
E(f"s_lshl_b32 {s(sT0)}, {s(sT0)}, 2")
E(f"s_bfe_u32 {s(sI)}, s2, 0x20003")
E(f"s_add_u32 {s(sI)}, {s(sI)}, {s(sT0)}")
E(f"s_bfe_u32 {s(sT0)}, s2, 0x10002")
E(f"s_lshr_b32 {s(sT1)}, s2, 5")
E(f"s_mul_i32 {s(sC)}, {s(sT0)}, 7")
E(f"s_add_u32 {s(sC)}, {s(sC)}, {s(sT1)}")
E(f"s_sub_u32 {s(sC)}, {s(sC)}, 1")
E(f"s_add_u32 {s(sT0)}, {s(sT0)}, 14")
E(f"s_cmp_eq_u32 {s(sT1)}, 0")
E(f"s_cselect_b32 {s(sC)}, {s(sT0)}, {s(sC)}")
E(f"s_cselect_b32 {s(sDFT)}, 1, 0")
E(f"s_cselect_b32 {s(sRS)}, 2, 7")
E(f"s_lshl_b32 {s(sRS)}, {s(sRS)}, 9")
E(f"s_lshl_b32 {s(sWlim)}, {s(sRS)}, 9")
E(f"s_lshr_b32 {s(sRH)}, {s(sW)}, 2")
E(f"s_and_b32 {s(sCQ)}, {s(sW)}, 3")
E(f"s_lshl_b32 {s(sWd)}, {s(sCQ)}, 10")
E(f"v_bfe_u32 v2, v0, 3, 5")
E(f"v_bfe_u32 v3, v2, 1, 3")
E(f"v_and_b32 v4, 7, {v(vL)}")
E(f"v_xor_b32 v3, v3, v4")
E(f"v_lshlrev_b32 v3, 4, v3")
E(f"s_lshl_b32 {s(sCB)}, {s(sC)}, 8")
E(f"s_cmp_eq_u32 {s(sDFT)}, 1")
E("s_cbranch_scc1 L_rows_dft")
E(f"v_mul_lo_u32 v5, v2, {s(sRS)}")
E(f"v_bfe_u32 v6, {v(vL)}, 4, 1")
E(f"v_lshlrev_b32 v6, 2, v6")
E(f"v_xor_b32 v6, v6, v4")
E(f"v_lshlrev_b32 {v(vWo+1)}, 4, v6")
E(f"v_add3_u32 {v(vWo)}, v5, {v(vWo+1)}, {s(sCB)}")
E(f"v_lshlrev_b32 v2, 4, v2")
E(f"v_add_u32 v2, {s(sI)}, v2")
E(f"s_mov_b32 {s(sT0)}, {512*1024}")
E(f"s_mov_b32 {s(sT1)}, {1024*1024}")
E("s_branch L_rows_done")
E("L_rows_dft:")
E(f"s_sub_u32 {s(sCB)}, {s(sCB)}, {14*256 - 512}")
E(f"v_lshrrev_b32 v5, 4, v0")
E(f"v_and_b32 v6, 3, v5")
E(f"v_lshlrev_b32 v6, 2, v6")
E(f"v_and_b32 v4, 15, {v(vL)}")
E(f"v_xor_b32 v6, v6, v4")
E(f"v_lshlrev_b32 v6, 4, v6")
E(f"v_lshlrev_b32 v5, 10, v5")
E(f"v_add3_u32 {v(vWo)}, v5, v6, {s(sCB)}")
E(f"v_add_u32 {v(vWo+1)}, {16*1024}, {v(vWo)}")
E("v_and_b32 v4, 1, v2")
E("v_lshlrev_b32 v4, 1, v4")
E("v_and_or_b32 v4, v2, 4, v4")
E("v_bfe_u32 v5, v2, 1, 1")
E("v_lshl_add_u32 v4, v5, 7, v4")
E("v_bfe_u32 v5, v2, 3, 2")
E("v_lshl_add_u32 v4, v5, 8, v4")
E(f"s_lshr_b32 {s(sT1)}, {s(sI)}, 1")
E(f"s_lshl_b32 {s(sT1)}, {s(sT1)}, 4")
E(f"s_and_b32 {s(sT0)}, {s(sI)}, 1")
E(f"s_add_u32 {s(sT1)}, {s(sT1)}, {s(sT0)}")
E(f"v_add_u32 v2, {s(sT1)}, v4")
E(f"s_mov_b32 {s(sT0)}, {1024*1024}")
E(f"s_mov_b32 {s(sT1)}, {8*1024}")
E("L_rows_done:")
E(f"v_lshl_add_u32 {v(vXo)}, v2, 10, v3")
E(f"v_add_u32 {v(vXo+1)}, {s(sT0)}, {v(vXo)}")
E(f"v_add_u32 {v(vXo+2)}, {s(sT1)}, {v(vXo)}")
E(f"v_add_u32 {v(vXo+3)}, {s(sT1)}, {v(vXo+1)}")
E("s_waitcnt lgkmcnt(0)")
srd(sX0, 32, 2048*1024)
E(f"s_cmp_eq_u32 {s(sDFT)}, 1")
E(f"s_cselect_b32 {s(sG)}, s38, s44\ns_cselect_b32 {s(sG+1)}, s39, s45")
E(f"s_cselect_b32 {s(sU)}, s40, s46\ns_cselect_b32 {s(sU+1)}, s41, s47")
E(f"s_mov_b32 {s(sG+2)}, {s(sWlim)}\ns_mov_b32 {s(sG+3)}, 0x20000")
E(f"s_mov_b32 {s(sU+2)}, {s(sWlim)}\ns_mov_b32 {s(sU+3)}, 0x20000")
E(f"s_mov_b32 vcc_lo, {s(sRH)}")
E(f"s_mov_b32 vcc_hi, 0")
E("s_cmp_ge_u32 s2, 8")
E("s_cbranch_scc1 L_nononce")
E(f"s_cmp_lg_u32 {s(sW)}, 7")
E("s_cbranch_scc1 L_nononce")
E("s_or_b32 s78, s78, 1")
E("v_mov_b32 v2, s78\nv_mov_b32 v3, s79\nv_mov_b32 v4, 0\nv_mov_b32 v5, 0")
E("s_mov_b64 exec, 1")
E("global_atomic_cmpswap_x2 v4, v[2:5], s[24:25] sc1")
E("s_mov_b64 exec, -1")
E("s_nop 0")
E("L_nononce:")
E(f"s_cmp_eq_u32 {s(sDFT)}, 1")
E("s_cbranch_scc1 L_dft")

class Log:
    def __init__(self): self.issued = []
    def wait(self, need):
        idx = [i for i, o in enumerate(self.issued) if o in need]
        return len(self.issued) - 1 - max(idx) if idx else None
class Lgkm:
    def __init__(self): self.q = []
    def op(self, text, tag):
        E(text); self.q.append(tag)
    def wait(self, need, extra=""):
        idx = [i for i, t in enumerate(self.q) if t in need]
        n = 0 if need == "all" else (len(self.q) - 1 - max(idx) if idx else None)
        if n is None: return
        n = min(n, 15)
        E(f"s_waitcnt {extra}lgkmcnt({n})")
        self.q = self.q[len(self.q)-n:] if n else []
def dma(pre, dst, ld):
    m0 = f"s_add_u32 m0, {s(sWd)}, {dst}" if dst else f"s_mov_b32 m0, {s(sWd)}"
    return [m0, pre or "s_nop 0", ld]
def weave(groups, log, other):
    nd, no, j = len(groups), len(other), 0
    def put(x):
        E(x)
        if x.startswith("buffer_store"): log.issued.append("S")
    for d, (lines, tag) in enumerate(groups):
        EL(lines); log.issued.append(tag)
        while j < (d + 1)*no // nd: put(other[j]); j += 1
    while j < no: put(other[j]); j += 1
VQ = []
def cost(x): return 2 if x.split()[0] in ("v_exp_f32", "v_rcp_f32", "v_sqrt_f32") else 1
def fill(budget):
    while VQ and budget >= cost(VQ[0]):
        x = VQ.pop(0); budget -= cost(x); E(x)
def finalize(vS, vQ, vM, vSD, vT):
    return [f"v_mul_f32 {v(vM)}, {f32(1/512)}, {v(vS)}",
            f"v_mul_f32 {v(vSD)}, {f32(1/512)}, {v(vQ)}",
            f"v_fma_f32 {v(vSD)}, -{v(vM)}, {v(vM)}, {v(vSD)}",
            f"v_max_f32 {v(vSD)}, 0, {v(vSD)}",
            f"v_cvt_pk_bf16_f32 {v(vT)}, {v(vM)}, {v(vSD)}",
            f"v_lshlrev_b32 {v(vM)}, 16, {v(vT)}",
            f"v_and_b32 {v(vSD)}, {s(sMASK)}, {v(vT)}",
            f"v_add_f32 {v(vSD)}, {f32(1e-5)}, {v(vSD)}",
            f"v_cvt_pk_bf16_f32 {v(vT)}, {v(vSD)}, {v(vSD)}",
            f"v_and_b32 {v(vSD)}, {s(sMASK)}, {v(vT)}",
            f"v_sqrt_f32 {v(vSD)}, {v(vSD)}",
            "s_nop 0",
            f"v_cvt_pk_bf16_f32 {v(vT)}, {v(vSD)}, {v(vSD)}",
            f"v_and_b32 {v(vSD)}, {s(sMASK)}, {v(vT)}"]
def rowstats(B, n):
    o = []
    U = B + n; S = U + 2*n
    for r in range(n):
        o += [f"v_lshlrev_b32 v{U+2*r}, 16, v{B+r}", f"v_and_b32 v{U+2*r+1}, {s(sMASK)}, v{B+r}"]
    o += [f"v_add_f32 v{S}, v{U}, v{U+2}", f"v_mul_f32 v{S+1}, v{U}, v{U}", f"v_add_f32 v{S+2}, v{U+1}, v{U+3}", f"v_mul_f32 v{S+3}, v{U+1}, v{U+1}"]
    for r in range(2, n): o += [f"v_add_f32 v{S}, v{S}, v{U+2*r}", f"v_add_f32 v{S+2}, v{S+2}, v{U+2*r+1}"]
    for r in range(1, n): o += [f"v_fmac_f32 v{S+1}, v{U+2*r}, v{U+2*r}", f"v_fmac_f32 v{S+3}, v{U+2*r+1}, v{U+2*r+1}"]
    o += [f"v_add_f32 v{S}, v{S}, v{S+2}", f"v_add_f32 v{S+1}, v{S+1}, v{S+3}", "s_nop 0"]
    ctls = ["row_shr:1 row_mask:0xf bank_mask:0xf bound_ctrl:0", "row_shr:2 row_mask:0xf bank_mask:0xf bound_ctrl:0",
            "row_shr:4 row_mask:0xf bank_mask:0xf bound_ctrl:0", "row_shr:8 row_mask:0xf bank_mask:0xf bound_ctrl:0",
            "row_bcast:15 row_mask:0xa bank_mask:0xf", "row_bcast:31 row_mask:0xc bank_mask:0xf"]
    for ctl in ctls[:6 if n == 4 else 5]:
        o += [f"v_add_f32_dpp v{S}, v{S}, v{S} {ctl}", f"v_add_f32_dpp v{S+1}, v{S+1}, v{S+1} {ctl}", "s_nop 0"]
    o.pop()
    o += finalize(S, S+1, S+2, S+3, S+4)
    o += [f"v_lshrrev_b32 v{S+2}, 16, v{S+2}", f"v_or_b32 {v(vGR)}, v{S+2}, v{S+3}"]
    return o
def late():
    srd(sWS, 30, WS_SIZE)
    E(f"s_mov_b32 {s(sMASK)}, 0xffff0000")
    E(f"s_lshl_b32 {s(sT3)}, {s(sI)}, 4")
    E(f"s_add_u32 {s(sT3)}, {s(sT3)}, {s(sC)}")
    E(f"s_lshl_b32 {s(sT3)}, {s(sT3)}, 7")
    E(f"s_add_u32 {s(sT3)}, {s(sT3)}, {GR_OFF}")
    E(f"s_bfe_u32 {s(sCT)}, s2, 0x30003")
    E(f"s_and_b32 {s(sRT)}, s2, 7")
    E(f"s_lshl_b32 {s(sRT)}, {s(sRT)}, 2")
    E(f"s_lshr_b32 {s(sT1)}, s2, 6")
    E(f"s_add_u32 {s(sRT)}, {s(sRT)}, {s(sT1)}")
    E(f"s_lshr_b32 {s(sR)}, {s(sRT)}, 1")
    E(f"s_mul_i32 {s(sT0)}, {s(sCT)}, 7")
    E(f"s_add_u32 {s(sT0)}, {s(sT0)}, {s(sW)}")
    E(f"s_lshl_b32 {s(sWP)}, {s(sT0)}, 15")
    E(f"s_add_u32 {s(sWP)}, {s(sWP)}, {WP_OFF}")
    E(f"s_lshl_b32 {s(sT0)}, {s(sT0)}, 9")
    E(f"s_add_u32 {s(sT0)}, {s(sT0)}, {FL_OFF + 480*128}")
    E(f"v_and_b32 v4, 3, {v(vL)}")
    E(f"v_lshlrev_b32 v4, 7, v4")
    E(f"v_add_u32 {v(vFPo)}, {s(sT0)}, v4")
    E(f"s_mul_i32 {s(sT0)}, {s(sR)}, {28*128}")
    E(f"s_lshl_b32 {s(sT1)}, {s(sW)}, 9")
    E(f"s_add_u32 {s(sT0)}, {s(sT0)}, {s(sT1)}")
    E(f"s_add_u32 {s(sT0)}, {s(sT0)}, {FL_OFF + 32*128}")
    E(f"s_add_u32 {s(sPB)}, s30, {s(sT0)}")
    E(f"s_addc_u32 {s(sPB+1)}, s31, 0")
    E(f"v_lshlrev_b32 v6, 4, {v(vL)}")
SLOW = []
def nonce_load(log):
    E(f"global_load_dwordx2 {v(vNON,2)}, {v(vZERO)}, s[24:25] sc1"); log.issued.append("N")
def nonce_check():
    back, slow, again = newlab("nb"), newlab("ns"), newlab("ns")
    E(f"v_readfirstlane_b32 {s(sP)}, {v(vNON)}")
    E(f"s_cmp_eq_u32 {s(sP)}, 0")
    E(f"s_cbranch_scc1 {slow}")
    E(f"{back}:")
    E(f"v_readfirstlane_b32 {s(sTAG)}, {v(vNON)}")
    E(f"v_readfirstlane_b32 {s(sTAG+1)}, {v(vNON+1)}")
    SLOW.extend([f"{slow}:", f"s_mov_b32 {s(sSP)}, 0", f"{again}:",
                 f"global_load_dwordx2 {v(vNON,2)}, {v(vZERO)}, s[24:25] sc1", f"s_add_u32 {s(sSP)}, {s(sSP)}, 1",
                 "s_waitcnt vmcnt(0)", f"v_readfirstlane_b32 {s(sP)}, {v(vNON)}",
                 f"s_cmp_ge_u32 {s(sSP)}, {SPIN}", f"s_cbranch_scc1 {back}",
                 f"s_cmp_eq_u32 {s(sP)}, 0", f"s_cbranch_scc1 {again}", f"s_branch {back}"])
def tag_load(vD, vO, log, tag):
    E(f"buffer_load_dwordx2 {v(vD,2)}, {v(vO)}, {s(sWS,4)}, 0 offen sc1"); log.issued.append(tag)
def tag_check(vD, vO, wide):
    back, slow, again = newlab("tb"), newlab("ts"), newlab("ts")
    cmp = f"v_cmp_ne_u64 s[78:79], {v(vD,2)}, {v(vNON,2)}" if wide else f"v_cmp_ne_u32 s[78:79], {v(vD+1)}, {v(vNON)}"
    E(cmp)
    E("s_cmp_lg_u64 s[78:79], 0")
    E(f"s_cbranch_scc1 {slow}")
    E(f"{back}:")
    SLOW.extend([f"{slow}:", f"s_mov_b32 {s(sSP)}, 0", f"{again}:", f"s_sleep {opt('sleep', 2)}",
                 f"buffer_load_dwordx2 {v(vD,2)}, {v(vO)}, {s(sWS,4)}, 0 offen sc1", f"s_add_u32 {s(sSP)}, {s(sSP)}, 1",
                 "s_waitcnt vmcnt(0)", cmp,
                 f"s_cmp_ge_u32 {s(sSP)}, {SPIN}", f"s_cbranch_scc1 {back}",
                 "s_cmp_lg_u64 s[78:79], 0", f"s_cbranch_scc1 {again}", f"s_branch {back}"])
def arrive(k, vt, sflag, maybe_dft=False, vec=False):
    lab = newlab("ar")
    E(f"v_mov_b32 {v(vt)}, {CNT + 4*k}")
    E(f"v_mov_b32 {v(vt+1)}, 1")
    E("s_mov_b64 exec, 1")
    E(f"ds_add_rtn_u32 {v(vt+1)}, {v(vt)}, {v(vt+1)}")
    E("s_waitcnt lgkmcnt(0)")
    E(f"v_readfirstlane_b32 {s(sSP)}, {v(vt+1)}")
    E("s_mov_b64 exec, -1")
    E(f"s_cmp_lg_u32 {s(sSP)}, {s(sNA)}")
    E(f"s_cbranch_scc1 {lab}")
    if maybe_dft:
        z = newlab("az")
        E(f"s_cmp_eq_u32 {s(sDFT)}, 1")
        E(f"s_cbranch_scc1 {z}")
        SLOW.extend([f"{z}:", f"s_mov_b32 {s(sSP)}, 1", f"s_atomic_add {s(sSP)}, s[24:25], 128 glc",
                     f"s_add_u32 s78, s30, {FL_OFF}", "s_addc_u32 s79, s31, 0", "s_waitcnt lgkmcnt(0)",
                     f"s_cmp_lg_u32 {s(sSP)}, 31", f"s_cbranch_scc1 {lab}"]
                    + [f"s_atomic_swap_x2 {s(sTAG,2)}, s[78:79], {128*r}" for r in range(16)] + [f"s_branch {lab}"])
    if vec:
        E("s_mov_b64 exec, 1")
        E(f"buffer_store_dwordx2 {v(vNON,2)}, {v(vZERO)}, {s(sWS,4)}, {s(sflag)} offen sc1")
        E("s_mov_b64 exec, -1")
    else: E(f"s_atomic_swap_x2 {s(sTAG,2)}, s[30:31], {s(sflag)}")
    E(f"{lab}:")
def spoll(n, first=0):
    lab, out = newlab("pl"), newlab("pl")
    E(f"s_mov_b32 {s(sSP)}, 0")
    E(f"{lab}:")
    for k in range(n): E(f"s_load_dwordx2 {s(sPD+2*k,2)}, {s(sPB,2)}, {128*(first + k)} glc")
    E(f"s_add_u32 {s(sSP)}, {s(sSP)}, 1")
    E(f"s_cmp_ge_u32 {s(sSP)}, {SPIN}")
    E("s_waitcnt lgkmcnt(0)")
    E(f"s_cbranch_scc1 {out}")
    for k in range(n): E(f"s_xor_b64 {s(sPD+2*k,2)}, {s(sPD+2*k,2)}, {s(sTAG,2)}")
    for k in range(1, n): E(f"s_or_b64 {s(sPD,2)}, {s(sPD,2)}, {s(sPD+2*k,2)}")
    if opt("psl", 1):
        E(f"s_cbranch_scc0 {out}")
        E(f"s_sleep {opt('psl', 1)}")
        E(f"s_branch {lab}")
    else: E(f"s_cbranch_scc1 {lab}")
    E(f"{out}:")
def wload(k0, k1):
    o = []
    for k in range(k0, k1):
        for cb in range(2):
            ln = [f"buffer_load_dwordx4 {v(wreg(k,cb),4)}, v6, {s(sWS,4)}, {s(sWP)} offen offset:{(2*(k&1)+cb)*1024} sc1"]
            if (k & 1) and cb: ln.append(f"s_add_u32 {s(sWP)}, {s(sWP)}, 4096")
            o.append((ln, f"T{k}"))
    return o
def p2setup():
    srd(sX1, 26, 2048*1024)
    E(f"s_and_b32 {s(sT1)}, {s(sRT)}, 1")
    E(f"s_lshl_b32 {s(sT3)}, {s(sT1)}, 9")
    E(f"s_add_u32 {s(sT3)}, {s(sT3)}, {s(sR)}")
    E(f"s_lshl_b32 {s(sT3)}, {s(sT3)}, 10")
    E(f"s_lshl_b32 {s(sT0)}, {s(sCT)}, 7")
    E(f"s_add_u32 {s(sT3)}, {s(sT3)}, {s(sT0)}")
    E(f"v_bfe_u32 v2, v0, 3, 5")
    E(f"v_lshrrev_b32 v3, 8, v0")
    E(f"v_lshlrev_b32 {v(vOUT)}, 14, v2")
    E(f"v_lshl_add_u32 {v(vOUT)}, v3, 20, {v(vOUT)}")
    E(f"v_and_b32 v3, 7, v0")
    E(f"v_lshl_add_u32 {v(vOUT)}, v3, 4, {v(vOUT)}")
    E(f"v_add_u32 v5, {2*A_RB}, v6")
    E(f"s_lshl_b32 {s(sT0)}, {s(sR)}, 2")
    E(f"s_add_u32 {s(sT0)}, {s(sT0)}, {s(sT1)}")
    E(f"s_mul_i32 {s(sT0)}, {s(sT0)}, {A_RB}")
    E(f"s_lshl_b32 {s(sT1)}, {s(sW)}, 15")
    E(f"s_add_u32 {s(sT0)}, {s(sT0)}, {s(sT1)}")
    for g in range(4):
        E(f"s_cmp_ge_u32 {s(sW)}, {4 if g < 2 else 3}")
        E(f"s_cselect_b32 {s(sT1)}, {108*1024}, 0")
        E(f"s_sub_u32 {s(sK+g)}, {s(sT0)}, {s(sT1)}")
        if g: E(f"s_add_u32 {s(sK+g)}, {s(sK+g)}, {g*8192}")
TW = 192
def twphase():
    E(f"s_and_b32 {s(sT0)}, {s(sRT)}, 1")
    E(f"s_lshl_b32 {s(sT0)}, {s(sT0)}, 9")
    E(f"s_add_u32 {s(sT0)}, {s(sT0)}, {s(sR)}")
    E(f"v_and_b32 v8, 31, {v(vL)}")
    E(f"v_lshlrev_b32 v8, 4, v8")
    E(f"v_add_u32 v8, {s(sT0)}, v8")
    E(f"v_cvt_f32_u32 v8, v8")
    E(f"s_mov_b32 {s(sT0)}, {f32(1/2048)}")
    E(f"s_cmp_ge_u32 {s(sCT)}, 4")
    E(f"s_cselect_b32 {s(sT0)}, {s(sT0)}, {f32(-1/2048)}")
    E(f"v_mul_f32 v8, {s(sT0)}, v8")
    E(f"v_lshrrev_b32 v9, 5, {v(vL)}")
    E(f"v_lshlrev_b32 v9, 3, v9")
    E(f"v_cvt_f32_u32 v9, v9")
    E(f"v_mul_f32 v9, v9, v8")
def twgen(k0, k1):
    for ks in range(k0, k1):
        t = 48 + 12*(ks & 1)
        for u in range(4): E(f"v_fmamk_f32 {v(t+u)}, v8, {f32(16*(ks >> 1) + (ks & 1) + 2*u)}, v9")
        for u in range(4): E(f"v_cos_f32 {v(t+4+u)}, {v(t+u)}")
        for u in range(4): E(f"v_sin_f32 {v(t+8+u)}, {v(t+u)}")
        for u in range(4): E(f"v_cvt_pk_bf16_f32 {v(TW+4*ks+u)}, {v(t+4+2*u)}, {v(t+5+2*u)}")

UNIT = list(range(8)) + [2, 3, 4, 5, 6, 7, 0, 1]
XIT = {n: f"X{n}" for n in range(8)}
XIT.update({8+k: f"X{2+k}" for k in range(6)}); XIT.update({14: "X8", 15: "X9"})
WX = []
for n in range(8): WX += [f"W{n}", f"X{n}"]
WX += ["W8", "W9", "W10", "W11", "W12", "W13", "W14", "X8", "W15", "X9"]
last_use = {f"W{n}": n for n in range(16)}
for n in range(16): last_use[XIT[n]] = n
f_free, f_blk = {}, {}
freeq = [(-1, b) for b in range(9)]
for o in WX:
    freeq.sort(); t, b = freeq.pop(0)
    f_free[o] = t; f_blk[o] = b
    freeq.append((last_use[o], b))
ROT = opt("rot", 1); sRO = sZO
def f_items(bar, nmax):
    out = []
    while WX and f_free[WX[0]] <= bar and nmax:
        o = WX.pop(0); nmax -= 1; n = int(o[1:])
        for b in range(4):
            if o[0] == "W":
                off = UNIT[n]*64*3584 + (n >> 3)*128 + (b >> 1)*32*3584
                pre = f"s_mov_b32 {s(sWoff)}, {off}"
                if ROT:
                    pre = (f"s_add_u32 {s(sWoff)}, {s(sRO)}, {UNIT[n]}\ns_and_b32 {s(sWoff)}, {s(sWoff)}, 7\ns_mul_i32 {s(sWoff)}, {s(sWoff)}, {64*3584}\ns_add_u32 {s(sWoff)}, {s(sWoff)}, {(n >> 3)*128}"
                           if b == 0 else f"s_add_u32 {s(sWoff)}, {s(sWoff)}, {32*3584}")
                out.append((dma(pre if not b & 1 else None, f_blk[o]*BLK + (b & 1)*Q + (b >> 1)*4096,
                                f"buffer_load_dwordx4 {v(vWo)}, {s(sU if b&1 else sG,4)}, {s(sWoff)} offen lds"), o))
            else:
                pre = f"s_movk_i32 {s(sXoff)}, {(n & 7)*128}"
                if ROT: pre = f"s_add_u32 {s(sXoff)}, {s(sRO)}, {n & 7}\ns_and_b32 {s(sXoff)}, {s(sXoff)}, 7\ns_lshl_b32 {s(sXoff)}, {s(sXoff)}, 7"
                out.append((dma(pre if b == 0 else None, f_blk[o]*BLK + b*4096,
                                f"buffer_load_dwordx4 {v(vXo+b)}, {s(sX0,4)}, {s(sXoff)} offen lds"), o))
    return out
vXB = 128; vWB = 140
vSELG, vSELU, vCSD = 148, 152, 156
vCSW, vCSR = 168, 169
P0 = 176
MB = 182
MA = 128
TT = 112; OO = 120
def accf(rb, p): return vACC + 32*rb + 16*p
I0, I1 = Log(), Log()
def setup_f():
    E(f"s_bfe_u32 {s(sT2)}, {s(sW)}, 0x10001")
    E(f"s_and_b32 {s(sCQ)}, {s(sW)}, 1")
    E(f"v_lshrrev_b32 v2, 5, {v(vL)}")
    E(f"v_and_b32 v3, 31, {v(vL)}")
    E(f"v_bfe_u32 v5, {v(vL)}, 3, 1")
    E(f"v_xor_b32 v5, {s(sCQ)}, v5")
    E(f"v_lshlrev_b32 v5, 6, v5")
    E(f"v_lshl_add_u32 v5, v2, 10, v5")
    E(f"v_bfe_u32 v4, {v(vL)}, 2, 2")
    E(f"v_lshl_add_u32 v5, v4, 7, v5")
    E(f"v_and_b32 v4, 3, {v(vL)}")
    E(f"v_lshl_add_u32 v5, v4, 3, v5")
    E(f"v_bfe_u32 v4, {v(vL)}, 4, 1")
    E(f"v_lshl_add_u32 v5, v4, 5, v5")
    E(f"s_lshl_b32 {s(sT1)}, {s(sT2)}, 12")
    E(f"v_add_u32 {v(vWB)}, {s(sT1)}, v5")
    E(f"v_xor_b32 {v(vWB+1)}, 4096, {v(vWB)}")
    E(f"v_and_b32 v5, 15, {v(vL)}")
    E(f"v_lshlrev_b32 v4, 2, v4")
    E(f"v_sub_u32 v5, v5, v4")
    E(f"v_cmp_eq_u32 s[78:79], 0, v5")
    E(f"v_cmp_eq_u32 s[76:77], 8, v5")
    E(f"v_mov_b32 v5, 0x3f803f80")
    E(f"v_bfe_u32 v4, {v(vL)}, 1, 3")
    for k in range(4):
        E(f"v_cndmask_b32 {v(vSELG+k)}, 0, v5, s[78:79]")
        E(f"v_cndmask_b32 {v(vSELU+k)}, 0, v5, s[76:77]")
    E(f"v_xor_b32 v4, v4, v2")
    E(f"v_lshlrev_b32 v4, 4, v4")
    E(f"v_lshl_add_u32 v4, v3, 7, v4")
    E(f"s_mul_i32 {s(sT0)}, {s(sT2)}, {8192 + 64}")
    E(f"v_xor_b32 v4, {s(sT0)}, v4")
    for o in range(4): E(f"v_xor_b32 {v(vXB+o)}, {o*32}, v4")
    for g in (1, 2):
        for o in range(4): E(f"v_add_u32 {v(vXB+4*g+o)}, {3*BLK*g}, {v(vXB+o)}")
        for o in range(2): E(f"v_add_u32 {v(vWB+2*g+o)}, {3*BLK*g}, {v(vWB+o)}")
def setup_f2():
    E(f"s_mul_i32 {s(sFL)}, {s(sI)}, 28")
    E(f"s_mul_i32 {s(sT0)}, {s(sRH)}, 14")
    E(f"s_add_u32 {s(sFL)}, {s(sFL)}, {s(sT0)}")
    E(f"s_add_u32 {s(sFL)}, {s(sFL)}, {s(sC)}")
    E(f"s_lshl_b32 {s(sFL)}, {s(sFL)}, 7")
    E(f"s_add_u32 {s(sFL)}, {s(sFL)}, {FL_OFF + 32*128}")
    E(f"s_lshl_b32 {s(sT0)}, {s(sI)}, 11")
    E(f"s_lshl_b32 {s(sT1)}, {s(sT2)}, 10")
    E(f"s_add_u32 {s(sT0)}, {s(sT0)}, {s(sT1)}")
    E(f"s_add_u32 {s(sT0)}, {s(sT0)}, {GR_OFF}")
    E(f"v_and_b32 v4, 7, {v(vL)}")
    E(f"v_lshlrev_b32 v4, 3, v4")
    E(f"v_lshrrev_b32 v5, 3, {v(vL)}")
    E(f"v_lshl_add_u32 v4, v5, 7, v4")
    E(f"v_add_u32 {v(vGRl)}, {s(sT0)}, v4")
    E(f"v_lshlrev_b32 v4, 2, v0")
    E(f"v_add_u32 {v(vCSW)}, {CS_OFF}, v4")
    E(f"s_and_b32 {s(sT0)}, {s(sW)}, 5")
    E(f"s_lshl_b32 {s(sT0)}, {s(sT0)}, 8")
    E(f"s_add_u32 {s(sT0)}, {s(sT0)}, {CS_OFF}")
    E(f"v_lshlrev_b32 v4, 2, v3")
    E(f"v_lshl_add_u32 v4, v2, 9, v4")
    E(f"v_add_u32 {v(vCSR)}, {s(sT0)}, v4")
    E(f"s_lshl_b32 {s(sT0)}, {s(sI)}, 2")
    E(f"s_lshl_b32 {s(sT1)}, {s(sT2)}, 1")
    E(f"s_add_u32 {s(sT0)}, {s(sT0)}, {s(sT1)}")
    E(f"s_mul_i32 {s(sH0)}, {s(sT0)}, {A_RB}")
    E(f"s_lshl_b32 {s(sT0)}, {s(sC)}, 13")
    E(f"s_lshl_b32 {s(sT1)}, {s(sRH)}, 12")
    E(f"s_add_u32 {s(sT0)}, {s(sT0)}, {s(sT1)}")
    E(f"s_lshl_b32 {s(sT1)}, {s(sCQ)}, 11")
    E(f"s_add_u32 {s(sT0)}, {s(sT0)}, {s(sT1)}")
    E(f"s_add_u32 {s(sH0)}, {s(sH0)}, {s(sT0)}")
    E(f"s_add_u32 {s(sH1)}, {s(sH0)}, {A_RB}")
    for r in (MB+1, MB+3, MB+4, MB+5): E(f"v_mov_b32 {v(r)}, 0")
def fset(g): return 80 + 16*(g % 3)
def freads(g):
    n, o = g >> 2, g & 3
    xb, wb = f_blk[XIT[n]], f_blk[f"W{n}"]
    wa = v(vWB + 2*(wb // 3) + (o >> 1)); wo = (wb % 3)*BLK + (o & 1)*2048
    xa = v(vXB + 4*(xb // 3) + o); xo = (xb % 3)*BLK
    F = fset(g)
    return [f"ds_read_b128 {v(F,4)}, {xa} offset:{xo}",
            f"ds_read_b64_tr_b16 {v(F+8,2)}, {wa} offset:{wo}",
            f"ds_read_b64_tr_b16 {v(F+10,2)}, {wa} offset:{wo+512}",
            f"ds_read_b64_tr_b16 {v(F+12,2)}, {wa} offset:{wo+8192}",
            f"ds_read_b64_tr_b16 {v(F+14,2)}, {wa} offset:{wo+8192+512}",
            f"ds_read_b128 {v(F+4,4)}, {xa} offset:{xo+4096}"]
C0 = -2.0 * math.log2(math.e) * math.sqrt(2.0/math.pi)
C1 = C0 * 0.044715
cszero = [f"v_mov_b32 {v(MA+r)}, 0" for r in (1, 2, 3, 5, 6, 7)]
cssplit = []
for p in range(2):
    c, t = v(MA+8+p), v(MA+10+p)
    cssplit += [f"v_cvt_pk_bf16_f32 {t}, {c}, {c}", f"v_and_b32 {t}, {s(sMASK)}, {t}", f"v_sub_f32 {t}, {c}, {t}", f"v_cvt_pk_bf16_f32 {v(MA+4*p)}, {c}, {t}"]
fcorr = [f"v_mfma_f32_32x32x16_bf16 {v(accf(rb,p),16)}, {v(MA+4*p,4)}, {v(MB+2*rb,4)}, {v(accf(rb,p),16)}" for rb in range(2) for p in range(2)]
consts = ([f"v_and_b32 {v(MB)}, 0xffff, {v(vGR)}", f"v_and_b32 v4, {s(sMASK)}, {v(vGR)}", f"v_xor_b32 {v(MB)}, 0x8000, {v(MB)}",
           f"v_rcp_f32 v5, v4", f"v_lshl_or_b32 {v(MB)}, {v(MB)}, 16, {v(MB)}",
           f"v_mul_f32 {v(P0)}, v4, v4", f"v_mul_f32 {v(P0+2)}, {f32(C0)}, v5", f"v_mul_f32 v4, v5, v5",
           f"v_mul_f32 v4, v4, v5", f"v_mul_f32 {v(P0+4)}, {f32(C1)}, v4", f"v_mov_b32 {v(MB+2)}, {v(MB)}"]
          + [f"v_mov_b32 {v(P0+2*k+1)}, {v(P0+2*k)}" for k in range(3)] + ["s_nop 1", f"v_permlane32_swap_b32 {v(MB)}, {v(MB+2)}"]
          + [f"v_permlane32_swap_b32 {v(P0+2*k)}, {v(P0+2*k+1)}" for k in range(3)])
def gelu(rb, half, pk=False):
    G = accf(rb, 0) + 8*half; U = accf(rb, 1) + 8*half; q, k0, k1 = [v(P0+2*k+rb) for k in range(3)]
    O = OO + 4*half
    o = []
    R = range(8)
    if pk:
        R4 = range(0, 8, 2); q, k0, k1 = [v(P0+2*k, 2) for k in range(3)]
        if rb and not half: o += [f"v_mov_b32 {v(P0+2*k)}, {v(P0+2*k+1)}" for k in range(3)]
        o += [f"v_pk_mul_f32 {v(TT+j,2)}, {v(G+j,2)}, {v(G+j,2)}" for j in R4]
        o += [f"v_pk_fma_f32 {v(TT+j,2)}, {v(TT+j,2)}, {k1}, {k0} op_sel_hi:[1,0,0]" for j in R4]
        o += [f"v_pk_mul_f32 {v(TT+j,2)}, {v(TT+j,2)}, {v(G+j,2)}" for j in R4]
        o += [f"v_exp_f32 {v(TT+j)}, {v(TT+j)}" for j in R]
        o += [f"v_pk_mul_f32 {v(G+j,2)}, {v(G+j,2)}, {v(U+j,2)}" for j in R4]
        o += [f"v_pk_fma_f32 {v(TT+j,2)}, {v(TT+j,2)}, {q}, {q} op_sel_hi:[1,0,0]" for j in R4]
        o += [f"v_rcp_f32 {v(TT+j)}, {v(TT+j)}" for j in R]
        o += [f"v_pk_mul_f32 {v(G+j,2)}, {v(G+j,2)}, {v(TT+j,2)}" for j in R4]
    else:
        o += [f"v_mul_f32 {v(TT+j)}, {v(G+j)}, {v(G+j)}" for j in R]
        o += [f"v_fma_f32 {v(TT+j)}, {v(TT+j)}, {k1}, {k0}" for j in R]
        o += [f"v_mul_f32 {v(TT+j)}, {v(TT+j)}, {v(G+j)}" for j in R]
        for j in R: o += [f"v_exp_f32 {v(TT+j)}, {v(TT+j)}", f"v_mul_f32 {v(G+j)}, {v(G+j)}, {v(U+j)}"]
        o += [f"v_fma_f32 {v(TT+j)}, {v(TT+j)}, {q}, {q}" for j in R]
        o += [f"v_rcp_f32 {v(TT+j)}, {v(TT+j)}" for j in R]
        o += [f"v_mul_f32 {v(G+j)}, {v(G+j)}, {v(TT+j)}" for j in R]
    o += [f"v_cvt_pk_bf16_f32 {v(O+j)}, {v(G+2*j)}, {v(G+2*j+1)}" for j in range(4)]
    o += [f"buffer_store_dwordx4 {v(O,4)}, v6, {s(sWS,4)}, {s(sH0+rb)} offen offset:{1024*half} sc1"]
    return o
def compute(p, log, hook):
    LG = Lgkm()
    g0 = 32*p
    for g in (g0, g0 + 1):
        for t in freads(g): LG.op(t, f"a{g}")
    for g in range(g0, g0 + 32):
        n, o = g >> 2, g & 3
        F = fset(g); end = (n & 7) == 7
        rd = freads(g + 2) if g + 2 < g0 + 32 else []
        LG.wait([f"a{g}"])
        for k in range(4):
            rb, pp = k >> 1, k & 1
            A = v(accf(rb, pp), 16)
            E(f"v_mfma_f32_32x32x16_bf16 {A}, {v(F+8+4*pp,4)}, {v(F+4*rb,4)}, {A if g > g0 else 0}")
            if o == 2 and k == 0:
                if end:
                    E("s_nop 5")
                    LG.op(f"ds_write_b32 {v(vCSW)}, {v(vCSD)}", "cw")
                w = log.wait([f"W{n+1}"]) if n < 15 else None
                LG.wait("all", f"vmcnt({w}) " if w is not None else "")
                E("s_barrier")
                if n & 1: stamp(2 + n // 2, True)
                if end:
                    LG.op(f"ds_read_b32 {v(MA+8)}, {v(vCSR)}", "cs")
                    LG.op(f"ds_read_b32 {v(MA+9)}, {v(vCSR)} offset:128", "cs")
                    VQ.extend(cszero)
            for t in rd[2*k:2*k+2]: LG.op(t, f"a{g+2}")
            hook(n, o, k)
            if end and o == 3 and k == 0:
                LG.wait(["cs"]); VQ.extend(cssplit)
            fill(3)
            if o < 2 and k >= 2:
                D = v(vCSD, 4)
                E(f"v_mfma_f32_16x16x32_bf16 {D}, {v(vSELU if k & 1 else vSELG,4)}, {v(F+8+4*(k&1),4)}, {D if (g > g0 or k & 1) else 0}")
    assert not VQ
CPRIO = opt("cprio", 2)
TWN = opt("twn", 1)
NPRE = opt("npre", 8)

def pack0(I1):
    srd(sWD, 28, 1792*1024)
    E(f"s_and_b32 {s(sT0)}, {s(sI)}, 1")
    E(f"s_lshl_b32 {s(sT0)}, {s(sT0)}, 2")
    E(f"s_lshl_b32 {s(sT1)}, {s(sC)}, 3")
    E(f"s_add_u32 {s(sT0)}, {s(sT0)}, {s(sT1)}")
    E(f"s_and_b32 {s(sT1)}, {s(sW)}, 3")
    E(f"s_add_u32 {s(sT0)}, {s(sT0)}, {s(sT1)}")
    E(f"s_lshl_b32 {s(sT0)}, {s(sT0)}, 14")
    E(f"s_lshr_b32 {s(sT1)}, {s(sI)}, 1")
    E(f"s_lshl_b32 {s(sT1)}, {s(sT1)}, 7")
    E(f"s_add_u32 {s(sT0)}, {s(sT0)}, {s(sT1)}")
    E(f"v_lshrrev_b32 v4, 3, {v(vL)}")
    E(f"v_lshl_add_u32 v4, v4, 10, {v(vWo+1)}")
    E(f"s_add_u32 m0, {s(sWd)}, {PRIV}")
    E(f"s_add_u32 {s(sT1)}, {s(sT0)}, 8192")
    E(f"buffer_load_dwordx4 v4, {s(sWD,4)}, {s(sT0)} offen lds")
    E(f"s_add_u32 m0, {s(sWd)}, {PRIV + 4096}")
    E("s_nop 0")
    E(f"buffer_load_dwordx4 v4, {s(sWD,4)}, {s(sT1)} offen lds"); I1.issued += ["D", "D"]
def pack1(I1):
    E(f"v_lshrrev_b32 v4, 5, {v(vL)}")
    E(f"v_bfe_u32 v5, {v(vL)}, 2, 2")
    E(f"v_lshl_add_u32 v5, v4, 2, v5")
    E(f"v_lshlrev_b32 v5, 7, v5")
    E(f"v_bfe_u32 v4, {v(vL)}, 3, 1")
    E(f"v_lshl_add_u32 v5, v4, 6, v5")
    E(f"v_bfe_u32 v4, {v(vL)}, 4, 1")
    E(f"v_lshl_add_u32 v5, v4, 5, v5")
    E(f"v_and_b32 v4, 3, {v(vL)}")
    E(f"v_lshl_add_u32 v5, v4, 3, v5")
    E(f"s_add_u32 {s(sT0)}, {s(sWd)}, {PRIV}")
    E(f"v_add_u32 v5, {s(sT0)}, v5")
    E(f"v_xor_b32 v4, 64, v5")
    E(f"s_waitcnt vmcnt({I1.wait(['D'])})")
    for cb in range(2):
        for hh in range(2): E(f"ds_read_b64_tr_b16 {v(192+4*cb+2*hh,2)}, v{5-cb} offset:{hh*4096}")
    E(f"s_mul_i32 {s(sFLp)}, {s(sI)}, 14")
    E(f"s_add_u32 {s(sFLp)}, {s(sFLp)}, {s(sC)}")
    E(f"s_lshl_b32 {s(sT0)}, {s(sFLp)}, 13")
    E(f"s_lshl_b32 {s(sT1)}, {s(sWd)}, 1")
    E(f"s_add_u32 {s(sT0)}, {s(sT0)}, {s(sT1)}")
    E(f"s_add_u32 {s(sT0)}, {s(sT0)}, {WP_OFF}")
    E(f"s_lshl_b32 {s(sFLp)}, {s(sFLp)}, 7")
    E(f"s_add_u32 {s(sFLp)}, {s(sFLp)}, {FL_OFF + 480*128}")
    E("s_waitcnt lgkmcnt(0)")
    for cb in range(2):
        E(f"buffer_store_dwordx4 {v(192+4*cb,4)}, v6, {s(sWS,4)}, {s(sT0)} offen offset:{cb*1024} sc1"); I1.issued.append("K")
PG0 = not flag("packg1")
E(f"s_mov_b32 {s(sNA)}, 3")
if ROT:
    E(f"s_add_u32 {s(sRO)}, {s(sI)}, {s(sC)}")
    E(f"s_mul_i32 {s(sRO)}, {s(sRO)}, {ROT}")
E("s_cbranch_vccnz L_g1")
if PG0: pack0(I0)
setup_f()
E(f"v_mov_b32 {v(vZERO)}, 0\nv_mov_b32 {v(vZERO+1)}, 0")
E(f"v_mov_b32 v4, {CNT}")
for k in range(2): E(f"ds_write_b64 v4, {v(vZERO,2)} offset:{8*k}")
setup_f2(); late()
if PG0: pack1(I0)
E(f"s_setprio {CPRIO}")
E("s_waitcnt lgkmcnt(0)")
E("s_barrier")
stamp(2)
G0_AT = len(L)
E("L_g1:")
weave(f_items(-1, 2), I1, [])
E(f"v_and_b32 v4, 31, {v(vL)}")
E(f"s_lshl_b32 {s(sT0)}, {s(sI)}, 5")
E(f"v_add_u32 v5, {s(sT0)}, v4")
E(f"v_mul_lo_u32 v5, v5, {s(sRS)}")
E(f"v_add_u32 {v(vTA)}, {s(sCB)}, v5")
E(f"v_bfe_u32 v2, v0, 5, 3")
E(f"s_lshl_b32 {s(sT0)}, {s(sC)}, 3")
E(f"v_add_u32 v5, {s(sT0)}, v2")
E(f"v_lshlrev_b32 v5, 14, v5")
E(f"v_lshl_add_u32 v24, v4, 4, v5")
E(f"v_lshlrev_b32 v13, 3, v2")
def wtouch(p):
    l1, l2 = newlab("wt"), newlab("wt")
    E(f"s_cmp_lg_u32 {s(sW)}, {4 + 2*p}")
    E(f"s_cbranch_scc1 {l1}")
    E(f"buffer_load_dword {v(vTA+1)}, {v(vTA)}, {s(sG,4)}, 0 offen offset:{128*p}")
    E(f"{l1}:")
    E(f"s_cmp_lg_u32 {s(sW)}, {5 + 2*p}")
    E(f"s_cbranch_scc1 {l2}")
    E(f"buffer_load_dword {v(vTA+1)}, {v(vTA)}, {s(sU,4)}, 0 offen offset:{128*p}")
    E(f"{l2}:")
def rowloads():
    E(f"s_lshl_b32 {s(sT0)}, {s(sI)}, 10")
    E(f"buffer_load_dwordx4 v[16:19], v24, {s(sX0,4)}, {s(sT0)} offen")
    E(f"buffer_load_dwordx4 v[20:23], v24, {s(sX0,4)}, {s(sT0)} offen offset:512"); I1.issued += ["R", "R"]
    if flag("ta"): wtouch(0)
RW = opt("rw", 0)
if RW == -2: rowloads()
weave(f_items(-1, 2), I1, [])
if RW == -1: rowloads()
E(f"v_mov_b32 {v(vZERO)}, 0")
E(f"s_waitcnt vmcnt({I1.wait(['W0', 'X0'])})")
E("s_barrier")
stamp(2)
SUF = capture(setup_f) + capture(setup_f2)
DM = [int(x) for x in str(opt("dm", 23322222))]
PK = lopt("pk", [1, 3, 5])
NP = opt("np", 3); SW = lopt("sw", [4, 5, 6])
for n in range(8):
    if n == RW: rowloads()
    if n == opt("tb", 9): wtouch(1)
    other = []
    if n == 0: other = capture(late)
    if n == 1: nonce_load(I1)
    if n == NP:
        E(f"s_waitcnt vmcnt({I1.wait(['R'])})")
        other = rowstats(16, 8)
    if n in SW: other = SUF[SW.index(n)*len(SUF)//3:(SW.index(n)+1)*len(SUF)//3]
    weave(f_items(n - 1, DM[n]), I1, other)
    if n == PK[0] and not PG0: pack0(I1)
    if n == NP:
        E(f"s_waitcnt vmcnt({I1.wait(['N'])})")
        nonce_check()
        E(f"v_mov_b32 {v(vGR+1)}, {v(vNON)}")
        E("s_mov_b32 exec_lo, 0x80000000\ns_mov_b32 exec_hi, 0x80000000")
        E(f"buffer_store_dwordx2 {v(vGR,2)}, v13, {s(sWS,4)}, {s(sT3)} offen sc1"); I1.issued.append("P")
        E("s_mov_b64 exec, -1")
    if n == PK[1] and not PG0: pack1(I1)
    if n == PK[2] and not PG0:
        E(f"s_waitcnt vmcnt({I1.wait(['K'])})")
        arrive(2, 12, sFLp)
    if TWN and n in (1, 3, 4, 5, 6):
        lab = newlab("tw")
        E(f"s_cmp_lg_u32 {s(sW)}, 7")
        E(f"s_cbranch_scc1 {lab}")
        if n == 1: twphase()
        else: twgen(TWN*(n-3), TWN*(n-2))
        E(f"{lab}:")
    if n == 6: tag_load(vGR, vGRl, I1, "G")
    if n == 7:
        E(f"s_waitcnt vmcnt({I1.wait(['G'])})"); tag_check(vGR, vGRl, False); EL(consts)
        E(f"s_setprio {CPRIO}")
    E(f"s_waitcnt vmcnt({I1.wait([f'W{n+1}', XIT[n+1]])})")
    E("s_barrier")
    if n & 1: stamp(2 + n // 2, True)
def hook1(n, o, k):
    if (n, o, k) == (13, 0, 3): tag_load(vFP, vFPo, I1, "Q")
compute(1, I1, hook1)
EL(fcorr)
stamp(3)
E(f"s_cmp_eq_u32 {s(sW)}, 7")
E("s_cselect_b32 vcc_lo, 1, 0")
E("s_cbranch_scc1 L_nopq")
E("s_waitcnt vmcnt(0)")
tag_check(vFP, vFPo, True)
E("L_nopq:")
E("s_nop 7")
epb = []
for rb in range(2):
    for half in range(2): epb += gelu(rb, half, flag("pk"))
wl = []
NPG = opt("npg", 2); NYG = opt("nyg", 2)
for ln, tag in wload(0, NPG):
    lab = newlab("sw"); wl.append(([f"s_cbranch_vccnz {lab}"] + ln + [f"{lab}:"], tag))
weave(wl, I1, epb)
stamp(1)
E("s_cbranch_vccnz L_p2")
stamp(4)
weave(wload(NPG, NPG + NYG), I1, capture(p2setup))
E(f"s_waitcnt vmcnt({2*NYG})")
arrive(1, 2, sFL)
stamp(5)
E(f"s_setprio {opt('yp', 1)}")
weave(wload(NPG + NYG, NPRE), I1, [])
E("s_branch L_rest")
G1_CODE = L[G0_AT:]; del L[G0_AT:]
def hook0(n, o, k):
    if (n, o, k) == (1 if PG0 else 5, 0, 3): nonce_load(I0)
    if PG0 and (n, o, k) == (3, 1, 3):
        E("s_waitcnt vmcnt(0)"); nonce_check(); arrive(2, 12, sFLp, vec=True)
    if (n, o, k) == (opt("ngl", 6), 2, 3): tag_load(vGR, vGRl, I0, "G")
compute(0, I0, hook0)
E("s_setprio 0")
E("s_waitcnt vmcnt(0)")
if not PG0: nonce_check()
tag_check(vGR, vGRl, False)
EPI = consts + fcorr + ["s_nop 9"]
for rb in range(2):
    for half in range(2): EPI += gelu(rb, half)
NI = lopt("ni", [1, 2, 2, 1, 1, 1, 0, 0])
NT = lopt("nt", [0, 0, 0, 1, 2, 3, 4, 4])
EB = lopt("eb", [45, 70, 70, 80, 80, 40, 0, 0])
NA = opt("na", 14); NQ = opt("nq", 8)
kp = 0
for n in range(8, 16):
    if n == NQ + 2:
        E(f"s_waitcnt vmcnt({I0.wait(['Q'])})"); tag_check(vFP, vFPo, True)
    if NT[n-8]: assert n >= NQ + 2 and (kp + NT[n-8] <= 12 or not EPI)
    chunk = []
    b_ = EB[n - 8]
    while EPI and b_ > 0:
        x = EPI.pop(0); b_ -= cost(x); chunk.append(x)
    weave(f_items(n - 1, NI[n-8]) + wload(kp, kp + NT[n-8]), I0, chunk); kp += NT[n-8]
    if n == NQ: tag_load(vFP, vFPo, I0, "Q")
    if n == NA:
        assert not EPI
        E(f"s_waitcnt vmcnt({I0.wait(['S'])})")
        arrive(0, 2, sFL)
    if n == 15: p2setup()
    if n < 15:
        assert f"W{n+1}" not in WX and XIT[n+1] not in WX
        w = I0.wait([f"W{n+1}", XIT[n+1]])
        if w is not None: E(f"s_waitcnt vmcnt({w})")
    E("s_barrier")
    if n & 1: stamp(2 + n // 2, True)
assert not WX
stamp(3); stamp(1); stamp(4)
weave(wload(kp, 16), I0, [])
stamp(5)
E("s_branch L_go")
L.extend(G1_CODE)

E("L_dft:")
ID = Log()
d_todo = ["W0", "X0", "W1", "W2", "X1", "W3", "W4", "X2", "W5"]
for P in range(3, 8): d_todo += [f"W{2*P}", f"X{P}", f"W{2*P+1}"]
d_todo = [(o, b) for o in d_todo for b in range(4)]
def d_slot(bar, nmax=2):
    o_ = []
    while d_todo and nmax:
        o, b = d_todo[0]; n = int(o[1:])
        if (n - 6 if o[0] == "W" else 2*(n-3) + 1) > bar: break
        d_todo.pop(0); nmax -= 1; ID.issued.append(o)
        if o[0] == "W":
            o_ += dma(f"s_mov_b32 {s(sWoff)}, {n*32*1024}" if b == 0 else None, (n % 6)*BLK + (b & 1)*Q + (b >> 1)*4096,
                      f"buffer_load_dwordx4 {v(vWo+(b>>1))}, {s(sU if b&1 else sG,4)}, {s(sWoff)} offen lds")
        else:
            o_ += dma(f"s_movk_i32 {s(sXoff)}, {n*128}" if b == 0 else None, XRING + (n % 3)*BLK + b*4096,
                      f"buffer_load_dwordx4 {v(vXo+b)}, {s(sX0,4)}, {s(sXoff)} offen lds")
    if o_:
        lab = newlab("sk")
        EL([f"s_cbranch_vccnz {lab}"] + o_ + [f"{lab}:"])
def helper_wait(n):
    lab = newlab("hw")
    E(f"s_cbranch_vccz {lab}")
    E(f"s_waitcnt vmcnt({n})")
    E(f"{lab}:")
X0a, X1a, Ga, Ua, X0b, X1b, Gb, Ub = [80 + 4*k for k in range(8)]
dXB = 116; dWB = 124
dPW, dPR = 126, 127
RR = 128; FR = 80
def acc(rb, p): return vACC + (rb * 2 + p) * 16
d_slot(-1, 8)
E(f"v_lshrrev_b32 v2, 5, {v(vL)}")
E(f"v_and_b32 v3, 31, {v(vL)}")
E(f"v_bfe_u32 v5, {v(vL)}, 2, 2")
E(f"v_lshlrev_b32 v4, 11, v2")
E(f"v_lshl_add_u32 v4, v5, 8, v4")
E(f"v_xor_b32 v5, {s(sCQ)}, v5")
E(f"v_lshl_add_u32 v4, v5, 6, v4")
E(f"v_bfe_u32 v5, {v(vL)}, 4, 1")
E(f"v_lshl_add_u32 v4, v5, 5, v4")
E(f"v_and_b32 v5, 3, {v(vL)}")
E(f"v_lshl_add_u32 {v(dWB)}, v5, 3, v4")
E(f"v_add_u32 {v(dWB+1)}, {3*BLK}, {v(dWB)}")
E(f"v_bfe_u32 v4, {v(vL)}, 1, 3")
E(f"v_xor_b32 v4, v4, v2")
E(f"v_lshlrev_b32 v4, 4, v4")
E(f"v_lshl_add_u32 v4, v3, 7, v4")
E(f"s_lshl_b32 {s(sT0)}, {s(sRH)}, 13")
E(f"s_add_u32 {s(sT0)}, {s(sT0)}, {XRING}")
E(f"v_add_u32 v4, {s(sT0)}, v4")
for q in range(4): E(f"v_xor_b32 {v(dXB+q)}, {q*32}, v4")
E(f"s_lshl_b32 {s(sT0)}, {s(sC)}, 3")
E(f"s_add_u32 {s(sT0)}, {s(sT0)}, {s(sW)}")
E(f"s_lshl_b32 {s(sT0)}, {s(sT0)}, 4")
E(f"s_add_u32 {s(sT0)}, {s(sT0)}, {s(sI)}")
E(f"s_lshl_b32 {s(sT0)}, {s(sT0)}, 10")
E(f"v_lshlrev_b32 v6, 4, {v(vL)}")
E(f"v_mov_b32 {v(vZERO)}, 0\nv_mov_b32 {v(vZERO+1)}, 0")
E(f"v_mov_b32 v4, {CNT}")
E(f"ds_write_b64 v4, {v(vZERO,2)}")
d_slot(-1, 8)
E(f"buffer_load_dwordx4 v[192:195], v6, {s(sX0,4)}, {s(sT0)} offen"); ID.issued.append("R")
E(f"v_lshrrev_b32 v4, 1, {v(vL)}")
E(f"s_lshl_b32 {s(sT0)}, {s(sI)}, 5")
E(f"v_add_u32 v4, {s(sT0)}, v4")
E(f"v_lshlrev_b32 v4, 10, v4")
E(f"v_and_b32 v5, 1, {v(vL)}")
E(f"v_lshl_add_u32 v4, v5, 7, v4")
E(f"s_cmp_lg_u32 {s(sW)}, 4")
E(f"s_cbranch_scc1 L_dt1")
E(f"buffer_load_dword {v(vTA+1)}, v4, {s(sG,4)}, {s(sCB)} offen")
E(f"L_dt1:")
E(f"s_cmp_lg_u32 {s(sW)}, 5")
E(f"s_cbranch_scc1 L_dt2")
E(f"buffer_load_dword {v(vTA+1)}, v4, {s(sU,4)}, {s(sCB)} offen")
E(f"L_dt2:")
def late_d():
    E(f"s_mov_b32 {s(sNA)}, 7")
    E(f"s_lshl_b32 {s(sT0)}, {s(sW)}, 9")
    E(f"s_add_u32 {s(sT0)}, {s(sT0)}, {PRIV}")
    E(f"v_lshlrev_b32 v5, 2, {v(vL)}")
    E(f"v_add_u32 {v(dPW)}, {s(sT0)}, v5")
    E(f"v_lshlrev_b32 v5, 4, v2")
    E(f"v_add_u32 {v(dPR)}, {s(sT0)}, v5")
    E(f"v_and_b32 v4, 1, {v(vL)}")
    E(f"v_bfe_u32 v5, {v(vL)}, 2, 1")
    E(f"v_lshl_add_u32 v4, v5, 1, v4")
    E(f"v_lshlrev_b32 v4, 12, v4")
    E(f"v_bfe_u32 v5, {v(vL)}, 1, 1")
    E(f"v_lshl_add_u32 v4, v5, 7, v4")
    E(f"v_bfe_u32 v5, {v(vL)}, 3, 3")
    E(f"v_lshl_add_u32 v4, v5, 8, v4")
    E(f"s_and_b32 {s(sT1)}, {s(sI)}, 1")
    E(f"s_lshl_b32 {s(sT2)}, {s(sRH)}, 3")
    E(f"s_add_u32 {s(sT1)}, {s(sT1)}, {s(sT2)}")
    E(f"s_lshl_b32 {s(sT1)}, {s(sT1)}, 11")
    E(f"s_lshr_b32 {s(sT2)}, {s(sI)}, 1")
    E(f"s_lshl_b32 {s(sT2)}, {s(sT2)}, 3")
    E(f"s_add_u32 {s(sT1)}, {s(sT1)}, {s(sT2)}")
    E(f"s_add_u32 {s(sT1)}, {s(sT1)}, {GR_OFF}")
    E(f"v_add_u32 {v(vGRl)}, {s(sT1)}, v4")
    E(f"v_lshlrev_b32 v4, 20, v2")
    E(f"v_lshl_add_u32 v4, v3, 4, v4")
    E(f"s_lshl_b32 {s(sZO)}, {s(sI)}, 13")
    E(f"s_sub_u32 {s(sT1)}, {s(sC)}, 14")
    E(f"s_lshl_b32 {s(sT1)}, {s(sT1)}, 11")
    E(f"s_add_u32 {s(sZO)}, {s(sZO)}, {s(sT1)}")
    E(f"s_lshl_b32 {s(sT1)}, {s(sCQ)}, 9")
    E(f"s_add_u32 {s(sZO)}, {s(sZO)}, {s(sT1)}")
    E(f"s_lshl_b32 {s(sT1)}, {s(sRH)}, 12")
    E(f"s_add_u32 {s(sZO)}, {s(sZO)}, {s(sT1)}")
    E(f"s_add_u32 {s(sZO)}, {s(sZO)}, {Z_OFF}")
    E(f"s_mov_b32 {s(sK)}, {f32(math.cos(math.pi/8))}")
    E(f"s_mov_b32 {s(sK+2)}, {f32(math.sin(math.pi/8))}")
def reads(F, it, sl):
    X0, X1, G, U = F
    q = 2*(it & 1) + sl
    xo = ((it >> 1) % 3) * BLK
    ws = it % 6
    wa = v(dWB + ws // 3); wo = (ws % 3) * BLK + sl*4096
    return [f"ds_read_b128 {v(X0,4)}, {v(dXB+q)} offset:{xo}",
            f"ds_read_b64_tr_b16 {v(G,2)}, {wa} offset:{wo}",
            f"ds_read_b64_tr_b16 {v(G+2,2)}, {wa} offset:{wo+1024}",
            f"ds_read_b64_tr_b16 {v(U,2)}, {wa} offset:{wo+8192}",
            f"ds_read_b64_tr_b16 {v(U+2,2)}, {wa} offset:{wo+9216}",
            f"ds_read_b128 {v(X1,4)}, {v(dXB+q)} offset:{xo+4096}"]
def mf(F, k, first=False):
    X0, X1, G, U = F
    rb, p = k >> 1, k & 1
    A = v(acc(rb, p), 16)
    return f"v_mfma_f32_32x32x16_bf16 {A}, {v(X1 if rb else X0, 4)}, {v(U if p else G, 4)}, {0 if first else A}"
S0 = (X0a, X1a, Ga, Ua); S1 = (X0b, X1b, Gb, Ub)
E(f"s_waitcnt vmcnt({ID.wait(['W0', 'X0'])}) lgkmcnt(0)")
E("s_barrier")
stamp(2)
EL(reads(S0, 0, 0))
DGL, DGC, DQL, DQC = 8, 10, opt("dql", 10), opt("dql", 10) + 2
VB = 5
dw = wload(0, NPRE)
def d_w(it):
    if it >= DQC and dw:
        ln, tag = dw.pop(0); EL(ln); ID.issued.append(tag)
for it in range(16):
    odd = it & 1
    last = it == 15
    rd = reads(S1, it, 1)
    if it == 0: VQ += capture(late)
    if it == 2:
        assert not VQ; helper_wait(1); VQ += rowstats(192, 4)
    if it == 4: VQ += capture(late_d)
    if it == DGL: assert not VQ
    if it == DGC:
        helper_wait(0); tag_check(vGR, vGRl, False)
        E(f"v_and_b32 v5, {s(sMASK)}, {v(vGR)}")
        E(f"v_rcp_f32 v5, v5")
    if it == DQC:
        lab = newlab("dq")
        E(f"s_cmp_eq_u32 {s(sW)}, 7")
        E(f"s_cbranch_scc1 {lab}")
        helper_wait(0); tag_check(vFP, vFPo, True)
        E(f"{lab}:")
    E("s_waitcnt lgkmcnt(3)")
    E(mf(S0, 0, it == 0)); EL(rd[0:3]); fill(VB)
    E("s_waitcnt lgkmcnt(4)")
    E(mf(S0, 1, it == 0)); EL(rd[3:6]); fill(VB)
    E("s_waitcnt lgkmcnt(6)")
    E(mf(S0, 2, it == 0)); fill(VB); d_slot(it - 1); d_w(it)
    E(mf(S0, 3, it == 0)); fill(VB); d_slot(it - 1); d_w(it)
    E("s_waitcnt lgkmcnt(3)")
    E(mf(S1, 0))
    if it == DGC: E(f"ds_write_b32 {v(dPW)}, v5")
    if it == DGC + 1:
        for q in range(4):
            for rb in range(2):
                E(f"ds_read_b128 {v(RR+16*rb+4*q,4)}, {v(dPR)} offset:{128*rb+32*q}")
    if not last:
        rd = reads(S0, it + 1, 0)
        need = [f"W{it+1}"] + ([f"X{(it+1)//2}"] if odd else []) + {DGC-1: ["G"], 1: ["R"], 3: ["N"], DQC-1: ["Q"]}.get(it, [])
        E(f"s_waitcnt vmcnt({ID.wait(need)}) lgkmcnt(0)")
    else:
        rd = []
        E("s_waitcnt lgkmcnt(0)")
    E("s_barrier")
    if it & 1: stamp(2 + it // 2, True)
    EL(rd[0:3]); fill(VB)
    E(mf(S1, 1)); EL(rd[3:6])
    if it == 1: nonce_load(ID)
    if it == 3:
        assert not VQ
        helper_wait(0); nonce_check()
        E(f"v_mov_b32 {v(vGR+1)}, {v(vNON)}")
        E(f"s_lshl_b32 {s(sT0)}, {s(sW)}, 3")
        E(f"s_add_u32 {s(sT3)}, {s(sT3)}, {s(sT0)}")
        E("s_mov_b32 exec_lo, 0\ns_mov_b32 exec_hi, 0x80000000")
        E(f"buffer_store_dwordx2 {v(vGR,2)}, {v(vZERO)}, {s(sWS,4)}, {s(sT3)} offen sc1"); ID.issued.append("P")
        E("s_mov_b64 exec, -1")
    if it == DGL: tag_load(vGR, vGRl, ID, "G")
    if it == DQL: tag_load(vFP, vFPo, ID, "Q")
    fill(VB)
    E(mf(S1, 2)); fill(VB); d_slot(it); d_w(it)
    E(mf(S1, 3)); fill(VB); d_slot(it); d_w(it)
assert not d_todo and not dw
stamp(3)
E("s_setprio 1")
E(f"s_mov_b32 s78, {f32(math.sqrt(0.5))}")
E("s_nop 9")
val = {}
for rb in range(2):
    for i in range(8):
        val[i + 8*rb] = [acc(rb,0)+2*i, acc(rb,1)+2*i]
free = [FR + 2*k for k in range(16)]
def padd(d, a, b, neg=False):
    E(f"v_pk_add_f32 {v(d,2)}, {v(a,2)}, {v(b,2)}" + (" neg_lo:[0,1] neg_hi:[0,1]" if neg else ""))
def tw(k): return {1:(sK,0,sK+2), 3:(sK+2,0,sK), 5:(sK+2,1,sK), 7:(sK,1,sK+2), 2:(78,0,78), 6:(78,1,78)}[k]
def twiddle(grp, tmp):
    global free
    for (a, b, k) in grp:
        if k in (0, 4):
            free += val[b]; val[b] = tmp[a]
        else:
            sc, nc, ss = tw(k); x, y = tmp[a]; br, bi = val[b]
            ng = f" neg_lo:[0,1] neg_hi:[0,1]" if nc else ""
            E(f"v_pk_mul_f32 {v(br,2)}, {v(x,2)}, {s(sc,2)} op_sel_hi:[1,0]{ng}")
            E(f"v_pk_mul_f32 {v(bi,2)}, {v(y,2)}, {s(sc,2)} op_sel_hi:[1,0]{ng}")
    for (a, b, k) in grp:
        if k not in (0, 4):
            sc, nc, ss = tw(k); x, y = tmp[a]; br, bi = val[b]
            E(f"v_pk_fma_f32 {v(br,2)}, {v(y,2)}, {s(ss,2)}, {v(br,2)} op_sel_hi:[1,0,1]")
            E(f"v_pk_fma_f32 {v(bi,2)}, {v(x,2)}, {s(ss,2)}, {v(bi,2)} op_sel_hi:[1,0,1] neg_lo:[1,0,0] neg_hi:[1,0,0]")
            free += tmp[a]
def butterflies(grp):
    tmp = {}
    for (a, b, k) in grp:
        t = [free.pop(), free.pop()]
        tmp[a] = t
        ar, ai = val[a]; br, bi = val[b]
        if k == 4:
            padd(t[0], ai, bi, True); padd(t[1], br, ar, True)
        else:
            padd(t[0], ar, br, True); padd(t[1], ai, bi, True)
    for (a, b, k) in grp:
        ar, ai = val[a]; br, bi = val[b]
        padd(ar, ar, br); padd(ai, ai, bi)
    twiddle(grp, tmp)
for c0 in (0, 4):
    grp = [(k, k + 8, k) for k in range(c0, c0 + 4)]
    tmp = {}
    for (a, b, k) in grp:
        for p in range(2):
            E(f"v_pk_mul_f32 {v(val[a][p],2)}, {v(val[a][p],2)}, {v(RR+2*k,2)}")
    for (a, b, k) in grp:
        t = [free.pop(), free.pop()]; tmp[a] = t
        ar, ai = val[a]; br, bi = val[b]; R = v(RR+16+2*k, 2)
        if k == 4:
            E(f"v_pk_fma_f32 {v(t[0],2)}, {v(bi,2)}, {R}, {v(ai,2)} neg_lo:[1,0,0] neg_hi:[1,0,0]")
            E(f"v_pk_fma_f32 {v(t[1],2)}, {v(br,2)}, {R}, {v(ar,2)} neg_lo:[0,0,1] neg_hi:[0,0,1]")
        else:
            E(f"v_pk_fma_f32 {v(t[0],2)}, {v(br,2)}, {R}, {v(ar,2)} neg_lo:[1,0,0] neg_hi:[1,0,0]")
            E(f"v_pk_fma_f32 {v(t[1],2)}, {v(bi,2)}, {R}, {v(ai,2)} neg_lo:[1,0,0] neg_hi:[1,0,0]")
    for (a, b, k) in grp:
        ar, ai = val[a]; br, bi = val[b]; R = v(RR+16+2*k, 2)
        E(f"v_pk_fma_f32 {v(ar,2)}, {v(br,2)}, {R}, {v(ar,2)}")
        E(f"v_pk_fma_f32 {v(ai,2)}, {v(bi,2)}, {R}, {v(ai,2)}")
    twiddle(grp, tmp)
OB = RR
def brev(x): return int(f"{x:04b}"[::-1], 2)
for hb in (0, 8):
    butterflies([(hb + k, hb + k + 4, 2*k) for k in range(4)])
    butterflies([(hb + 4*g + k, hb + 4*g + k + 2, 4*k) for g in range(2) for k in range(2)])
    for qb in (0, 4):
        butterflies([(hb + qb + 2*g, hb + qb + 2*g + 1, 0) for g in range(2)])
        outs = []
        for g in range(2):
            p = hb + qb + 2*g; r = brev(p)
            o = OB + 4*(p >> 1)
            outs.append((r, o))
            for u in range(2):
                re, im = val[p + u]
                E(f"v_cvt_pk_bf16_f32 {v(o+u)}, {v(re)}, {v(re+1)}")
                E(f"v_cvt_pk_bf16_f32 {v(o+2+u)}, {v(im)}, {v(im+1)}")
        for g, (r, o) in enumerate(outs): E(f"s_add_u32 {s(sT2 + g)}, {s(sZO)}, {r*16*8192}")
        for r, o in outs:
            E(f"v_permlane32_swap_b32 {v(o)}, {v(o+1)}")
            E(f"v_permlane32_swap_b32 {v(o+2)}, {v(o+3)}")
        for g, (r, o) in enumerate(outs):
            E(f"buffer_store_dwordx4 {v(o,4)}, v4, {s(sWS,4)}, {s(sT2 + g)} offen sc1")
stamp(1)

E("L_p2:")
stamp(4)
p2setup()
def acc2(tb, cb): return vACC + (tb*2+cb)*16
E(f"s_cmp_eq_u32 {s(sW)}, 7")
E("s_cbranch_scc1 L_p2_dft")
IT = Log()
E(f"s_waitcnt vmcnt(0)")
arrive(1, 2, sFL, True)
stamp(5)
E(f"s_setprio 0")
E("L_rest:")
weave(wload(NPRE, 16), IT, [])
E("L_go:")
def ldh(k, B):
    E(f"buffer_load_dwordx4 {v(B,4)}, v6, {s(sWS,4)}, {s(sK + (k >> 2))} offen offset:{(k&3)*1024} sc1")
    E(f"buffer_load_dwordx4 {v(B+4,4)}, v5, {s(sWS,4)}, {s(sK + (k >> 2))} offen offset:{(k&3)*1024} sc1")
def stream(split):
    spoll(2 if split else 4)
    stamp(6)
    bufs = {k: HA + 8*k for k in range(6)}
    for k in range(6): ldh(k, bufs[k])
    issued = 6; xl = 0; fr = []
    for k in range(16):
        if split and k == 8:
            spoll(2, 2)
            for kk in range(8, 16):
                bufs[kk] = fr.pop(0); ldh(kk, bufs[kk])
            issued = 16
            E(f"buffer_load_dwordx4 v[12:15], {v(vOUT)}, {s(sX0,4)}, {s(sT3)} offen"); xl = 1
        E(f"s_waitcnt vmcnt({2*(issued - k - 1) + xl})")
        for tb in range(2):
            for cb in range(2):
                A = v(acc2(tb, cb), 16)
                E(f"v_mfma_f32_32x32x16_bf16 {A}, {v(wreg(k,cb),4)}, {v(bufs[k]+4*tb,4)}, {A if k else 0}")
        fr += [bufs[k], wreg(k)]
        while fr and issued < (8 if split else 16):
            bufs[issued] = fr.pop(0); ldh(issued, bufs[issued]); issued += 1
        if issued == 16 and not xl:
            E(f"buffer_load_dwordx4 v[12:15], {v(vOUT)}, {s(sX0,4)}, {s(sT3)} offen"); xl = 1
    E("s_branch L_red")
E(f"s_cmp_eq_u32 {s(sW)}, 3")
E("s_cbranch_scc1 L_go3")
stream(False)
E("L_go3:")
stream(True)

E("L_p2_dft:")
E(f"v_and_b32 v2, 31, {v(vL)}")
E(f"v_lshrrev_b32 v3, 5, {v(vL)}")
E(f"s_and_b32 {s(sT0)}, s2, 15")
E(f"s_lshl_b32 {s(sT0)}, {s(sT0)}, 7")
E(f"s_add_u32 {s(sT0)}, {s(sT0)}, {FL_OFF}")
E(f"s_add_u32 {s(sPB)}, s30, {s(sT0)}")
E(f"s_addc_u32 {s(sPB+1)}, s31, 0")
E(f"s_lshl_b32 {s(sT0)}, {s(sCT)}, 6")
E(f"s_cmp_ge_u32 {s(sCT)}, 4")
E("s_cbranch_scc1 L_direct")
E(f"s_sub_u32 {s(sT0)}, 256, {s(sT0)}")
E(f"v_sub_u32 v2, {s(sT0)}, v2")
E(f"v_lshlrev_b32 v6, 4, v2")
E(f"v_lshl_add_u32 v6, v3, 12, v6")
E(f"v_subrev_u32 v10, 512, v6")
E(f"s_sub_u32 {s(sT1)}, 16, {s(sR)}")
E(f"s_and_b32 {s(sT1)}, {s(sT1)}, 15")
E("s_branch L_dft2")
E("L_direct:")
E(f"s_sub_u32 {s(sT0)}, {s(sT0)}, 256")
E(f"v_add_u32 v2, {s(sT0)}, v2")
E(f"v_lshlrev_b32 v6, 4, v2")
E(f"v_lshl_add_u32 v6, v3, 12, v6")
E(f"v_add_u32 v10, 512, v6")
E(f"s_mov_b32 {s(sT1)}, {s(sR)}")
E("L_dft2:")
twphase()
E("s_waitcnt vmcnt(4)")
TWA = min(16, 4*TWN + opt("twa", 5))
twgen(4*TWN, TWA)
E("s_waitcnt vmcnt(0)")
arrive(1, 4, sFL, True)
stamp(5)
twgen(TWA, 16)
E(f"s_cmp_eq_u32 {s(sDFT)}, 0")
E("s_cbranch_scc1 L_havetw")
twgen(0, 4*TWN)
E("L_havetw:")
E(f"s_lshl_b32 {s(sT0)}, {s(sT1)}, 17")
E(f"s_add_u32 {s(sT0)}, {s(sT0)}, {Z_OFF}")
spoll(1)
E(f"s_setprio {opt('w7p', 1)}")
stamp(6)
ZD = 14
def ldz(B):
    E(f"buffer_load_dwordx4 {v(B,4)}, v6, {s(sWS,4)}, {s(sT0)} offen sc1")
    E(f"buffer_load_dwordx4 {v(B+4,4)}, v10, {s(sWS,4)}, {s(sT0)} offen sc1")
    E(f"s_add_u32 {s(sT0)}, {s(sT0)}, 8192")
for j in range(ZD): ldz(80 + 8*j)
issued = ZD; xl = 0
for j in range(16):
    B = 80 + 8*(j % ZD)
    E(f"s_waitcnt vmcnt({2*(issued - j - 1) + xl})")
    for cb in range(2):
        A = v(acc2(j & 1, cb), 16)
        E(f"v_mfma_f32_32x32x16_bf16 {A}, {v(B+4*cb,4)}, {v(TW+4*j,4)}, {A if j > 1 else 0}")
    if issued < 16:
        ldz(B); issued += 1
        if issued == 16:
            E(f"buffer_load_dwordx4 v[12:15], {v(vOUT)}, {s(sX0,4)}, {s(sT3)} offen"); xl = 1
E("s_nop 11")
for r in range(32): E(f"v_sub_f32 {v(acc2(1,0)+r)}, {v(acc2(0,0)+r)}, {v(acc2(1,0)+r)}")
for r in range(32): E(f"v_fma_f32 {v(acc2(0,0)+r)}, {v(acc2(0,0)+r)}, 2.0, -{v(acc2(1,0)+r)}")

E("L_red:")
stamp(7)
HB = 80
E(f"v_bfe_u32 v2, {v(vL)}, 2, 3")
E(f"v_lshlrev_b32 v2, 13, v2")
E(f"v_and_b32 v3, 3, {v(vL)}")
E(f"v_lshl_add_u32 v2, v3, 8, v2")
E(f"v_lshrrev_b32 v3, 5, {v(vL)}")
E(f"v_and_b32 v4, 7, {v(vL)}")
E(f"v_xor_b32 v3, v3, v4")
E(f"v_lshl_add_u32 v2, v3, 4, v2")
E(f"s_lshl_b32 {s(sT0)}, {s(sW)}, 10")
E(f"v_add_u32 {v(HB)}, {s(sT0)}, v2")
for q in range(1, 4): E(f"v_xor_b32 {v(HB+q)}, {32*q}, {v(HB)}")
for q in range(4): E(f"v_add_u32 {v(HB+4+q)}, {8*Q}, {v(HB+q)}")
for tb in range(2):
    for cb in range(2):
        for q in range(4):
            E(f"ds_write_b128 {v(HB+4*tb+q)}, {v(acc2(tb,cb)+4*q,4)} offset:{cb*128}")
E(f"v_lshrrev_b32 v2, 3, v0")
E(f"v_and_b32 v3, 7, v0")
E(f"v_lshlrev_b32 v9, 1, v3")
E(f"v_and_b32 v10, 7, v2")
E(f"v_xor_b32 v9, v9, v10")
E(f"v_lshlrev_b32 v9, 4, v9")
E(f"v_and_b32 v10, 3, v2")
E(f"v_lshl_add_u32 v9, v10, 8, v9")
E(f"v_lshrrev_b32 v10, 2, v2")
E(f"v_lshl_add_u32 v9, v10, 13, v9")
E(f"v_xor_b32 v10, 16, v9")
E(f"v_or_b32 v3, {s(sCT)}, v3")
E(f"v_cmp_ne_u32 vcc, 0, v3")
E(f"s_mov_b32 {s(sK)}, {f32(-math.log2(math.e))}")
E("s_waitcnt lgkmcnt(0)")
E("s_barrier")
stamp(8)
RD = 128
for w in range(8):
    E(f"ds_read_b128 {v(RD+8*w,4)}, v9 offset:{w*1024}")
    E(f"ds_read_b128 {v(RD+8*w+4,4)}, v10 offset:{w*1024}")
def sum8(d, a):
    for k in range(4):
        E(f"v_pk_add_f32 {v(RD+8*d+2*k,2)}, {v(RD+8*d+2*k,2)}, {v(RD+8*a+2*k,2)}")
E("s_waitcnt lgkmcnt(12)"); sum8(0, 1)
E("s_waitcnt lgkmcnt(8)"); sum8(2, 3)
E("s_waitcnt lgkmcnt(4)"); sum8(4, 5); sum8(0, 2)
E("s_waitcnt lgkmcnt(2)"); sum8(4, 6); sum8(0, 4)
T = vACC
for k in range(4): E(f"v_pk_mul_f32 {v(T+2*k,2)}, {v(RD+2*k,2)}, {s(sK,2)} op_sel_hi:[1,0]")
for k in range(8): E(f"v_exp_f32 {v(T+k)}, {v(T+k)}")
E("s_nop 0")
for k in range(4): E(f"v_pk_add_f32 {v(T+2*k,2)}, {v(T+2*k,2)}, 1.0 op_sel_hi:[1,0]")
for k in range(8): E(f"v_rcp_f32 {v(T+k)}, {v(T+k)}")
E("s_waitcnt vmcnt(0) lgkmcnt(0)")
E(f"v_cndmask_b32 {v(RD+56)}, 0, {v(RD+56)}, vcc")
for k in range(4):
    E(f"v_lshlrev_b32 {v(T+8+2*k)}, 16, v{12+k}")
    E(f"v_and_b32 {v(T+9+2*k)}, {s(sMASK)}, v{12+k}")
for k in range(4): E(f"v_pk_mul_f32 {v(T+2*k,2)}, {v(T+2*k,2)}, {v(RD+2*k,2)}")
for k in range(4): E(f"v_pk_fma_f32 {v(T+2*k,2)}, {v(T+2*k,2)}, {v(RD+56+2*k,2)}, {v(T+8+2*k,2)}")
for k in range(4): E(f"v_cvt_pk_bf16_f32 v{12+k}, {v(T+2*k)}, {v(T+2*k+1)}")
E(f"buffer_store_dwordx4 v[12:15], {v(vOUT)}, {s(sX1,4)}, {s(sT3)} offen" + (" sc1" if flag("outsc1") else "") + (" nt" if flag("outnt") else ""))
if STAMP:
    E("s_waitcnt vmcnt(0)")
    stamp(9)
    E("s_waitcnt lgkmcnt(0)")
    E(f"s_lshl_b32 s78, s2, 3")
    E(f"s_add_u32 s78, s78, {s(sW)}")
    E(f"s_lshl_b32 s78, s78, 6")
    E(f"s_add_u32 s78, s78, {STAMP_OFF}")
    E(f"s_mov_b32 {s(sWS+2)}, 0x2000000")
    for k in range(12): E(f"v_mov_b32 {v(200+k)}, s{80+2*min(k,NST-1)}")
    E(f"v_mov_b32 v212, 0")
    E("s_mov_b64 exec, 1")
    for k in range(3): E(f"buffer_store_dwordx4 {v(200+4*k,4)}, v212, {s(sWS,4)}, s78 offen offset:{16*k}")
E("L_end:")
E("s_endpgm")
EL(SLOW)

E('.section .rodata,"a"')
E(".p2align 6")
E(f""".amdhsa_kernel {KNAME}
.amdhsa_next_free_vgpr 256
.amdhsa_next_free_sgpr 102
.amdhsa_accum_offset 256
.amdhsa_group_segment_fixed_size 0
.amdhsa_kernarg_size 96
.amdhsa_user_sgpr_count 2
.amdhsa_user_sgpr_kernarg_segment_ptr 1
.amdhsa_system_sgpr_workgroup_id_x 1
.end_amdhsa_kernel""")
open(OUT, "w").write("\n".join(L) + "\n")
if flag("v"): print(I0.issued, I1.issued, ID.issued)
```
